```python
import torch

def _softmax(x, axis=-1):
    return torch.softmax(x, dim=axis)
def _gelu(x):
    return torch.nn.functional.gelu(x, approximate="tanh")
def _silu(x):
    return torch.nn.functional.silu(x)
def _sigmoid(x):
    return torch.sigmoid(x)
def _layernorm(x, axis=-1, eps=1e-5):
    m = x.mean(dim=axis, keepdim=True)
    v = x.var(dim=axis, keepdim=True, unbiased=False)
    return (x - m) / torch.sqrt(v + eps)
def _scatter_add(tgt, idx, src, axis=0):
    return tgt.clone().index_add_(axis, idx, src)
def _segment_sum(src, seg, n):
    out = torch.zeros((n,) + src.shape[1:], dtype=src.dtype)
    return out.index_add_(0, seg, src)
def _pad(x, pw):
    flat = tuple(v for pair in reversed(pw) for v in pair)
    return torch.nn.functional.pad(x, flat)

kernel_name = 'sequential_preLN__sliding_block__glu_gated_bilinear__prompt'

def setup_inputs():

    _w = (lambda a: (lambda t: t.to(torch.bfloat16) if t.is_floating_point() else t)(torch.as_tensor(a)))
    def _A_setup():
        B, S, D = 1, 2048, 1024
        return {
            "x": _w((lambda *s: torch.randn(*s, dtype=torch.bfloat16) * 0.05)(B, S, D)),
            "wqkv": _w((lambda *s: torch.randn(*s, dtype=torch.bfloat16) * 0.05)(D, 3 * D)),
            "wo": _w((lambda *s: torch.randn(*s, dtype=torch.bfloat16) * 0.05)(D, D)),
        }
    _A_in = _A_setup()

    def _B_setup():
        B, S, D, F = 1, 2048, 1024, 3584
        return {
            "x": _w((lambda *s: torch.randn(*s, dtype=torch.bfloat16) * 0.05)(B, S, D)),
            "w_gate": _w((lambda *s: torch.randn(*s, dtype=torch.bfloat16) * 0.8)(D, F) * (D ** -0.5)),
            "w_up": _w((lambda *s: torch.randn(*s, dtype=torch.bfloat16) * 0.8)(D, F) * (D ** -0.5)),
            "w_down": _w((lambda *s: torch.randn(*s, dtype=torch.bfloat16) * 0.8)(F, D) * (F ** -0.5)),
        }
    _B_in = _B_setup()

    return {
        "A_x": _A_in["x"],
        "A_wqkv": _A_in["wqkv"],
        "A_wo": _A_in["wo"],
        "B_x": _B_in["x"],
        "B_w_gate": _B_in["w_gate"],
        "B_w_up": _B_in["w_up"],
        "B_w_down": _B_in["w_down"],
    }

def reference(A_x, A_wqkv, A_wo, B_x, B_w_gate, B_w_up, B_w_down):
    def _A_ref(x, wqkv, wo):
        B, S, D = x.shape
        H = 32; Dh = D // H; W = 256
        qkv = (lambda x, *d: x.permute(*d))((x @ wqkv).reshape(B, S, 3, H, Dh), 2, 0, 3, 1, 4)
        q, k, v = qkv[0], qkv[1], qkv[2]
        scores = torch.einsum("bhqd,bhkd->bhqk", q, k) * (Dh ** -0.5)
        idx = torch.arange(S)
        mask = (idx[:, None] - idx[None, :] >= 0) & (idx[:, None] - idx[None, :] < W)
        scores = torch.where(mask[None, None], scores, -1e9)
        p = _softmax(scores, axis=-1)
        o = torch.einsum("bhqk,bhkd->bhqd", p, v)
        return (lambda x, *d: x.permute(*d))(o, 0, 2, 1, 3).reshape(B, S, D) @ wo

    def _B_ref(x, w_gate, w_up, w_down):
        g = torch.einsum("bsd,df->bsf", x, w_gate)
        u = torch.einsum("bsd,df->bsf", x, w_up)
        h = g * u
        return torch.einsum("bsf,fd->bsd", h, w_down)

    x = A_x
    h = x + _A_ref(_layernorm(x, axis=-1), A_wqkv, A_wo)
    h2 = h + _B_ref(_layernorm(h, axis=-1), B_w_gate, B_w_up, B_w_down)
    return h2
```

```python
class Op:
    __slots__=("text","kind","tag","n","site")
    def __init__(s,text,kind="x",tag=None,site=None):
        s.text=text; s.kind=kind; s.tag=tag; s.n=None; s.site=site
    def __repr__(s): return f"Op({s.text!r},{s.kind},{s.tag})"

def I(text): return Op(text)
def VM(text,tag=None): return Op(text,"vm",tag)
def DS(text,tag=None): return Op(text,"ds",tag)
def WV(tag,site): return Op(None,"wv",tag,site)
def WL(tag,site): return Op(None,"wl",tag,site)
def RAW(text): return Op(text,"raw")
def DRAINV(): return Op("s_waitcnt vmcnt(0)","drainv")
def DRAINL(): return Op("s_waitcnt lgkmcnt(0)","drainl")
def DRAIN(): return Op("s_waitcnt vmcnt(0) lgkmcnt(0)","drain")

def simulate(seq, vq=None, lq=None):
    vq=list(vq or []); lq=list(lq or [])
    for op in seq:
        if op.kind=="vm": vq.append(op.tag)
        elif op.kind=="ds": lq.append(op.tag)
        elif op.kind in("wv","wl"):
            q = vq if op.kind=="wv" else lq
            tags = op.tag if isinstance(op.tag,list) else [op.tag]
            idx=-1
            for i,t in enumerate(q):
                if t in tags: idx=i
            if idx<0: op.n=None
            else:
                op.n=len(q)-1-idx
                del q[:idx+1]
        elif op.kind=="drainv": vq.clear()
        elif op.kind=="drainl": lq.clear()
        elif op.kind=="drain": vq.clear(); lq.clear()
    return vq,lq

def resolve(groups):
    best={}
    for g in groups:
        for op in g:
            if op.kind in("wv","wl") and op.n is not None:
                best[op.site]=min(best.get(op.site,99),op.n)
    for g in groups:
        for op in g:
            if op.kind in("wv","wl"): op.n=best.get(op.site)
    t0=[render(o) for o in groups[0]]
    for g in groups[1:]:
        t=[render(o) for o in g]
        assert t==t0, "loop instances differ:\n"+"\n".join(f"{a} | {b}" for a,b in zip(t0,t) if a!=b)
    return groups[0]

def render(op):
    if op.kind=="wv":
        if op.n is None: return None
        assert op.n<=63
        return f"s_waitcnt vmcnt({op.n})"
    if op.kind=="wl":
        if op.n is None: return None
        return f"s_waitcnt lgkmcnt({min(op.n,15)})"
    return op.text

def text(seq):
    out=[]
    for op in seq:
        t=render(op)
        if t is None: continue
        out.append(t if op.kind=="raw" else "    "+t)
    return "\n".join(out)

def weave(mf, gaps):
    out=[]
    for i,m in enumerate(mf):
        out += gaps.get(i,[])
        out.append(m)
    out += gaps.get(len(mf),[])
    return out

def kd(name, vgpr=512, accum=256, sgpr=102):
    return f""".p2align 6
.amdhsa_kernel {name}
  .amdhsa_next_free_vgpr {vgpr}
  .amdhsa_next_free_sgpr {sgpr}
  .amdhsa_accum_offset {accum}
  .amdhsa_group_segment_fixed_size 0
  .amdhsa_kernarg_size 80
  .amdhsa_user_sgpr_count 2
  .amdhsa_user_sgpr_kernarg_segment_ptr 1
  .amdhsa_system_sgpr_workgroup_id_x 1
.end_amdhsa_kernel"""
def khead(name):
    return f""".globl {name}
.p2align 8
.type {name},@function
{name}:"""
```

```python
MB=1<<20
Q_FO   = 0*MB
K_FO   = 4*MB
VT_FO  = 8*MB
O_FO   = 12*MB
H_FO   = 16*MB
ACT_FO = 20*MB
STATS2 = 36*MB
CS_GU  = 37*MB
STATS1 = 38*MB
CS_QKV = 38*MB+512*1024
TSTAMP = 48*MB
WS_SIZE= 256*MB
A_X=0; A_WQKV=8; A_WO=16; B_X=24; B_WG=32; B_WU=40; B_WD=48; D_OUT=56; D_DBG=64; D_WS=72
```

```python
from asmlib import *
from layout import *
S_W,S_MT,S_J=20,21,22

def ids_p1():
    o=[]; A=lambda s:o.append(I(s))
    A("v_and_b32 v1, 63, v0"); A("v_lshrrev_b32 v23, 6, v0")
    A("s_and_b32 s3, s2, 7"); A("s_lshr_b32 s16, s2, 3")
    A("s_and_b32 s17, s3, 1"); A("s_lshl_b32 s17, s17, 3"); A("s_and_b32 s18, s16, 7"); A(f"s_add_u32 s{S_MT}, s17, s18")
    A(f"v_readfirstlane_b32 s{S_W}, v23")
    A("s_lshr_b32 s17, s3, 1"); A("s_lshl_b32 s17, s17, 2"); A("s_lshr_b32 s18, s16, 3"); A(f"s_add_u32 s{S_J}, s17, s18")
    return o

def dpp_sum16(A,regs):
    for sh in (8,4,2,1):
        A("s_nop 1")
        for r in regs: A(f"v_add_f32_dpp v{r}, v{r}, v{r} row_ror:{sh} row_mask:0xf bank_mask:0xf")
def swap_sum(A,regs,tmp,which):
    for i,r in enumerate(regs): A(f"v_mov_b32 v{tmp+i}, v{r}")
    A("s_nop 1")
    for i,r in enumerate(regs): A(f"{which} v{r}, v{tmp+i}")
    A("s_nop 1")
    for i,r in enumerate(regs): A(f"v_add_f32 v{r}, v{r}, v{tmp+i}")

def ln1_part(xsrd, wsrd, R0=64, fl=""):
    o=[]; A=lambda s:o.append(I(s))
    A(f"s_cmp_eq_u32 s{S_W}, 3"); A("s_cbranch_scc1 L0_rows")
    A(f"s_mul_i32 s16, s{S_MT}, {64*6144}"); A(f"s_lshl_b32 s17, s{S_W}, 11"); A("s_add_u32 s16, s16, s17"); A(f"s_lshl_b32 s17, s{S_J}, 7"); A("s_add_u32 s16, s16, s17")
    A("v_lshrrev_b32 v23, 3, v1"); A("v_mul_u32_u24 v23, 6144, v23"); A("v_and_b32 v24, 7, v1"); A("v_lshlrev_b32 v24, 4, v24"); A("v_add_u32 v23, v23, v24")
    for q in range(8):
        o.append(VM(f"buffer_load_dwordx4 v[{R0+4*q}:{R0+4*q+3}], v23, {wsrd}, s16 offen",("cw",q)))
        A(f"s_add_u32 s16, s16, {8*6144}")
    T=R0+32
    for c in range(8): A(f"v_mov_b32 v{T+c}, 0")
    for q in range(8):
        o.append(WV(("cw",q),("cw",q)))
        for d in range(4):
            r=R0+4*q+d
            A(f"v_lshlrev_b32 v24, 16, v{r}"); A(f"v_and_b32 v25, 0xffff0000, v{r}")
            A(f"v_add_f32 v{T+2*d}, v{T+2*d}, v24"); A(f"v_add_f32 v{T+2*d+1}, v{T+2*d+1}, v25")
    regs=list(range(T,T+8))
    A("s_nop 1")
    for r in regs: A(f"v_add_f32_dpp v{r}, v{r}, v{r} row_ror:8 row_mask:0xf bank_mask:0xf")
    swap_sum(A,regs,T+8,"v_permlane16_swap_b32"); swap_sum(A,regs,T+8,"v_permlane32_swap_b32")
    A(f"s_mul_i32 s16, s{S_MT}, {3072*4}"); A(f"s_lshl_b32 s17, s{S_W}, 12"); A("s_add_u32 s16, s16, s17"); A(f"s_lshl_b32 s17, s{S_J}, 8"); A("s_add_u32 s16, s16, s17")
    A(f"s_add_u32 s16, s16, {CS_QKV}")
    A("v_lshlrev_b32 v23, 5, v1"); A("v_mov_b32 v24, 0x10000000"); A("v_cmp_gt_u32 vcc, 8, v1"); A("s_nop 1"); A("v_cndmask_b32 v23, v24, v23, vcc")
    o.append(VM(f"buffer_store_dwordx4 v[{T}:{T+3}], v23, s[4:7], s16 offen {fl}",("st",)))
    o.append(VM(f"buffer_store_dwordx4 v[{T+4}:{T+7}], v23, s[4:7], s16 offen offset:16 {fl}",("st",)))
    A("s_branch L0_join")
    o.append(RAW("L0_rows:"))
    A(f"s_lshl_b32 s16, s{S_MT}, 18"); A(f"s_lshl_b32 s17, s{S_J}, 14"); A("s_add_u32 s16, s16, s17")
    A("v_lshlrev_b32 v23, 4, v1")
    for q in range(8):
        for h in range(2):
            r=R0+8*q+4*h
            o.append(VM(f"buffer_load_dwordx4 v[{r}:{r+3}], v23, {xsrd}, s16 offen offset:{h*1024}",("xr",q)))
        A(f"s_add_u32 s16, s16, 2048")
    T=R0+64
    A("v_mov_b32 v24, 0x3f803f80")
    for q in range(8):
        o.append(WV(("xr",q),("xr",q)))
        for d in range(8):
            r=R0+8*q+d
            if d==0:
                A(f"v_dot2_f32_bf16 v{T+2*q}, v{r}, v24, 0"); A(f"v_dot2_f32_bf16 v{T+2*q+1}, v{r}, v{r}, 0")
            else:
                A(f"v_dot2_f32_bf16 v{T+2*q}, v{r}, v24, v{T+2*q}"); A(f"v_dot2_f32_bf16 v{T+2*q+1}, v{r}, v{r}, v{T+2*q+1}")
    regs=list(range(T,T+16))
    A("s_nop 2")
    dpp_sum16(A,regs)
    swap_sum(A,regs,T+16,"v_permlane16_swap_b32"); swap_sum(A,regs,T+16,"v_permlane32_swap_b32")
    A(f"v_mov_b32 v26, v{T}"); A(f"v_mov_b32 v27, v{T+1}")
    for q in range(1,8):
        A(f"v_cmp_eq_u32 vcc, {q}, v1"); A("s_nop 1")
        A(f"v_cndmask_b32 v26, v26, v{T+2*q}, vcc"); A(f"v_cndmask_b32 v27, v27, v{T+2*q+1}, vcc")
    A("s_mov_b32 s16, 0x3a800000"); A("s_mov_b32 s17, 0x3727c5ac")
    A("v_mul_f32 v26, s16, v26"); A("v_mul_f32 v27, s16, v27"); A("v_fma_f32 v27, -v26, v26, v27"); A("v_add_f32 v27, s17, v27")
    A("v_rsq_f32 v27, v27")
    A(f"s_lshl_b32 s16, s{S_MT}, 10"); A(f"s_lshl_b32 s17, s{S_J}, 6"); A("s_add_u32 s16, s16, s17"); A(f"s_add_u32 s16, s16, {STATS1}")
    A("v_lshlrev_b32 v23, 3, v1"); A("v_mov_b32 v24, 0x10000000"); A("v_cmp_gt_u32 vcc, 8, v1"); A("s_nop 1"); A("v_cndmask_b32 v23, v24, v23, vcc")
    o.append(VM(f"buffer_store_dwordx2 v[26:27], v23, s[4:7], s16 offen {fl}",("st",)))
    o.append(RAW("L0_join:"))
    return o

def cs_gu(gsrd_lo, R0=64, LB=0, fl=""):
    o=[]; A=lambda s:o.append(I(s))
    A("s_lshr_b32 s16, s2, 5"); A("s_lshl_b32 s16, s16, 2"); A(f"s_add_u32 s16, s16, s{S_W}"); A(f"s_mul_i32 s16, s16, {32*7168}")
    A("v_lshrrev_b32 v23, 5, v1"); A("v_mul_u32_u24 v23, 7168, v23"); A("v_and_b32 v24, 31, v1"); A("v_lshlrev_b32 v25, 4, v24"); A("v_add_u32 v23, v23, v25")
    A("v_mov_b32 v25, 0x70000000"); A("v_cmp_gt_u32 vcc, 28, v24"); A("s_nop 1"); A("v_cndmask_b32 v23, v25, v23, vcc")
    for q in range(16):
        o.append(VM(f"buffer_load_dwordx4 v[{R0+4*q}:{R0+4*q+3}], v23, {gsrd_lo}, s16 offen",("gw",q)))
        A(f"s_add_u32 s16, s16, {2*7168}")
    T=R0+64
    for c in range(8): A(f"v_mov_b32 v{T+c}, 0")
    for q in range(16):
        o.append(WV(("gw",q),("gw",q)))
        for d in range(4):
            r=R0+4*q+d
            A(f"v_lshlrev_b32 v26, 16, v{r}"); A(f"v_and_b32 v27, 0xffff0000, v{r}")
            A(f"v_add_f32 v{T+2*d}, v{T+2*d}, v26"); A(f"v_add_f32 v{T+2*d+1}, v{T+2*d+1}, v27")
    swap_sum(A,list(range(T,T+8)),T+8,"v_permlane32_swap_b32")
    A(f"s_mul_i32 s16, s{S_W}, 896"); A(f"s_add_u32 s16, s16, {LB}"); A("v_lshlrev_b32 v23, 5, v24"); A("v_add_u32 v23, s16, v23")
    A("v_cmp_gt_u32 vcc, 28, v1"); A("s_and_saveexec_b64 s[34:35], vcc")
    o.append(DS(f"ds_write_b128 v23, v[{T}:{T+3}]",("gl",))); o.append(DS(f"ds_write_b128 v23, v[{T+4}:{T+7}] offset:16",("gl",)))
    A("s_mov_b64 exec, s[34:35]")
    o.append(WL(("gl",),"gl")); A("s_barrier")
    A("v_lshlrev_b32 v23, 2, v0"); A(f"v_add_u32 v23, {LB}, v23")
    for w in range(4): o.append(DS(f"ds_read_b32 v{T+w}, v23 offset:{w*896}",("gr",)))
    o.append(WL(("gr",),"gr"))
    A(f"v_add_f32 v{T}, v{T}, v{T+1}"); A(f"v_add_f32 v{T+2}, v{T+2}, v{T+3}"); A(f"v_add_f32 v{T}, v{T}, v{T+2}")
    A("s_lshr_b32 s16, s2, 5"); A(f"s_mul_i32 s16, s16, {7168*4}"); A("s_and_b32 s17, s2, 31"); A("s_mul_i32 s17, s17, 896"); A("s_add_u32 s16, s16, s17"); A(f"s_add_u32 s16, s16, {CS_GU}")
    A("v_lshlrev_b32 v23, 2, v0"); A("v_mov_b32 v24, 0x10000000"); A("v_cmp_gt_u32 vcc, 224, v0"); A("s_nop 1"); A("v_cndmask_b32 v23, v24, v23, vcc")
    o.append(VM(f"buffer_store_dword v{T}, v23, s[4:7], s16 offen {fl}",("st",)))
    return o

def gen(name="p0_kernel"):
    o=[]; A=lambda s:o.append(I(s))
    A("s_cmp_ge_u32 s2, 256"); A("s_cbranch_scc1 L0_done")
    A(f"s_load_dwordx2 s[4:5], s[0:1], {D_WS}")
    A(f"s_load_dwordx4 s[8:11], s[0:1], {A_X}")
    A(f"s_load_dwordx4 s[24:27], s[0:1], {B_WG}")
    o+=ids_p1()
    A("s_waitcnt lgkmcnt(0)")
    A("s_mov_b32 s6, 0x10000000"); A("s_mov_b32 s7, 0x20000")
    A("s_mov_b32 s12, s10"); A("s_mov_b32 s13, s11"); A(f"s_mov_b32 s14, {1024*6144}"); A("s_mov_b32 s15, 0x20000")
    A("s_mov_b32 s10, 0x400000"); A("s_mov_b32 s11, 0x20000")
    A("s_and_b32 s16, s2, 31"); A("s_cmp_ge_u32 s16, 16"); A("s_cselect_b32 s28, s26, s24"); A("s_cselect_b32 s29, s27, s25")
    A("s_and_b32 s16, s16, 15"); A("s_mul_i32 s16, s16, 448"); A("s_add_u32 s28, s28, s16"); A("s_addc_u32 s29, s29, 0")
    A(f"s_sub_u32 s30, {1024*7168}, s16"); A("s_mov_b32 s31, 0x20000")
    o+=ln1_part("s[8:11]","s[12:15]")
    o+=cs_gu("s[28:31]")
    simulate(o)
    return khead(name)+"\n"+text(o)+"\nL0_done:\n    s_endpgm", name

if __name__=="__main__":
    code,name=gen()
    h=f"; @launch kernel={name} grid=(256,1,1) block=(256,1,1) lds=4096\n"
    s=h+'.amdgcn_target "amdgcn-amd-amdhsa--gfx950"\n.text\n'+code+'\n.section .rodata,"a"\n'+kd(name,vgpr=256,accum=256)+"\n"
    open("p0.s","w").write(s)
```

```python
from asmlib import *
from layout import *
import p0
S_W,S_MT,S_J=20,21,22
S_XO,S_WO,S_WR,S_RD,S_CNT,S_LIM=24,25,26,27,28,29
ACC0=32
def acc(nb,mb): return ACC0+(nb*4+mb)*4
def accr(nb,mb): a=acc(nb,mb); return f"v[{a}:{a+3}]"
XA0=0
WA0=32
def xr(n,mb): a=XA0+(n%2)*16+mb*4; return f"a[{a}:{a+3}]"
def wa(n,nb): return WA0+(n%2)*24+nb*4
STAGE=40960; NST=4; WOFF=16384
V_XD=2
V_WD=6
V_XL=12
V_WL=14
V_XR=16
V_WR=18
V_CS=20
V_SQ=128; V_SV=136

def dma_x(t,i):
    o=[]
    if i==0: o.append(I(f"s_mov_b32 m0, s{S_WR}"))
    o.append(VM(f"buffer_load_dwordx4 v{V_XD+i}, s[12:15], s{S_XO} offen offset:{i*1024} lds",("D",t)))
    return o
def dma_w(t,i):
    sec=i//2; h=i%2
    o=[]
    if h==0: o.append(I(f"s_add_u32 m0, s{S_LIM+1}, {WOFF+sec*8192}"))
    o.append(VM(f"buffer_load_dwordx4 v{V_WD+i}, s[8:11], s{S_WO} offen offset:{h*1024} lds",("D",t)))
    return o
def x_read(n,mb):
    s=n%2
    return DS(f"ds_read_b128 {xr(n,mb)}, v{V_XR+s} offset:{mb*2048}",("X",n,mb))
def w_reads(n,nb):
    s=n%2; sec=nb//2; h=nb%2; a=wa(n,nb)
    o=WOFF+sec*8192+s*4096
    return [DS(f"ds_read_b64_tr_b16 a[{a}:{a+1}], v{V_WR+h} offset:{o}",("W",n,nb)),
            DS(f"ds_read_b64_tr_b16 a[{a+2}:{a+3}], v{V_WR+h} offset:{o+512}",("W",n,nb))]

def step_ops(n):
    t=n//2; s=n%2
    mf=[]; gaps={}
    def put(idx,ops): gaps.setdefault(idx,[]).extend(ops)
    for nb in range(6):
        a=wa(n,nb); base=len(mf)
        for mb in (range(4) if nb%2==0 else range(3,-1,-1)):
            if nb<4: mf.append(I(f"v_mfma_f32_16x16x32_bf16 {accr(nb,mb)}, a[{a}:{a+3}], {xr(n,mb)}, {accr(nb,mb)}"))
            else:    mf.append(I(f"v_mfma_f32_16x16x32_bf16 {accr(nb,mb)}, {xr(n,mb)}, a[{a}:{a+3}], {accr(nb,mb)}"))
        w=[WL(("W",n,nb),("wl",s,nb))]
        if nb==0: w=[WL([("X",n,m) for m in range(4)],("wx",s))]+w
        put(base,w)
    na=n+1
    pre=[]
    if s==1:
        pre=[WV(("D",t+1),("wd",)), I("s_barrier")]
        pre+=[I(f"v_add_u32 v{V_XR}, s{S_RD}, v{V_XL}"), I(f"v_add_u32 v{V_XR+1}, s{S_RD}, v{V_XL+1}"),
              I(f"v_add_u32 v{V_WR}, s{S_RD}, v{V_WL}"), I(f"v_add_u32 v{V_WR+1}, s{S_RD}, v{V_WL+1}")]
    rds=[x_read(na,m) for m in range(4)]
    for nb in range(6): rds+=w_reads(na,nb)
    put(1,pre)
    pos=1
    for r in rds:
        put(pos,[r]); pos+=1
    pieces=[("x",0),("x",1),("x",2),("x",3),("w",0),("w",1),("w",2),("w",3),("w",4),("w",5)]
    if s==1: td,ps=t+3,pieces[:5]
    else: td,ps=t+2,pieces[5:]
    slots=[3,7,11,15,19]
    for (k,i),sl in zip(ps,slots):
        d=dma_x(td,i) if k=="x" else dma_w(td,i)
        if len(d)==2: put(sl-1,[d[0]]); put(sl,[d[1]])
        else: put(sl,[d[0]])
    if s==0:
        put(20,[I(f"s_add_u32 s{S_XO}, s{S_XO}, 128")]); put(20,[I(f"s_add_u32 s{S_WO}, s{S_WO}, {64*6144}")])
        put(21,[I(f"s_add_u32 s{S_WR}, s{S_WR}, {STAGE}")])
        put(21,[I(f"s_cmp_ge_u32 s{S_WR}, s{S_LIM}")])
        put(22,[I(f"s_cselect_b32 s3, {NST*STAGE}, 0")]); put(22,[I(f"s_sub_u32 s{S_WR}, s{S_WR}, s3")])
        put(23,[I(f"s_add_u32 s{S_LIM+1}, s{S_WR}, s{S_LIM+2}")])
        put(17,[I(f"s_add_u32 s{S_RD}, s{S_RD}, {STAGE}")]); put(18,[I(f"s_cmp_ge_u32 s{S_RD}, {NST*STAGE}")]); put(18,[I(f"s_cselect_b32 s{S_RD}, 0, s{S_RD}")])
        put(23,[I(f"s_cmp_ge_u32 s{S_WO}, {1024*6144}")]); put(24,[I(f"s_cselect_b32 s{S_XO}, 0x10000000, s{S_XO}")])
    return weave(mf,gaps)

def body(it):
    return step_ops(2*it)+step_ops(2*it+1)

def setup():
    o=[]; A=lambda s:o.append(I(s))
    A("s_cmp_ge_u32 s2, 256"); A("s_cbranch_scc1 L1_done")
    A(f"s_load_dwordx2 s[4:5], s[0:1], {D_WS}")
    A(f"s_load_dwordx2 s[12:13], s[0:1], {A_X}")
    A(f"s_load_dwordx2 s[8:9], s[0:1], {A_WQKV}")
    o+=p0.ids_p1()
    A("v_lshrrev_b32 v23, 3, v1"); A("v_lshrrev_b32 v24, 4, v1"); A("v_and_b32 v25, 7, v1")
    A(f"s_lshl_b32 s16, s{S_W}, 16")
    for i in range(4):
        A(f"v_add_u32 v26, {4*i}, v24"); A("v_and_b32 v26, 7, v26"); A("v_xor_b32 v26, v26, v25"); A("v_lshlrev_b32 v26, 4, v26")
        A(f"v_add_u32 v27, {8*i}, v23"); A("v_lshlrev_b32 v27, 11, v27"); A("v_add3_u32 v26, v26, v27, s16")
        if i: A(f"v_subrev_u32 v{V_XD+i}, {i*1024}, v26")
        else: A(f"v_mov_b32 v{V_XD}, v26")
    A("v_bfe_u32 v24, v1, 4, 1"); A("v_bfe_u32 v25, v1, 1, 2"); A("v_and_b32 v26, 1, v1"); A("v_lshlrev_b32 v26, 4, v26")
    A(f"s_lshl_b32 s16, s{S_W}, 4")
    for h in range(2):
        A(f"v_or_b32 v27, {h<<1}, v24"); A("v_xor_b32 v27, v27, v25"); A("v_lshlrev_b32 v27, 5, v27"); A("v_add_u32 v27, v27, v26")
        A(f"v_add_u32 v28, {8*h}, v23"); A("v_add_u32 v28, s16, v28"); A("v_mul_u32_u24 v28, 6144, v28"); A("v_add_u32 v27, v27, v28")
        for sec in range(3):
            A(f"v_add_u32 v{V_WD+2*sec+h}, {sec*2048-h*1024+ (0)}, v27" if sec*2048-h*1024>=0 else f"v_subrev_u32 v{V_WD+2*sec+h}, {h*1024}, v27")
    A(f"s_lshr_b32 s16, s{S_W}, 1"); A("s_lshl_b32 s16, s16, 13")
    A("v_and_b32 v23, 15, v1"); A("v_lshrrev_b32 v24, 4, v1"); A("v_lshrrev_b32 v25, 1, v23"); A("v_lshlrev_b32 v26, 7, v23")
    for s in range(2):
        A(f"v_or_b32 v27, {4*s}, v24"); A("v_xor_b32 v27, v27, v25"); A("v_lshlrev_b32 v27, 4, v27"); A(f"v_add3_u32 v{V_XL+s}, v27, v26, s16")
    A("v_bfe_u32 v23, v1, 2, 2"); A("v_lshlrev_b32 v25, 3, v24"); A("v_add_u32 v25, v25, v23"); A("v_lshlrev_b32 v25, 7, v25")
    A("v_and_b32 v26, 3, v1"); A("v_lshlrev_b32 v26, 3, v26"); A("v_add_u32 v25, v25, v26")
    A("v_lshrrev_b32 v23, 1, v23"); A("v_and_b32 v26, 1, v24"); A("v_lshlrev_b32 v26, 1, v26"); A("v_or_b32 v23, v23, v26")
    A(f"s_and_b32 s16, s{S_W}, 1"); A("s_lshl_b32 s16, s16, 1")
    for h in range(2):
        A(f"s_or_b32 s17, s16, {h}"); A("v_xor_b32 v26, s17, v23"); A("v_lshlrev_b32 v26, 5, v26"); A(f"v_add_u32 v{V_WL+h}, v25, v26")
    for r in range(2):
        A(f"v_mov_b32 v{V_XR+r}, v{V_XL+r}"); A(f"v_mov_b32 v{V_WR+r}, v{V_WL+r}")
    A("s_waitcnt lgkmcnt(0)")
    A("s_mov_b32 s6, 0x10000000"); A("s_mov_b32 s7, 0x20000")
    A(f"s_lshl_b32 s16, s{S_MT}, 18"); A("s_add_u32 s12, s12, s16"); A("s_addc_u32 s13, s13, 0"); A("s_sub_u32 s14, 0x400000, s16"); A("s_mov_b32 s15, 0x20000")
    A(f"s_lshl_b32 s16, s{S_J}, 7"); A("s_add_u32 s8, s8, s16"); A("s_addc_u32 s9, s9, 0"); A(f"s_sub_u32 s10, {1024*6144}, s16"); A("s_mov_b32 s11, 0x20000")
    return o

def fill():
    o=[]; A=lambda s:o.append(I(s))
    A(f"s_lshl_b32 s{S_WR}, s{S_W}, 12"); A(f"s_add_u32 s{S_LIM}, s{S_WR}, {NST*STAGE}")
    A(f"s_lshl_b32 s16, s{S_W}, 11"); A(f"s_sub_u32 s{S_LIM+2}, 0, s16")
    A(f"s_add_u32 s{S_LIM+1}, s{S_WR}, s{S_LIM+2}")
    A(f"s_mov_b32 s{S_XO}, 0"); A(f"s_mov_b32 s{S_WO}, 0"); A(f"s_mov_b32 s{S_RD}, 0")
    pieces=[("x",0),("x",1),("x",2),("x",3),("w",0),("w",1),("w",2),("w",3),("w",4),("w",5)]
    for t in range(3):
        for (k,i) in (pieces if t<2 else pieces[:5]):
            d=dma_x(t,i) if k=="x" else dma_w(t,i)
            if len(d)==2: o.extend([d[0],I("s_nop 0"),d[1]])
            else: o.extend(d)
        if t<2:
            A(f"s_add_u32 s{S_XO}, s{S_XO}, 128"); A(f"s_add_u32 s{S_WO}, s{S_WO}, {64*6144}")
            A(f"s_add_u32 s{S_WR}, s{S_WR}, {STAGE}"); A(f"s_add_u32 s{S_LIM+1}, s{S_WR}, s{S_LIM+2}")
    return o

def load_stats():
    o=[]; A=lambda s:o.append(I(s))
    A(f"s_lshl_b32 s16, s{S_MT}, 10"); A(f"s_lshr_b32 s17, s{S_W}, 1"); A("s_lshl_b32 s17, s17, 9"); A("s_add_u32 s16, s16, s17"); A(f"s_add_u32 s16, s16, {STATS1}")
    A("v_and_b32 v23, 15, v1"); A("v_lshlrev_b32 v23, 3, v23")
    for mb in range(4): o.append(VM(f"buffer_load_dwordx2 v[{V_SQ+2*mb}:{V_SQ+2*mb+1}], v23, s[4:7], s16 offen offset:{mb*128}",("S",)))
    A("v_lshrrev_b32 v23, 4, v1"); A("v_lshlrev_b32 v23, 5, v23")
    for mb in range(4):
        for h in range(2):
            r=V_SV+8*mb+4*h
            o.append(VM(f"buffer_load_dwordx4 v[{r}:{r+3}], v23, s[4:7], s16 offen offset:{mb*128+h*16}",("S",)))
    A("v_lshrrev_b32 v23, 6, v0"); A("v_lshlrev_b32 v23, 12, v23"); A("v_lshlrev_b32 v24, 2, v1"); A("v_add_u32 v23, v23, v24")
    A("v_mov_b32 v24, 0x10000000"); A("v_cmp_gt_u32 vcc, 192, v0"); A("s_nop 1"); A("v_cndmask_b32 v23, v24, v23, vcc")
    A(f"s_lshl_b32 s16, s{S_J}, 8"); A(f"s_add_u32 s16, s16, {CS_QKV}")
    for ks in range(16):
        o.append(VM(f"buffer_load_dword v{168+ks}, v23, s[4:7], s16 offen",("C",))); A(f"s_add_u32 s16, s16, {3072*4}")
    return o
def reduce_cs():
    o=[WV(("C",),"pc")]; A=lambda s:o.append(I(s))
    A(f"v_add_f32 v{V_CS}, v168, v169")
    for ks in range(2,16): A(f"v_add_f32 v{V_CS}, v{V_CS}, v{168+ks}")
    return o

def epilogue():
    o=[]; A=lambda s:o.append(I(s))
    A("s_barrier")
    A("v_lshlrev_b32 v23, 2, v0"); o.append(DS(f"ds_write_b32 v23, v{V_CS}",("cw",))); o.append(WL(("cw",),"cw")); A("s_barrier")
    A(f"s_and_b32 s16, s{S_W}, 1"); A("s_lshl_b32 s16, s16, 7")
    A("v_lshrrev_b32 v23, 4, v1"); A("v_lshlrev_b32 v23, 4, v23"); A("v_add_u32 v23, s16, v23")
    for nb in range(4): o.append(DS(f"ds_read_b128 v[{168+4*nb}:{171+4*nb}], v23 offset:{(nb//2)*256+(nb%2)*64}",("cr",)))
    A("v_and_b32 v24, 15, v1"); A("v_lshlrev_b32 v24, 2, v24"); A("v_add_u32 v24, s16, v24")
    for h in range(2): o.append(DS(f"ds_read_b32 v{184+h}, v24 offset:{512+h*64}",("cr",)))
    A(f"s_and_b32 s16, s{S_W}, 1"); A(f"s_lshl_b32 s17, s{S_J}, 1"); A("s_add_u32 s16, s16, s17")
    A(f"s_lshr_b32 s17, s{S_W}, 1"); A("s_lshl_b32 s17, s17, 2"); A(f"s_lshl_b32 s18, s{S_MT}, 3"); A("s_add_u32 s17, s17, s18")
    A("s_lshl_b32 s16, s16, 7"); A("s_add_u32 s16, s16, s17"); A("s_lshl_b32 s16, s16, 10")
    A("v_lshlrev_b32 v23, 4, v1"); A("v_add_u32 v23, s16, v23")
    A(f"s_mov_b32 s17, {K_FO}"); A(f"s_mov_b32 s18, {VT_FO}"); A("s_mov_b32 s19, 0x3e8293ee")
    o.append(WL(("cr",),"cr"))
    k=0
    for sec in range(2):
        for mb in range(4):
            mu=V_SQ+2*mb; rs=mu+1
            if sec==0: A(f"v_mul_f32 v25, s19, v{rs}")
            tq=192+4*(k%2); k+=1
            for h in range(2):
                nb=2*sec+h; a=acc(nb,mb); c=168+4*nb
                for e in range(2):
                    A(f"v_pk_fma_f32 v[{a+2*e}:{a+2*e+1}], v[{c+2*e}:{c+2*e+1}], v[{mu}:{mu+1}], v[{a+2*e}:{a+2*e+1}] op_sel:[0,0,0] op_sel_hi:[1,0,1] neg_lo:[0,1,0] neg_hi:[0,1,0]")
                if sec==0:
                    for e in range(2): A(f"v_pk_mul_f32 v[{a+2*e}:{a+2*e+1}], v[{a+2*e}:{a+2*e+1}], v[24:25] op_sel:[0,1] op_sel_hi:[1,1]")
                else:
                    for e in range(2): A(f"v_pk_mul_f32 v[{a+2*e}:{a+2*e+1}], v[{a+2*e}:{a+2*e+1}], v[{mu}:{mu+1}] op_sel:[0,1] op_sel_hi:[1,1]")
                A(f"v_cvt_pk_bf16_f32 v{tq+2*h}, v{a}, v{a+1}"); A(f"v_cvt_pk_bf16_f32 v{tq+2*h+1}, v{a+2}, v{a+3}")
            so="0" if sec==0 else "s17"
            o.append(VM(f"buffer_store_dwordx4 v[{tq}:{tq+3}], v23, s[4:7], {so} offen offset:{mb*1024}",("ST",)))
    for gam in range(2):
        for db in range(2):
            tq=192+4*(k%2); k+=1
            for h in range(2):
                mb=2*gam+h; a=acc(4+db,mb); sv=V_SV+8*mb
                for r in range(4):
                    A(f"v_fma_f32 v{a+r}, -v{sv+2*r}, v{184+db}, v{a+r}"); A(f"v_mul_f32 v{a+r}, v{a+r}, v{sv+2*r+1}")
                A(f"v_cvt_pk_bf16_f32 v{tq+2*h}, v{a}, v{a+1}"); A(f"v_cvt_pk_bf16_f32 v{tq+2*h+1}, v{a+2}, v{a+3}")
            o.append(VM(f"buffer_store_dwordx4 v[{tq}:{tq+3}], v23, s[4:7], s18 offen offset:{(gam*2+db)*1024}",("ST",)))
    return o

def gen(name="p1_kernel", stamps=None):
    init=[I(f"v_mov_b32 v{ACC0+i}, 0") for i in range(96)]
    pro=setup()+load_stats()+fill()+init+reduce_cs()
    pro+=[WV(("D",0),"pd0"), I("s_barrier")]+[x_read(0,m) for m in range(4)]
    for nb in range(6): pro+=w_reads(0,nb)
    pro+=[I(f"s_mov_b32 s{S_CNT}, 16")]
    bodies=[body(i) for i in range(3)]
    simulate(pro+bodies[0]+bodies[1]+bodies[2])
    b=resolve(bodies)
    out=[khead(name)]
    if stamps: out.append(text(stamps[0](0)))
    out.append(text(pro))
    if stamps: out.append(text(stamps[0](1)))
    out.append(".p2align 6\nL1_loop:")
    out.append(text(b))
    out.append(f"    s_sub_u32 s{S_CNT}, s{S_CNT}, 1\n    s_cmp_lg_u32 s{S_CNT}, 0\n    s_cbranch_scc1 L1_loop")
    if stamps: out.append(text(stamps[0](2)))
    out.append("    s_waitcnt vmcnt(0) lgkmcnt(0)")
    e=epilogue(); simulate(e); out.append(text(e))
    if stamps:
        out.append("    s_waitcnt vmcnt(0)"); out.append(text(stamps[0](3))); out.append(text(stamps[1](4,"L1_st",1)))
    out.append("L1_done:\n    s_endpgm")
    return "\n".join(out), name

if __name__=="__main__":
    import p4
    code,name=gen(stamps=(p4.stamp,p4.stamp_flush))
    h=f"; @launch kernel={name} grid=(256,1,1) block=(256,1,1) lds={NST*STAGE}\n"
    s=h+'.amdgcn_target "amdgcn-amd-amdhsa--gfx950"\n.text\n'+code+'\n.section .rodata,"a"\n'+kd(name)+"\n"
    open("p1.s","w").write(s)
```

```python
from asmlib import *
from layout import *
import p0
S_W,S_MT,S_J=20,21,22
KA=0; VA=80; QA=160
def kfr(b): a=KA+4*b; return f"a[{a}:{a+3}]"
def vfr(gam,db): a=VA+4*(2*gam+db); return f"a[{a}:{a+3}]"
def qfr(i): a=QA+4*i; return f"a[{a}:{a+3}]"
V_SR=32
V_P=48
V_ZP=56
V_O=64
V_CG=80
V_MF=96
V_ML=100
V_CM=104
V_NM=120
V_MFM=124; V_MLM=128
V_ONE=132
V_M=136
def q4(a): return f"v[{a}:{a+3}]"
NEG="0xf149f2ca"

def cop1(i,b):
    if b==i: return q4(V_MF)
    if b==i+16: return q4(V_ML)
    if b<16: return q4(V_CG+4*(b//4))
    return "0"
def cop2(i,b):
    if b==i: return q4(V_MFM)
    if b==i+16: return q4(V_MLM)
    if b<16: return q4(V_CM+4*(b//4))
    return q4(V_NM)

def loads():
    o=[]; A=lambda s:o.append(I(s))
    A(f"s_and_b32 s16, s{S_W}, 1"); A(f"s_lshl_b32 s17, s{S_J}, 1"); A("s_add_u32 s16, s16, s17")
    A(f"s_lshr_b32 s17, s{S_W}, 1"); A("s_lshl_b32 s17, s17, 2"); A(f"s_lshl_b32 s18, s{S_MT}, 3"); A("s_add_u32 s23, s17, s18")
    A("s_mov_b32 s24, s16")
    A("s_lshl_b32 s16, s16, 7"); A("s_add_u32 s16, s16, s23"); A("s_lshl_b32 s16, s16, 10")
    A("v_lshlrev_b32 v2, 4, v1")
    A(f"s_add_u32 s17, s16, {Q_FO}")
    for i in range(4): o.append(VM(f"buffer_load_dwordx4 {qfr(i)}, v2, s[4:7], s17 offen offset:{i*1024}",("Q",i)))
    for (base,fr,tag) in ((K_FO,"k","K"),(VT_FO,"v","V")):
        for q in range(5):
            A(f"s_add_u32 s17, s16, {base}"); A(f"s_add_i32 s17, s17, {(4*q-16)*1024}")
            if q<4:
                A(f"s_cmp_ge_i32 s23, {16-4*q}"); A("s_cselect_b32 s17, s17, 0x10000000")
            for e in range(4):
                reg = kfr(4*q+e) if fr=="k" else vfr(2*q+e//2,e%2)
                o.append(VM(f"buffer_load_dwordx4 {reg}, v2, s[4:7], s17 offen offset:{e*1024}",(tag,q)))
    return o

def consts():
    o=[]; A=lambda s:o.append(I(s))
    for q in range(4):
        A(f"s_cmp_ge_i32 s23, {16-4*q}"); A(f"s_cselect_b32 s17, 0, {NEG}")
        for r in range(4): A(f"v_mov_b32 v{V_CG+4*q+r}, s17")
    A("v_and_b32 v3, 15, v1"); A("v_lshrrev_b32 v4, 4, v1"); A("v_lshlrev_b32 v4, 2, v4"); A(f"v_mov_b32 v5, {NEG}")
    for r in range(4):
        A(f"v_add_u32 v6, {r}, v4"); A("v_cmp_gt_u32 vcc, v6, v3"); A("s_nop 1")
        A(f"v_cndmask_b32 v{V_MF+r}, v5, v{V_CG+r}, vcc"); A(f"v_cndmask_b32 v{V_ML+r}, 0, v5, vcc")
    for r in range(4): A(f"v_mov_b32 v{V_ONE+r}, 0x3f803f80")
    return o

def qblock(i):
    o=[]; A=lambda s:o.append(I(s))
    blocks=list(range(i,i+17))
    def ring(n): return V_SR+4*(n%4)
    A(f"v_mov_b32 v{V_M}, {NEG}")
    if i==0: o.append(WV(("Q",3),("q",)))
    for n,b in enumerate(blocks):
        if i==0 or b==i+16:
            o.append(WV(("K",b//4),("k",i,b)))
        A(f"v_mfma_f32_16x16x32_bf16 {q4(ring(n))}, {kfr(b)}, {qfr(i)}, {cop1(i,b)}")
        if n>=3:
            s=ring(n-3)
            A(f"v_max3_f32 v{V_M}, v{V_M}, v{s}, v{s+1}"); A(f"v_max3_f32 v{V_M}, v{V_M}, v{s+2}, v{s+3}")
        elif n<3:
            A("s_nop 1")
    for n in range(14,17):
        if n==14: A("s_nop 1")
        if n==16: A("s_nop 2")
        s=ring(n)
        A(f"v_max3_f32 v{V_M}, v{V_M}, v{s}, v{s+1}"); A(f"v_max3_f32 v{V_M}, v{V_M}, v{s+2}, v{s+3}")
    for sw in ("v_permlane16_swap_b32","v_permlane32_swap_b32"):
        A(f"v_mov_b32 v{V_M+1}, v{V_M}"); A("s_nop 1"); A(f"{sw} v{V_M}, v{V_M+1}"); A("s_nop 1"); A(f"v_max_f32 v{V_M}, v{V_M}, v{V_M+1}")
    for r in range(4): A(f"v_sub_f32 v{V_NM+r}, 0, v{V_M}")
    for r in range(4): A(f"v_sub_f32 v{V_MFM+r}, v{V_MF+r}, v{V_M}")
    for q in range(4):
        for r in range(4): A(f"v_sub_f32 v{V_CM+4*q+r}, v{V_CG+4*q+r}, v{V_M}")
    for r in range(4): A(f"v_sub_f32 v{V_MLM+r}, v{V_ML+r}, v{V_M}")
    par=i%2
    pend=None
    first=True
    def S(n): A(f"v_mfma_f32_16x16x32_bf16 {q4(ring(n))}, {kfr(blocks[n])}, {qfr(i)}, {cop2(i,blocks[n])}")
    def PV(gam,ps):
        nonlocal first
        p=q4(V_P+4*ps)
        if i==0 or gam>=8+ (i//2): o.append(WV(("V",gam//2),("v",i,gam)))
        for db in range(2):
            c="0" if first else q4(V_O+4*db)
            A(f"v_mfma_f32_16x16x32_bf16 {q4(V_O+4*db)}, {vfr(gam,db)}, {p}, {c}")
        c="0" if first else q4(V_O+8)
        A(f"v_mfma_f32_16x16x32_bf16 {q4(V_O+8)}, {q4(V_ONE)}, {p}, {c}")
        first=False
    S(0); S(1)
    A("s_nop 3")
    if par==1:
        A(f"v_mov_b32 v{V_P+4*0}, 0"); A(f"v_mov_b32 v{V_P+4*0+1}, 0")
    else:
        A("s_nop 1")
    A("s_nop 1")
    for n,b in enumerate(blocks):
        gam=b//2; half=b%2; ps=(gam-i//2)%2
        if n+2<17: S(n+2)
        else: A("s_nop 0")
        s=ring(n)
        A(f"v_exp_f32 v{s}, v{s}"); A(f"v_exp_f32 v{s+1}, v{s+1}")
        if pend is not None:
            PV(*pend); pend=None
        A(f"v_exp_f32 v{s+2}, v{s+2}"); A(f"v_exp_f32 v{s+3}, v{s+3}")
        p=V_P+4*ps+2*half
        A(f"v_cvt_pk_bf16_f32 v{p}, v{s}, v{s+1}"); A(f"v_cvt_pk_bf16_f32 v{p+1}, v{s+2}, v{s+3}")
        if n==16 and half==0:
            A(f"v_mov_b32 v{p+2}, 0"); A(f"v_mov_b32 v{p+3}, 0")
        if half==1 or n==16: pend=(gam,ps)
    A("s_nop 1")
    PV(*pend)
    A("s_nop 7")
    A(f"v_rcp_f32 v{V_M}, v{V_O+8}"); A("s_nop 0")
    for db in range(2):
        for r in range(4): A(f"v_mul_f32 v{V_O+4*db+r}, v{V_O+4*db+r}, v{V_M}")
    T=60+0
    tq=V_P
    tq=76
    for db in range(2):
        A(f"v_cvt_pk_bf16_f32 v{tq+2*db}, v{V_O+4*db}, v{V_O+4*db+1}"); A(f"v_cvt_pk_bf16_f32 v{tq+2*db+1}, v{V_O+4*db+2}, v{V_O+4*db+3}")
    o.append(VM(f"buffer_store_dwordx4 {q4(tq)}, v7, s[4:7], s25 offen",("ST",)))
    A("s_add_u32 s25, s25, 32768")
    A("s_nop 0")
    return o

def gen(name="p2_kernel", stamps=None):
    o=[]; A=lambda s:o.append(I(s))
    A("s_cmp_ge_u32 s2, 256"); A("s_cbranch_scc1 L2_done")
    A(f"s_load_dwordx2 s[4:5], s[0:1], {D_WS}")
    o+=p0.ids_p1()
    A("s_waitcnt lgkmcnt(0)"); A("s_mov_b32 s6, 0x10000000"); A("s_mov_b32 s7, 0x20000")
    o+=loads(); o+=consts()
    A("s_lshl_b32 s25, s23, 5"); A("s_add_u32 s25, s25, s24"); A("s_lshl_b32 s25, s25, 10"); A(f"s_add_u32 s25, s25, {O_FO}")
    A("v_lshlrev_b32 v7, 4, v1")
    mid=[]
    for i in range(4): mid+=qblock(i)
    simulate(o+mid)
    out=[khead(name)]
    if stamps: out.append(text(stamps[0](0)))
    out.append(text(o))
    if stamps: out.append(text(stamps[0](1)))
    out.append(text(mid))
    if stamps:
        out.append(text(stamps[0](2)))
        out.append("    s_waitcnt vmcnt(0)"); out.append(text(stamps[0](3))); out.append(text(stamps[1](4,"L2_st",2)))
    out.append("L2_done:\n    s_endpgm")
    return "\n".join(out), name

if __name__=="__main__":
    import p4
    code,name=gen(stamps=(p4.stamp,p4.stamp_flush))
    h=f"; @launch kernel={name} grid=(256,1,1) block=(256,1,1) lds=0\n"
    s=h+'.amdgcn_target "amdgcn-amd-amdhsa--gfx950"\n.text\n'+code+'\n.section .rodata,"a"\n'+kd(name)+"\n"
    open("p2.s","w").write(s)
```

```python
from asmlib import *
from layout import *

ACC0=32
def acc(nb,mb): return ACC0+(nb*4+mb)*4
def accr(nb,mb): a=acc(nb,mb); return f"v[{a}:{a+3}]"
XA0=0
WA0=64
def xr(setn,mb): a=XA0+setn*16+mb*4; return f"a[{a}:{a+3}]"
def wslot(f): return WA0+(f%7)*4
STAGE=28672
NST=4
CSL=NST*STAGE
S_W,S_NT,S_M8,S_XO,S_WO,S_WR,S_RD,S_CNT=20,21,22,24,25,26,27,28
V_DSL,V_DS=2,3
V_WO=6
V_XO=13
V_MU=15
V_R2=19

def x_load(n,mb):
    return VM(f"buffer_load_dwordx4 {xr(n%4,mb)}, v{V_XO+mb}, s[4:7], s{S_XO} offen", ("X",n))
def dma(t,i):
    return [I(f"s_add_u32 m0, s{S_WR}, {i*1024}"), VM(f"buffer_load_dwordx4 v{V_WO+i}, s[8:11], s{S_WO} offen lds", ("D",t))]
def w_reads(step,f):
    s=step%2; nb=f%7; up=f//7
    a=wslot(f)
    o=up*14336+(32*s)*224+nb*32
    return [DS(f"ds_read_b64_tr_b16 a[{a}:{a+1}], v{V_DS} offset:{o}",("W",step,f)),
            DS(f"ds_read_b64_tr_b16 a[{a+2}:{a+3}], v{V_DS} offset:{o+16*224}",("W",step,f))]
D=5

def step_ops(n):
    t=n//2; s=n%2
    mf=[]; gaps={}
    def put(idx,ops): gaps.setdefault(idx,[]).extend(ops)
    for f in range(14):
        nb=f
        order=range(4) if f%2==0 else range(3,-1,-1)
        base=len(mf)
        a=wslot(f)
        for mb in order:
            mf.append(I(f"v_mfma_f32_16x16x32_bf16 {accr(nb,mb)}, a[{a}:{a+3}], {xr(n%4,mb)}, {accr(nb,mb)}"))
        pre=[WL(("W",n,f),("wl",s,f))]
        if f==0: pre=[WV(("X",n),("wx",s))]+pre
        put(base,pre)
        fa=f+D; na=n
        if fa>=14: fa-=14; na=n+1
        rd=w_reads(na,fa)
        extra=[]
        if na!=n and s==1 and fa==0:
            extra=[WV(("D",t+1),("wd",)), I("s_barrier"), I(f"v_add_u32 v{V_DS}, s{S_RD}, v{V_DSL}")]
        if extra:
            put(base+1,extra); put(base+2,[rd[0]]); put(base+3,[rd[1]])
        else:
            put(base+1,[rd[0]]); put(base+2,[rd[1]])
    for mb in range(4):
        put(4*(1+mb)+3,[x_load(n+3,mb)])
    put(4*5+3,[I(f"s_add_u32 s{S_XO}, s{S_XO}, 1024")])
    put(4*6+3,[I(f"s_cmp_ge_u32 s{S_XO}, {32*1024}")])
    put(4*7+0,[I(f"s_cselect_b32 s{S_XO}, 0x10000000, s{S_XO}")])
    if s==1:
        for j,g in enumerate([10,11,12,13]):
            d=dma(t+3,j); put(4*g+0,[d[0]]); put(4*g+3,[d[1]])
    else:
        for j,g in enumerate([6,7,8]):
            d=dma(t+2,4+j); put(4*g+0,[d[0]]); put(4*g+3,[d[1]])
        put(4*9+3,[I(f"s_add_u32 s{S_WO}, s{S_WO}, {64*7168}")])
        put(4*10+3,[I(f"s_add_u32 s{S_WR}, s{S_WR}, {STAGE}")])
        put(4*11+0,[I(f"s_cmp_ge_u32 s{S_WR}, s{S_CNT+1}")])
        put(4*11+3,[I(f"s_cselect_b32 s{S_CNT+2}, {NST*STAGE}, 0")])
        put(4*12+0,[I(f"s_sub_u32 s{S_WR}, s{S_WR}, s{S_CNT+2}")])
        put(4*12+3,[I(f"s_add_u32 s{S_RD}, s{S_RD}, {STAGE}")])
        put(4*13+0,[I(f"s_cmp_ge_u32 s{S_RD}, {NST*STAGE}")])
        put(4*13+3,[I(f"s_cselect_b32 s{S_RD}, 0, s{S_RD}")])
    return weave(mf,gaps)

def body(it):
    ops=[]
    for n in range(4*it,4*it+4): ops+=step_ops(n)
    return ops

def prologue():
    o=[]; A=lambda s:o.append(I(s))
    A("s_cmp_ge_u32 s2, 256"); A("s_cbranch_scc1 L4_done")
    A(f"s_load_dwordx2 s[4:5], s[0:1], {D_WS}")
    A(f"s_load_dwordx4 s[12:15], s[0:1], {B_WG}")
    A("v_and_b32 v1, 63, v0"); A("v_lshrrev_b32 v23, 6, v0")
    A("s_and_b32 s3, s2, 7"); A("s_lshl_b32 s3, s3, 2"); A("s_lshr_b32 s16, s2, 3"); A("s_and_b32 s16, s16, 3")
    A(f"v_readfirstlane_b32 s{S_W}, v23")
    A(f"s_add_u32 s{S_NT}, s3, s16"); A(f"s_lshr_b32 s{S_M8}, s2, 5")
    A(f"s_and_b32 s16, s{S_W}, 1"); A("s_mul_i32 s16, s16, 448"); A("s_movk_i32 s17, 4682"); A("s_movk_i32 s18, 7168")
    for i in range(7):
        A(f"v_add_u32 v23, s16, v1");
        if i: A(f"v_add_u32 v23, {64*i}, v23")
        A("v_mul_lo_u32 v24, v23, s17"); A("v_lshrrev_b32 v24, 16, v24")
        A("v_mul_u32_u24 v25, 14, v24"); A("v_sub_u32 v25, v23, v25"); A("v_lshlrev_b32 v25, 4, v25")
        A(f"v_mul_lo_u32 v24, v24, s18"); A(f"v_add_u32 v{V_WO+i}, v24, v25")
    A("v_lshrrev_b32 v23, 2, v1"); A("v_mul_u32_u24 v23, 224, v23"); A("v_and_b32 v24, 3, v1"); A("v_lshlrev_b32 v24, 3, v24")
    A(f"v_add_u32 v{V_DSL}, v23, v24"); A(f"v_mov_b32 v{V_DS}, v{V_DSL}")
    A(f"s_lshl_b32 s16, s{S_M8}, 2"); A(f"s_add_u32 s16, s16, s{S_W}"); A("s_lshl_b32 s16, s16, 17")
    A(f"s_add_u32 s17, s16, {H_FO}"); A("v_lshlrev_b32 v23, 4, v1")
    for mb in range(4):
        A(f"v_add_u32 v{V_XO+mb}, s17, v23")
        if mb<3: A(f"s_add_u32 s17, s17, 32768")
    A("s_waitcnt lgkmcnt(0)")
    A("s_mov_b32 s6, 0x10000000"); A("s_mov_b32 s7, 0x20000")
    A(f"s_cmp_ge_u32 s{S_W}, 2"); A("s_cselect_b32 s8, s14, s12"); A("s_cselect_b32 s9, s15, s13")
    A(f"s_mul_i32 s16, s{S_NT}, 224"); A("s_add_u32 s8, s8, s16"); A("s_addc_u32 s9, s9, 0")
    A(f"s_sub_u32 s10, {1024*7168}, s16"); A("s_mov_b32 s11, 0x20000")
    A(f"s_mul_i32 s16, s{S_NT}, 448"); A(f"s_add_u32 s16, s16, {CS_GU}")
    A("v_lshlrev_b32 v23, 2, v0"); A(f"v_add_u32 v24, {(3584-112)*4}, v23")
    A("v_cmp_gt_u32 vcc, 112, v0"); A("s_nop 1"); A("v_cndmask_b32 v23, v24, v23, vcc")
    A("v_add_u32 v23, s16, v23"); A("v_mov_b32 v24, 0x10000000")
    A("v_cmp_gt_u32 vcc, 224, v0"); A("s_nop 1"); A("v_cndmask_b32 v23, v24, v23, vcc")
    for ks in range(8):
        A(f"s_mov_b32 s17, {ks*7168*4}")
        o.append(VM(f"buffer_load_dword v{96+ks}, v23, s[4:7], s17 offen",("C",)))
    A(f"s_lshl_b32 s16, s{S_M8}, 2"); A(f"s_add_u32 s16, s16, s{S_W}"); A("s_lshl_b32 s16, s16, 13")
    A(f"s_add_u32 s16, s16, {STATS2}")
    A("v_and_b32 v23, 15, v1"); A("v_lshlrev_b32 v23, 3, v23"); A("v_lshrrev_b32 v24, 4, v1"); A("v_lshlrev_b32 v24, 9, v24")
    A("v_add_u32 v23, v23, v24"); A("v_add_u32 v23, s16, v23")
    for mb in range(4):
        A(f"s_mov_b32 s17, {mb*2048}")
        for i in range(4):
            r=112+(mb*4+i)*2
            o.append(VM(f"buffer_load_dwordx2 v[{r}:{r+1}], v23, s[4:7], s17 offen offset:{i*128}",("S",)))
    A(f"s_mul_i32 s{S_WR}, s{S_W}, 7168"); A(f"s_add_u32 s{S_CNT+1}, s{S_WR}, {NST*STAGE}")
    A(f"s_mov_b32 s{S_WO}, 0"); A(f"s_mov_b32 s{S_XO}, 0")
    for t in range(3):
        nd = 7 if t<2 else 4
        for i in range(nd):
            d=dma(t,i); o.extend([d[0],I("s_nop 0"),d[1]])
        if t<2:
            A(f"s_add_u32 s{S_WO}, s{S_WO}, {64*7168}"); A(f"s_add_u32 s{S_WR}, s{S_WR}, {STAGE}")
        for mb in range(4): o.append(x_load(t,mb))
        A(f"s_add_u32 s{S_XO}, s{S_XO}, 1024")
    A(f"s_mov_b32 s{S_RD}, 0")
    o.append(WV(("C",),"pc"))
    for ks in range(1,8): A(f"v_add_f32 v96, v96, v{96+ks}")
    A("v_lshlrev_b32 v24, 2, v0"); A(f"v_add_u32 v24, {CSL}, v24")
    o.append(DS(f"ds_write_b32 v24, v96",("CW",)))
    o.append(WV(("S",),"ps"))
    for mb in range(4):
        r=112+mb*8
        A(f"v_pk_add_f32 v[{r}:{r+1}], v[{r}:{r+1}], v[{r+2}:{r+3}]"); A(f"v_pk_add_f32 v[{r+4}:{r+5}], v[{r+4}:{r+5}], v[{r+6}:{r+7}]")
        A(f"v_pk_add_f32 v[{r}:{r+1}], v[{r}:{r+1}], v[{r+4}:{r+5}]")
    for sw in ("v_permlane16_swap_b32","v_permlane32_swap_b32"):
        for mb in range(4):
            r=112+mb*8
            A(f"v_mov_b32 v{r+2}, v{r}"); A(f"v_mov_b32 v{r+3}, v{r+1}")
        A("s_nop 1")
        for mb in range(4):
            r=112+mb*8
            A(f"{sw} v{r}, v{r+2}"); A(f"{sw} v{r+1}, v{r+3}")
        A("s_nop 1")
        for mb in range(4):
            r=112+mb*8
            A(f"v_pk_add_f32 v[{r}:{r+1}], v[{r}:{r+1}], v[{r+2}:{r+3}]")
    A("s_mov_b32 s16, 0x3a800000")
    A("s_mov_b32 s17, 0x3727c5ac")
    for mb in range(4):
        r=112+mb*8
        A(f"v_mul_f32 v{r}, s16, v{r}"); A(f"v_mul_f32 v{r+1}, s16, v{r+1}")
        A(f"v_fma_f32 v{r+1}, -v{r}, v{r}, v{r+1}"); A(f"v_add_f32 v{r+1}, s17, v{r+1}")
        A(f"v_rcp_f32 v{V_R2+mb}, v{r+1}")
        A(f"v_sub_f32 v{V_MU+mb}, 0, v{r}")
    o.append(WL(("CW",),"pcw")); A("s_barrier")
    A("v_lshrrev_b32 v23, 4, v1"); A("v_lshlrev_b32 v23, 4, v23"); A(f"v_add_u32 v23, {CSL}, v23")
    for f in range(14):
        up=f//7; nb=f%7
        o.append(DS(f"ds_read_b128 {accr(f,0)}, v23 offset:{up*448+nb*64}",("CR",f)))
    for f in range(14):
        o.append(WL(("CR",f),("pcr",f)))
        a0=acc(f,0)
        for mb in (3,2,1,0):
            a=acc(f,mb); m=V_MU+mb
            mp = m & ~1; hi = m & 1
            for h in range(2):
                A(f"v_pk_mul_f32 v[{a+2*h}:{a+2*h+1}], v[{a0+2*h}:{a0+2*h+1}], v[{mp}:{mp+1}] op_sel:[0,{hi}] op_sel_hi:[1,{hi}]")
    o.append(WV(("D",0),"pd0")); A("s_barrier")
    for f in range(D): o.extend(w_reads(0,f))
    A(f"s_mov_b32 s{S_CNT}, 8")
    return o

def epilogue(parity):
    o=[]; A=lambda s:o.append(I(s))
    if parity==0: pairs=[(0,1,0),(2,3,1),(4,5,2),(6,None,3)]
    else: pairs=[(None,0,0),(1,2,1),(3,4,2),(5,6,3)]
    T=24
    k=0
    for mb in range(4):
        m=V_R2+mb; mp=m&~1; hi=m&1
        for (ba,bb,go) in pairs:
            tq=T+4*(k%2); k+=1
            for j,b in enumerate((ba,bb)):
                if b is None: continue
                g=acc(b,mb); u=acc(b+7,mb)
                for h in range(2):
                    A(f"v_pk_mul_f32 v[{g+2*h}:{g+2*h+1}], v[{g+2*h}:{g+2*h+1}], v[{u+2*h}:{u+2*h+1}]")
                for h in range(2):
                    A(f"v_pk_mul_f32 v[{g+2*h}:{g+2*h+1}], v[{g+2*h}:{g+2*h+1}], v[{mp}:{mp+1}] op_sel:[0,{hi}] op_sel_hi:[1,{hi}]")
                A(f"v_cvt_pk_bf16_f32 v{tq+2*j}, v{g}, v{g+1}"); A(f"v_cvt_pk_bf16_f32 v{tq+2*j+1}, v{g+2}, v{g+3}")
            if ba is not None and bb is not None:
                o.append(VM(f"buffer_store_dwordx4 v[{tq}:{tq+3}], v{V_XO+mb}, s[4:7], 0 offen offset:{go*1024}",("ST",)))
            elif bb is None:
                o.append(VM(f"buffer_store_dwordx2 v[{tq}:{tq+1}], v{V_XO+mb}, s[4:7], 0 offen offset:{go*1024}",("ST",)))
            else:
                o.append(VM(f"buffer_store_dwordx2 v[{tq+2}:{tq+3}], v{V_XO+mb}, s[4:7], 0 offen offset:{go*1024+8}",("ST",)))
            A("s_nop 0")
    return o

def stamp(idx):
    o=[]; A=lambda s:o.append(I(s))
    A(f"s_memrealtime s[{40+4*idx}:{41+4*idx}]")
    A(f"s_memtime s[{42+4*idx}:{43+4*idx}]")
    return o
def stamp_flush(n, lbl, slot):
    o=[]; A=lambda s:o.append(I(s))
    A("s_waitcnt lgkmcnt(0)")
    A(f"s_lshl_b32 s3, s2, 6"); A(f"s_add_u32 s3, s3, {TSTAMP+slot*16384}"); A("v_mov_b32 v23, s3")
    A("v_cmp_eq_u32 vcc, 0, v0"); A("s_and_saveexec_b64 s[36:37], vcc"); A(f"s_cbranch_execz {lbl}")
    for i in range(n):
        A(f"v_mov_b32 v24, s{40+4*i}"); A(f"buffer_store_dword v24, v23, s[4:7], 0 offen offset:{4*i}")
        A(f"v_mov_b32 v25, s{42+4*i}"); A(f"buffer_store_dword v25, v23, s[4:7], 0 offen offset:{32+4*i}")
    o.append(RAW(f"{lbl}:")); A("s_mov_b64 exec, s[36:37]")
    return o

def gen(name="p4_kernel", stamps=False, drop=()):
    pro=prologue()
    bodies=[body(i) for i in range(3)]
    simulate(pro+bodies[0]+bodies[1]+bodies[2])
    b=resolve(bodies)
    if drop:
        def keep(op):
            t=render(op) or ""
            if "ds" in drop and (t.startswith("ds_read") or "lgkmcnt" in t): return False
            if "x" in drop and t.startswith("buffer_load_dwordx4 a["): return False
            if "dma" in drop and " lds" in t: return False
            if ("x" in drop or "dma" in drop) and "vmcnt" in t: return False
            if "bar" in drop and t.startswith("s_barrier"): return False
            return True
        b=[op for op in b if keep(op)]
    out=[khead(name)]
    if stamps: out.append(text(stamp(0)))
    out.append(text(pro))
    if stamps: out.append(text(stamp(1)))
    out.append(".p2align 6\nL4_loop:")
    out.append(text(b))
    out.append(f"    s_sub_u32 s{S_CNT}, s{S_CNT}, 1\n    s_cmp_lg_u32 s{S_CNT}, 0\n    s_cbranch_scc1 L4_loop")
    if stamps: out.append(text(stamp(2)))
    e=[]; A=lambda s:e.append(I(s))
    A("s_waitcnt vmcnt(0) lgkmcnt(0)")
    A(f"s_lshl_b32 s16, s{S_M8}, 4"); A(f"s_lshl_b32 s17, s{S_W}, 2"); A("s_add_u32 s16, s16, s17")
    A("s_mul_i32 s16, s16, 112"); A(f"s_mul_i32 s17, s{S_NT}, 7"); A("s_lshr_b32 s17, s17, 1"); A("s_add_u32 s16, s16, s17")
    A("s_lshl_b32 s16, s16, 10"); A(f"s_add_u32 s16, s16, {ACT_FO}")
    A("v_lshlrev_b32 v23, 4, v1")
    for mb in range(4):
        A(f"v_add_u32 v{V_XO+mb}, s16, v23"); A(f"s_add_u32 s16, s16, {112*1024}")
    A(f"s_and_b32 s17, s{S_NT}, 1"); A("s_cmp_eq_u32 s17, 1"); A("s_cbranch_scc1 L4_epi1")
    out.append(text(e))
    out.append(text(epilogue(0))); out.append("    s_branch L4_fin")
    out.append("L4_epi1:"); out.append(text(epilogue(1)))
    out.append("L4_fin:")
    if stamps:
        out.append("    s_waitcnt vmcnt(0)"); out.append(text(stamp(3))); out.append(text(stamp_flush(4,"L4_st",4)))
    out.append("L4_done:\n    s_endpgm")
    return "\n".join(out)

if __name__=="__main__":
    import sys
    for nm,xf,wf in [("p4","",""),("p4_a","nt","nt"),("p4_b","sc1","sc1"),("p4_c","sc0 sc1","sc0 sc1"),("p4_d","sc1 nt","sc1 nt"),("p4_e","sc0","sc0"),("p4_f","nt",""),("p4_g","","nt")]:
        h="; @launch kernel=p4_kernel grid=(256,1,1) block=(256,1,1) lds=%d\n"%(CSL+1024)
        s=h+'.amdgcn_target "amdgcn-amd-amdhsa--gfx950"\n.text\n'+gen(stamps=True)+'\n.section .rodata,"a"\n'+kd("p4_kernel")+"\n"
        import re
        s=re.sub(r"(buffer_load_dwordx4 a\[\d+:\d+\], v\d+, s\[4:7\], s24 offen)", lambda m:m.group(1)+" "+xf, s)
        s=re.sub(r"(s25 offen) lds", lambda m:m.group(1)+" "+wf+" lds", s)
        open(nm+".s","w").write(s)
```

```python
from asmlib import *
from layout import *

ACC0=32
def acc(nb,mb): return ACC0+(nb*2+mb)*4
def accr(nb,mb): a=acc(nb,mb); return f"v[{a}:{a+3}]"
XA0=0
WA0=128
def xr(n,mb): a=XA0+(n%16)*8+mb*4; return f"a[{a}:{a+3}]"
def wr_(n,nb): return WA0+(n%4)*16+nb*4
STAGE=32768; NST=4
TBUF=NST*STAGE
S_W,S_NT,S_MT,S_XO,S_WO,S_WR,S_CNT,S_XEND=20,21,22,24,25,26,28,29
V_DS=2
V_WO=6
V_XO=14
XD=14

def x_load(n,mb,L):
    return VM(f"buffer_load_dwordx4 {xr(n,mb)}, v{V_XO+mb}, s[4:7], s{S_XO} offen", ("X",n))
def dma(t,i):
    o=[]
    if i%4==0: o.append(I(f"s_add_u32 m0, s{S_WR}, {(i//4)*4096}"))
    o.append(VM(f"buffer_load_dwordx4 v{V_WO+i}, s[8:11], s{S_WO} offen offset:{(i%4)*1024} lds", ("D",t)))
    return o
def w_reads(n,nb):
    a=wr_(n,nb); t=n//8
    o=(t%2)*STAGE+(n%8)*4096
    return [DS(f"ds_read_b64_tr_b16 a[{a}:{a+1}], v{V_DS+nb} offset:{o}",("W",n)),
            DS(f"ds_read_b64_tr_b16 a[{a+2}:{a+3}], v{V_DS+nb} offset:{o+2048}",("W",n))]

def step_ops(n,L):
    t=n//8; s=n%8
    mf=[]; gaps={}
    def put(idx,ops): gaps.setdefault(idx,[]).extend(ops)
    for nb in range(4):
        a=wr_(n,nb)
        for mb in ((0,1) if nb%2==0 else (1,0)):
            mf.append(I(f"v_mfma_f32_16x16x32_bf16 {accr(nb,mb)}, a[{a}:{a+3}], {xr(n,mb)}, {accr(nb,mb)}"))
    put(0,[WV(("X",n),("wx",n%16)), WL(("W",n),("wl",n%16))])
    na=n+2
    pre=[]
    if na%8==0:
        pre=[WV(("D",na//8),("wd",n%16)), I("s_barrier")]
        if (na//8)%2==0:
            pre+= [I(f"v_xor_b32 v{V_DS+u}, {2*STAGE}, v{V_DS+u}") for u in range(4)]
    put(1,pre)
    for nb in range(4):
        r=w_reads(na,nb)
        put(1+2*nb,[r[0]]); put(2+2*nb,[r[1]])
    put(2,[x_load(n+XD,0,L)]); put(5,[x_load(n+XD,1,L)])
    put(6,[I(f"s_add_u32 s{S_XO}, s{S_XO}, 1024")])
    put(7,[I(f"s_cmp_ge_u32 s{S_XO}, s{S_XEND}")])
    put(8,[I(f"s_cselect_b32 s{S_XO}, 0x10000000, s{S_XO}")])
    if s>=6: td,i=t+3,s-6
    else: td,i=t+2,s+2
    d=dma(td,i)
    if len(d)==2: put(3,[d[0]]); put(4,[d[1]])
    else: put(4,[d[0]])
    if s==5:
        put(5,[I(f"s_add_u32 s{S_WO}, s{S_WO}, {256*2048}")])
        put(6,[I(f"s_add_u32 s{S_WR}, s{S_WR}, {STAGE}")])
        put(8,[I(f"s_and_b32 s{S_WR}, s{S_WR}, {NST*STAGE-1}")])
    return weave(mf,gaps)

def body(it,L):
    ops=[]
    for n in range(16*it,16*it+16): ops+=step_ops(n,L)
    return ops

def setup(L,wptr,xbase,xstride):
    o=[]; A=lambda s:o.append(I(s))
    A("s_cmp_ge_u32 s2, 256"); A(f"s_cbranch_scc1 {L}_done")
    A(f"s_load_dwordx2 s[4:5], s[0:1], {D_WS}")
    A(f"s_load_dwordx2 s[8:9], s[0:1], {wptr}")
    if L=="L3": A(f"s_load_dwordx2 s[12:13], s[0:1], {A_X}")
    else: A(f"s_load_dwordx2 s[12:13], s[0:1], {D_OUT}")
    A("v_and_b32 v1, 63, v0"); A("v_lshrrev_b32 v23, 6, v0")
    A("s_and_b32 s3, s2, 7"); A("s_lshr_b32 s16, s2, 3")
    A("s_lshr_b32 s17, s3, 1"); A("s_lshl_b32 s17, s17, 2"); A("s_and_b32 s18, s16, 3"); A(f"s_add_u32 s{S_MT}, s17, s18")
    A(f"v_readfirstlane_b32 s{S_W}, v23")
    A("s_and_b32 s17, s3, 1"); A("s_lshl_b32 s17, s17, 3"); A("s_lshr_b32 s18, s16, 2"); A(f"s_add_u32 s{S_NT}, s17, s18")
    A("v_lshrrev_b32 v23, 3, v1"); A("v_lshlrev_b32 v23, 11, v23")
    A("v_bfe_u32 v24, v1, 1, 2"); A("v_lshrrev_b32 v25, 4, v1"); A("v_xor_b32 v24, v24, v25"); A("v_lshlrev_b32 v24, 5, v24")
    A("v_and_b32 v25, 1, v1"); A("v_lshlrev_b32 v25, 4, v25"); A("v_add3_u32 v23, v23, v24, v25")
    A(f"s_lshl_b32 s16, s{S_W}, 17")
    A(f"v_add_u32 v{V_WO}, s16, v23")
    for i in range(1,8): A(f"v_add_u32 v{V_WO+i}, {i*16384-(i%4)*1024}, v{V_WO}")
    A("v_lshrrev_b32 v23, 2, v1"); A("v_lshlrev_b32 v24, 7, v23"); A("v_and_b32 v25, 3, v1"); A("v_lshlrev_b32 v25, 3, v25"); A("v_add_u32 v24, v24, v25")
    A("v_bfe_u32 v23, v1, 3, 2")
    for u in range(4):
        A(f"v_xor_b32 v25, {u}, v23"); A("v_lshlrev_b32 v25, 5, v25"); A(f"v_add_u32 v{V_DS+u}, v24, v25")
    A(f"s_lshl_b32 s16, s{S_MT}, 2"); A(f"s_add_u32 s16, s16, s{S_W}"); A(f"s_mul_i32 s16, s16, {2*xstride}"); A(f"s_add_u32 s16, s16, {xbase}")
    A("v_lshlrev_b32 v23, 4, v1"); A(f"v_add_u32 v{V_XO}, s16, v23"); A(f"v_add_u32 v{V_XO+1}, {xstride}, v{V_XO}")
    A("s_waitcnt lgkmcnt(0)")
    A("s_mov_b32 s6, 0x10000000"); A("s_mov_b32 s7, 0x20000")
    A(f"s_lshl_b32 s16, s{S_NT}, 7"); A("s_add_u32 s8, s8, s16"); A("s_addc_u32 s9, s9, 0")
    krows = 1024 if L=="L3" else 3584
    A(f"s_sub_u32 s10, {krows*2048}, s16"); A("s_mov_b32 s11, 0x20000")
    A("s_mov_b32 s14, 0x400000"); A("s_mov_b32 s15, 0x20000")
    A(f"s_mov_b32 s{S_XEND}, {xstride}")
    return o

def fill(L):
    o=[]; A=lambda s:o.append(I(s))
    A(f"s_lshl_b32 s{S_WR}, s{S_W}, 13")
    A(f"s_mov_b32 s{S_WO}, 0"); A(f"s_mov_b32 s{S_XO}, 0")
    n=0
    for t in range(3):
        for i in range(8 if t<2 else 2):
            d=dma(t,i)
            if len(d)==2: o.extend([d[0],I("s_nop 0"),d[1]])
            else: o.extend(d)
        if t<2:
            A(f"s_add_u32 s{S_WO}, s{S_WO}, {256*2048}"); A(f"s_add_u32 s{S_WR}, s{S_WR}, {STAGE}")
        for j in range(5 if t<2 else 4):
            o.append(x_load(n,0,L)); o.append(x_load(n,1,L)); A(f"s_add_u32 s{S_XO}, s{S_XO}, 1024"); n+=1
    assert n==XD
    return o

def start_reads():
    o=[WV(("D",0),"pd0"), I("s_barrier")]
    for n in range(2):
        for nb in range(4): o.extend(w_reads(n,nb))
    return o

def resid_p5():
    o=[]; A=lambda s:o.append(I(s))
    A(f"s_lshl_b32 s16, s{S_MT}, 2"); A(f"s_add_u32 s16, s16, s{S_W}"); A("s_lshl_b32 s16, s16, 16")
    A(f"s_lshl_b32 s17, s{S_NT}, 11"); A("s_add_u32 s16, s16, s17"); A(f"s_add_u32 s16, s16, {H_FO}")
    A("v_lshlrev_b32 v23, 4, v1"); A("v_add_u32 v23, s16, v23"); A("v_add_u32 v24, 32768, v23")
    for mb in range(2):
        for j in range(2):
            r=96+(mb*2+j)*4
            o.append(VM(f"buffer_load_dwordx4 v[{r}:{r+3}], v{23+mb}, s[4:7], 0 offen offset:{j*1024}",("R",)))
    return o
def resid_p5_unpack():
    o=[WV(("R",),"pr")]; A=lambda s:o.append(I(s))
    for mb in range(2):
        for j in range(2):
            r=96+(mb*2+j)*4
            for h in range(2):
                a=acc(2*j+h,mb)
                A(f"v_lshlrev_b32 v{a}, 16, v{r+2*h}"); A(f"v_and_b32 v{a+1}, 0xffff0000, v{r+2*h}")
                A(f"v_lshlrev_b32 v{a+2}, 16, v{r+2*h+1}"); A(f"v_and_b32 v{a+3}, 0xffff0000, v{r+2*h+1}")
    return o

TS=144
def resid_p3():
    o=[]; A=lambda s:o.append(I(s))
    A(f"s_lshl_b32 s16, s{S_MT}, 2"); A(f"s_add_u32 s16, s16, s{S_W}"); A("s_lshl_b32 s16, s16, 16")
    A(f"s_lshl_b32 s17, s{S_NT}, 7"); A("s_add_u32 s16, s16, s17")
    A("v_lshrrev_b32 v23, 3, v1"); A("v_mul_u32_u24 v23, 1920, v23")
    A("v_lshlrev_b32 v24, 4, v1"); A("v_add_u32 v23, v23, v24")
    A(f"s_lshl_b32 s17, s{S_W}, 12"); A(f"s_add_u32 s17, s17, {TBUF}")
    for j in range(4):
        A(f"s_add_u32 m0, s17, {j*1024}"); A(f"s_add_u32 s18, s16, {j*16384}")
        o.append(VM(f"buffer_load_dwordx4 v23, s[12:15], s18 offen lds",("R",)))
    return o
def resid_p3_unpack():
    o=[WV(("R",),"pr")]; A=lambda s:o.append(I(s))
    A("v_and_b32 v23, 15, v1"); A("v_lshlrev_b32 v23, 7, v23"); A("v_lshrrev_b32 v24, 4, v1"); A("v_lshlrev_b32 v24, 3, v24"); A("v_add_u32 v23, v23, v24")
    A(f"s_lshl_b32 s17, s{S_W}, 12"); A(f"s_add_u32 s17, s17, {TBUF}"); A("v_add_u32 v23, s17, v23")
    for mb in range(2):
        for nb in range(4):
            r=96+(mb*4+nb)*2
            o.append(DS(f"ds_read_b64 v[{r}:{r+1}], v23 offset:{mb*2048+nb*32}",("RR",)))
    o.append(WL(("RR",),"prr"))
    for mb in range(2):
        for nb in range(4):
            r=96+(mb*4+nb)*2; a=acc(nb,mb)
            A(f"v_lshlrev_b32 v{a}, 16, v{r}"); A(f"v_and_b32 v{a+1}, 0xffff0000, v{r}")
            A(f"v_lshlrev_b32 v{a+2}, 16, v{r+1}"); A(f"v_and_b32 v{a+3}, 0xffff0000, v{r+1}")
    return o

def epi_p5():
    o=[]; A=lambda s:o.append(I(s))
    A("s_nop 7")
    A("v_and_b32 v23, 15, v1"); A(f"v_mul_u32_u24 v23, {TS}, v23"); A("v_lshrrev_b32 v24, 4, v1"); A("v_lshlrev_b32 v24, 3, v24"); A("v_add_u32 v23, v23, v24")
    A(f"s_mul_i32 s17, s{S_W}, {32*TS}"); A(f"s_add_u32 s17, s17, {TBUF}"); A("v_add_u32 v23, s17, v23")
    for mb in range(2):
        for nb in range(4):
            a=acc(nb,mb); r=96+(mb*4+nb)*2
            A(f"v_cvt_pk_bf16_f32 v{r}, v{a}, v{a+1}"); A(f"v_cvt_pk_bf16_f32 v{r+1}, v{a+2}, v{a+3}")
            o.append(DS(f"ds_write_b64 v23, v[{r}:{r+1}] offset:{mb*16*TS+nb*32}",("TW",)))
    A("v_lshrrev_b32 v24, 3, v1"); A(f"v_mul_u32_u24 v25, {TS}, v24"); A("v_and_b32 v26, 7, v1"); A("v_lshlrev_b32 v26, 4, v26"); A("v_add_u32 v25, v25, v26")
    A("v_add_u32 v25, s17, v25")
    A(f"s_lshl_b32 s16, s{S_MT}, 2"); A(f"s_add_u32 s16, s16, s{S_W}"); A("s_lshl_b32 s16, s16, 16"); A(f"s_lshl_b32 s18, s{S_NT}, 7"); A("s_add_u32 s16, s16, s18")
    A("v_lshlrev_b32 v24, 11, v24"); A("v_add_u32 v24, v24, v26"); A("v_add_u32 v24, s16, v24")
    o.append(WL(("TW",),"tw"))
    for j in range(4):
        o.append(DS(f"ds_read_b128 v[{112+4*j}:{115+4*j}], v25 offset:{j*8*TS}",("TR",j)))
    for j in range(4):
        o.append(WL(("TR",j),("tr",j)))
        A(f"s_mov_b32 s18, {j*16384}")
        o.append(VM(f"buffer_store_dwordx4 v[{112+4*j}:{115+4*j}], v24, s[12:15], s18 offen",("ST",)))
    return o

def epi_p3():
    o=[]; A=lambda s:o.append(I(s))
    A("s_nop 7")
    A(f"s_lshl_b32 s16, s{S_MT}, 2"); A(f"s_add_u32 s16, s16, s{S_W}"); A("s_lshl_b32 s16, s16, 16")
    A(f"s_lshl_b32 s17, s{S_NT}, 11"); A("s_add_u32 s16, s16, s17"); A(f"s_add_u32 s16, s16, {H_FO}")
    A("v_lshlrev_b32 v23, 4, v1"); A("v_add_u32 v23, s16, v23"); A("v_add_u32 v24, 32768, v23")
    for mb in range(2):
        for j in range(2):
            r=96+(mb*2+j)*4
            for h in range(2):
                a=acc(2*j+h,mb)
                A(f"v_cvt_pk_bf16_f32 v{r+2*h}, v{a}, v{a+1}"); A(f"v_cvt_pk_bf16_f32 v{r+2*h+1}, v{a+2}, v{a+3}")
            o.append(VM(f"buffer_store_dwordx4 v[{r}:{r+3}], v{23+mb}, s[4:7], 0 offen offset:{j*1024}",("ST",)))
    for mb in range(2):
        S=120+mb*2
        A(f"v_mov_b32 v{S}, 0"); A(f"v_mov_b32 v{S+1}, 0")
        for q in range(8):
            r=96+mb*8+q
            A(f"v_lshlrev_b32 v26, 16, v{r}"); A(f"v_and_b32 v27, 0xffff0000, v{r}")
            A(f"v_add_f32 v{S}, v{S}, v26"); A(f"v_fmac_f32 v{S+1}, v26, v26")
            A(f"v_add_f32 v{S}, v{S}, v27"); A(f"v_fmac_f32 v{S+1}, v27, v27")
    for sw in ("v_permlane16_swap_b32","v_permlane32_swap_b32"):
        for q in range(4): A(f"v_mov_b32 v{124+q}, v{120+q}")
        A("s_nop 1")
        for q in range(4): A(f"{sw} v{120+q}, v{124+q}")
        A("s_nop 1")
        for q in range(4): A(f"v_add_f32 v{120+q}, v{120+q}, v{124+q}")
    A(f"s_lshl_b32 s16, s{S_MT}, 2"); A(f"s_add_u32 s16, s16, s{S_W}"); A("s_lshl_b32 s16, s16, 12")
    A(f"s_lshl_b32 s17, s{S_NT}, 7"); A("s_add_u32 s16, s16, s17"); A(f"s_add_u32 s16, s16, {STATS2}")
    A("v_and_b32 v23, 15, v1"); A("v_lshlrev_b32 v23, 3, v23"); A("v_lshrrev_b32 v24, 4, v1")
    A("v_lshlrev_b32 v25, 11, v24"); A("v_add3_u32 v23, v23, v25, s16")
    A("v_cmp_eq_u32 vcc, 1, v24"); A("s_nop 1")
    A("v_cndmask_b32 v120, v120, v122, vcc"); A("v_cndmask_b32 v121, v121, v123, vcc")
    A("v_cmp_gt_u32 vcc, 2, v24"); A("v_mov_b32 v25, 0x10000000"); A("s_nop 0")
    A("v_cndmask_b32 v23, v25, v23, vcc")
    o.append(VM(f"buffer_store_dwordx2 v[120:121], v23, s[4:7], 0 offen",("ST",)))
    return o

def gen(which, stamps=None):
    L="L3" if which==3 else "L5"
    name=f"p{which}_kernel"
    if which==3: st=setup(L,A_WO,O_FO,32*1024); res=resid_p3(); unp=resid_p3_unpack(); epi=epi_p3(); iters=2
    else: st=setup(L,B_WD,ACT_FO,112*1024); res=resid_p5(); unp=resid_p5_unpack(); epi=epi_p5(); iters=7
    pro=st+res+fill(L)+unp+start_reads()+[I(f"s_mov_b32 s{S_CNT}, {iters}")]
    bodies=[body(i,L) for i in range(3)]
    simulate(pro+bodies[0]+bodies[1]+bodies[2])
    b=resolve(bodies)
    out=[khead(name)]
    if stamps: out.append(text(stamps[0](0)))
    out.append(text(pro))
    if stamps: out.append(text(stamps[0](1)))
    out.append(f".p2align 6\n{L}_loop:")
    out.append(text(b))
    out.append(f"    s_sub_u32 s{S_CNT}, s{S_CNT}, 1\n    s_cmp_lg_u32 s{S_CNT}, 0\n    s_cbranch_scc1 {L}_loop")
    if stamps: out.append(text(stamps[0](2)))
    out.append("    s_waitcnt vmcnt(0) lgkmcnt(0)")
    simulate(epi); out.append(text(epi))
    if stamps:
        out.append("    s_waitcnt vmcnt(0)"); out.append(text(stamps[0](3))); out.append(text(stamps[1](4,f"{L}_st",which)))
    out.append(f"{L}_done:\n    s_endpgm")
    return "\n".join(out), name

if __name__=="__main__":
    import p4
    for which in (3,5):
        code,name=gen(which,(p4.stamp,p4.stamp_flush))
        h=f"; @launch kernel={name} grid=(256,1,1) block=(256,1,1) lds={TBUF+4*32*TS}\n"
        s=h+'.amdgcn_target "amdgcn-amd-amdhsa--gfx950"\n.text\n'+code+'\n.section .rodata,"a"\n'+kd(name)+"\n"
        open(f"p{which}.s","w").write(s)
```

```python
import sys
from asmlib import *
import p0,p1,p2,pw,p4
HDR=open("sequential_preLN__sliding_block__glu_gated_bilinear__prompt.s.ref").read().split("; Override launch geometry")[0]
def build(stamps=False, extra_empty=0):
    st=(p4.stamp,p4.stamp_flush) if stamps else None
    ks=[]
    c,n=p0.gen(); ks.append((c,n,4096,dict(vgpr=256,accum=256)))
    c,n=p1.gen(stamps=st); ks.append((c,n,p1.NST*p1.STAGE,{}))
    c,n=p2.gen(stamps=st); ks.append((c,n,0,{}))
    c,n=pw.gen(3,st); ks.append((c,n,pw.TBUF+4*32*pw.TS,{}))
    c=p4.gen(stamps=stamps); ks.append((c,"p4_kernel",p4.CSL+1024,{}))
    c,n=pw.gen(5,st); ks.append((c,n,pw.TBUF+4*32*pw.TS,{}))
    for i in range(extra_empty):
        n=f"e{i}_kernel"; ks.append((khead(n)+"\n    s_endpgm",n,0,dict(vgpr=8,accum=8)))
    s=HDR
    for c,n,lds,kw in ks: s+=f"; @launch kernel={n} grid=(256,1,1) block=(256,1,1) lds={lds}\n"
    s+='.amdgcn_target "amdgcn-amd-amdhsa--gfx950"\n.text\n'
    for c,n,lds,kw in ks: s+=c+"\n"
    s+='.section .rodata,"a"\n'
    for c,n,lds,kw in ks: s+=kd(n,**kw)+"\n"
    return s
if __name__=="__main__":
    open("full_st.s","w").write(build(stamps=True))
    open("full.s","w").write(build(stamps=False))
    open("full_e4.s","w").write(build(stamps=False,extra_empty=4))
```

```python
class Op:
    __slots__=("text","kind","tag","n","site")
    def __init__(s,text,kind="x",tag=None,site=None):
        s.text=text; s.kind=kind; s.tag=tag; s.n=None; s.site=site
    def __repr__(s): return f"Op({s.text!r},{s.kind},{s.tag})"

def I(text): return Op(text)
def VM(text,tag=None): return Op(text,"vm",tag)
def DS(text,tag=None): return Op(text,"ds",tag)
def WV(tag,site): return Op(None,"wv",tag,site)
def WL(tag,site): return Op(None,"wl",tag,site)
def RAW(text): return Op(text,"raw")
def DRAINV(): return Op("s_waitcnt vmcnt(0)","drainv")
def DRAINL(): return Op("s_waitcnt lgkmcnt(0)","drainl")
def DRAIN(): return Op("s_waitcnt vmcnt(0) lgkmcnt(0)","drain")

def simulate(seq, vq=None, lq=None):
    vq=list(vq or []); lq=list(lq or [])
    for op in seq:
        if op.kind=="vm": vq.append(op.tag)
        elif op.kind=="ds": lq.append(op.tag)
        elif op.kind in("wv","wl"):
            q = vq if op.kind=="wv" else lq
            tags = op.tag if isinstance(op.tag,list) else [op.tag]
            idx=-1
            for i,t in enumerate(q):
                if t in tags: idx=i
            if idx<0: op.n=None
            else:
                op.n=len(q)-1-idx
                del q[:idx+1]
        elif op.kind=="drainv": vq.clear()
        elif op.kind=="drainl": lq.clear()
        elif op.kind=="drain": vq.clear(); lq.clear()
    return vq,lq

def resolve(groups):
    best={}
    for g in groups:
        for op in g:
            if op.kind in("wv","wl") and op.n is not None:
                best[op.site]=min(best.get(op.site,99),op.n)
    for g in groups:
        for op in g:
            if op.kind in("wv","wl"): op.n=best.get(op.site)
    t0=[render(o) for o in groups[0]]
    for g in groups[1:]:
        t=[render(o) for o in g]
        assert t==t0, "loop instances differ:\n"+"\n".join(f"{a} | {b}" for a,b in zip(t0,t) if a!=b)
    return groups[0]

def render(op):
    if op.kind=="wv":
        if op.n is None: return None
        assert op.n<=63
        return f"s_waitcnt vmcnt({op.n})"
    if op.kind=="wl":
        if op.n is None: return None
        return f"s_waitcnt lgkmcnt({min(op.n,15)})"
    return op.text

def text(seq):
    out=[]
    for op in seq:
        t=render(op)
        if t is None: continue
        out.append(t if op.kind=="raw" else "    "+t)
    return "\n".join(out)

def weave(mf, gaps):
    out=[]
    for i,m in enumerate(mf):
        out += gaps.get(i,[])
        out.append(m)
    out += gaps.get(len(mf),[])
    return out

def kd(name, vgpr=512, accum=256, sgpr=102):
    return f""".p2align 6
.amdhsa_kernel {name}
  .amdhsa_next_free_vgpr {vgpr}
  .amdhsa_next_free_sgpr {sgpr}
  .amdhsa_accum_offset {accum}
  .amdhsa_group_segment_fixed_size 0
  .amdhsa_kernarg_size 80
  .amdhsa_user_sgpr_count 2
  .amdhsa_user_sgpr_kernarg_segment_ptr 1
  .amdhsa_system_sgpr_workgroup_id_x 1
.end_amdhsa_kernel"""
def khead(name):
    return f""".globl {name}
.p2align 8
.type {name},@function
{name}:"""

def opclass(op):
    if op.kind in("wv","wl"): return "W"
    t=op.text
    if t.startswith("s_waitcnt"): return "W"
    if t.startswith("ds_"): return "D"
    if t.startswith("buffer_") or t.startswith("global_"): return "M"
    if t.startswith("v_"): return "V"
    if op.kind=="raw": return "W"
    return "S"
def sched(mf, chains, fixed=None):
    G=len(mf)+1
    gaps={g:[] for g in range(G)}
    if fixed:
        for g,ops in fixed.items(): gaps[g]+=ops
    def room(g,op):
        cl=[opclass(o) for o in gaps[g]]
        used=sum(1 for c in cl if c!="W")
        c=opclass(op)
        if c=="W": return True
        if used>=2: return False
        if c=="D" and ("M" in cl or "D" in cl): return False
        if c=="M" and ("D" in cl or "M" in cl): return False
        return True
    for start,ops in chains:
        g=start
        for op in ops:
            while g<G-1 and not room(g,op): g+=1
            gaps[g].append(op)
    return weave(mf,{g:v for g,v in gaps.items() if v})
```

```python
from asmlib import *
from layout import *
S_W,S_MT,S_J=20,21,22
S_M3,S_N3=72,73
P_X,P_WQKV,P_WO,P_BX,P_WG,P_WU,P_WD,P_OUT=84,86,88,90,92,94,96,98
P_DBG=100
DBG="s[40:43]"
BIG="0x10000000"
V_L0=30
NSTAMP=[0]
STAMPS=[False]
NAMES=[]
ONLY=[None]
CYC=[False]
def stamp(name):
    if not STAMPS[0]: return []
    if ONLY[0] is not None and name not in ONLY[0]: return []
    o=[]
    i=NSTAMP[0]; NSTAMP[0]+=1; NAMES.append(name); assert i<12
    o.append(I(f"s_memrealtime s[{44+2*i}:{45+2*i}]"))
    if CYC[0]:
        i=NSTAMP[0]; NSTAMP[0]+=1; NAMES.append("c:"+name); assert i<12
        o.append(I(f"s_memtime s[{44+2*i}:{45+2*i}]"))
    return o
def stamp_flush():
    if not STAMPS[0]: return []
    o=[]; A=lambda s:o.append(I(s))
    A("s_waitcnt vmcnt(0) lgkmcnt(0)")
    A(f"s_lshl_b32 s3, s2, 2"); A(f"s_add_u32 s3, s3, s{S_W}"); A("s_lshl_b32 s3, s3, 7"); A(f"s_add_u32 s3, s3, {TSTAMP}")
    for i in range(NSTAMP[0]):
        A(f"v_mov_b32 v24, s{44+2*i}"); A(f"buffer_store_dword v24, v{V_L0}, s[4:7], s3 offen offset:{4*i}")
    return o
_lbl=[0]
def lbl(p):
    _lbl[0]+=1; return f"{p}_{_lbl[0]}"

def publish_add(off_sgpr_setup, waittag, site):
    o=[WV(waittag,site), I("s_barrier")]; A=lambda s:o.append(I(s))
    L=lbl("Lpub")
    A(f"s_cmp_eq_u32 s{S_W}, 0"); A(f"s_cbranch_scc0 {L}")
    o+=off_sgpr_setup
    A("v_mov_b32 v24, 1")
    A(f"buffer_atomic_add v24, v{V_L0}, s[4:7], s16 offen sc1")
    o.append(RAW(f"{L}:"))
    return o
def wait_count(off_sgpr_setup, target):
    o=[]; A=lambda s:o.append(I(s))
    L=lbl("Lw"); P=lbl("Lp")
    A(f"s_cmp_eq_u32 s{S_W}, 0"); A(f"s_cbranch_scc0 {L}")
    o+=off_sgpr_setup
    A("s_mov_b32 s19, 0"); o.append(RAW(f"{P}:")); A("s_add_u32 s19, s19, 1"); A("s_cmp_gt_u32 s19, 300000"); A(f"s_cbranch_scc1 {L}")
    A(f"buffer_load_dword v24, v{V_L0}, s[4:7], s16 offen sc1"); A("s_waitcnt vmcnt(0)")
    A("v_readfirstlane_b32 s17, v24"); A(f"s_cmp_ge_u32 s17, {target}"); A(f"s_cbranch_scc0 {P}")
    o.append(RAW(f"{L}:")); A("s_barrier")
    return o
def swap_sum(A,regs,tmp,which,op="v_add_f32"):
    for i,r in enumerate(regs): A(f"v_mov_b32 v{tmp+i}, v{r}")
    A("s_nop 1")
    for i,r in enumerate(regs): A(f"{which} v{r}, v{tmp+i}")
    A("s_nop 1")
    for i,r in enumerate(regs): A(f"{op} v{r}, v{r}, v{tmp+i}")
def loop_code(label, pro, bodyfn, cnt_sgpr, extra_after=None):
    bodies=[bodyfn(i) for i in range(3)]
    simulate(pro+bodies[0]+bodies[1]+bodies[2])
    return resolve(bodies)

def handoff(store_tag, site, pub_setup, wait_setup, target, during_drain, after_pub):
    o=list(during_drain)+stamp(site+"_dd")+[WV(store_tag,site)]+stamp(site+"_dr")+[I("s_barrier")]; A=lambda s:o.append(I(s))
    L0=lbl("Lh0"); L1=lbl("Lh1"); L2=lbl("Lh2"); P=lbl("Lhp")
    A("s_mov_b32 s75, 1")
    A(f"s_cmp_eq_u32 s{S_W}, 1"); A(f"s_cbranch_scc0 {L0}")
    o+=pub_setup
    A("v_lshlrev_b32 v28, 8, v1"); A(f"v_mov_b32 v31, {BIG}"); A("v_cmp_gt_u32 vcc, 8, v1"); A("s_nop 1"); A("v_cndmask_b32 v28, v31, v28, vcc")
    A("v_mov_b32 v31, 1"); A(f"buffer_atomic_add v31, v28, s[4:7], s16 offen sc1")
    o.append(RAW(f"{L0}:"))
    A(f"s_cmp_eq_u32 s{S_W}, 0"); A(f"s_cbranch_scc0 {L1}")
    o+=wait_setup; A("s_mov_b32 s74, s16")
    A(f"buffer_load_dword v31, v{V_L0}, s[4:7], s74 offen sc1"); A("s_waitcnt vmcnt(0)")
    A("v_readfirstlane_b32 s17, v31"); A(f"s_cmp_ge_u32 s17, {target}"); A("s_cselect_b32 s75, 1, 0")
    o.append(RAW(f"{L1}:"))
    o+=stamp(site+"_p1")
    o+=after_pub
    o+=stamp(site+"_ap")
    A("s_cmp_eq_u32 s75, 1"); A(f"s_cbranch_scc1 {L2}")
    A("s_mov_b32 s19, 0"); o.append(RAW(f"{P}:")); A("s_add_u32 s19, s19, 1"); A("s_cmp_gt_u32 s19, 300000"); A(f"s_cbranch_scc1 {L2}")
    A(f"buffer_load_dword v31, v{V_L0}, s[4:7], s74 offen sc1"); A("s_waitcnt vmcnt(0)")
    A("v_readfirstlane_b32 s17, v31"); A(f"s_cmp_ge_u32 s17, {target}"); A(f"s_cbranch_scc0 {P}")
    o.append(RAW(f"{L2}:")); A("s_barrier")
    return o
def cnt_addr(c_expr_ops, base_c):
    return list(c_expr_ops)+[I("s_lshl_b32 s16, s16, 8"), I(f"s_add_u32 s16, s16, {S_CNT0+base_c*256}")]
```

```python
MB=1<<20
Q_FO   = 0*MB
K_FO   = 4*MB
VT_FO  = 8*MB
O_FO   = 12*MB
H_FO   = 16*MB
ACT_FO = 20*MB
STATS2 = 36*MB
CS_GU  = 37*MB
STATS1 = 38*MB
CS_QKV = 38*MB+512*1024
TSTAMP = 56*MB
WS_SIZE= 256*MB
A_X=0; A_WQKV=8; A_WO=16; B_X=24; B_WG=32; B_WU=40; B_WD=48; D_OUT=56; D_DBG=64; D_WS=72
SYNC   = 40*MB
XCH    = 44*MB
WBAR   = 38*MB+256*1024
MU2    = 38*MB+320*1024
S_KV=SYNC; S_XF=SYNC+65536; S_CNT0=SYNC+131072
C_OD=0; C_HD=128; C_AD=192
```

```python
from common import *
import p1 as P
from p1 import (S_XO,S_WO,S_WR,S_RD,S_CNT,S_LIM,ACC0,acc,STAGE,NST,V_XD,V_WD,V_XL,V_WL,V_XR,V_WR,V_CS,V_SQ,V_SV,dma_x,dma_w,x_read,w_reads)
V_Q=204; V_K=220; V_V=236
CS_SCR=153600

DELAY=[0]
CODEPF=[0]
KNAME="sequential_preLN__sliding_block__glu_gated_bilinear__prompt_kernel"
def entry():
    o=[]; A=lambda s:o.append(I(s))
    A("s_cmp_ge_u32 s2, 256"); A("s_cbranch_scc1 L_done")
    A(f"s_load_dwordx16 s[84:99], s[0:1], 0")
    A(f"s_load_dwordx2 s[{P_DBG}:{P_DBG+1}], s[0:1], {D_DBG}")
    A(f"s_load_dwordx2 s[4:5], s[0:1], {D_WS}")
    A("v_and_b32 v1, 63, v0"); A("v_lshrrev_b32 v23, 6, v0")
    if CODEPF[0]:
        A("s_getpc_b64 s[24:25]"); o.append(RAW("L_pc:")); A(f"s_sub_u32 s24, s24, L_pc-{KNAME}"); A("s_subb_u32 s25, s25, 0")
        A("s_lshr_b32 s16, s2, 3"); A("s_lshl_b32 s16, s16, 11")
        A("v_and_b32 v2, 15, v0"); A("v_lshlrev_b32 v2, 7, v2"); A("v_add_u32 v2, s16, v2"); A(f"s_mov_b32 s17, L_codeend-{KNAME}")
        A("v_cmp_gt_u32 vcc, s17, v2"); A("v_cmp_gt_u32 s[26:27], 16, v0"); A("s_nop 1"); A("s_and_b64 vcc, vcc, s[26:27]")
        A("s_and_saveexec_b64 s[26:27], vcc"); A("s_cbranch_execz L_nopf")
        A("global_load_dword v29, v2, s[24:25]")
        o.append(RAW("L_nopf:")); A("s_mov_b64 exec, s[26:27]")
    A("s_and_b32 s3, s2, 7"); A("s_lshr_b32 s16, s2, 3")
    A("s_and_b32 s17, s3, 1"); A("s_lshl_b32 s17, s17, 2"); A("s_and_b32 s18, s16, 3"); A("s_add_u32 s17, s17, s18"); A("s_lshr_b32 s18, s2, 7"); A("s_lshl_b32 s18, s18, 3"); A(f"s_add_u32 s{S_MT}, s17, s18")
    A(f"v_readfirstlane_b32 s{S_W}, v23")
    A("s_lshr_b32 s17, s3, 1"); A("s_lshl_b32 s17, s17, 2"); A("s_bfe_u32 s18, s16, 0x20002"); A(f"s_add_u32 s{S_J}, s17, s18")
    if DELAY[0]:
        A("s_cmp_ge_u32 s2, 128"); A("s_cbranch_scc0 L_nodelay"); A("s_memrealtime s[24:25]"); A("s_waitcnt lgkmcnt(0)")
        o.append(RAW("L_dl:")); A("s_memrealtime s[26:27]"); A("s_waitcnt lgkmcnt(0)"); A("s_sub_u32 s26, s26, s24"); A(f"s_cmp_lt_u32 s26, {DELAY[0]}"); A("s_cbranch_scc1 L_dl")
        o.append(RAW("L_nodelay:"))
    A(f"v_mov_b32 v{V_L0}, {BIG}"); A("v_cmp_eq_u32 vcc, 0, v1"); A("s_nop 1"); A(f"v_cndmask_b32 v{V_L0}, v{V_L0}, 0, vcc")
    st=P.setup()
    i0=[k for k,op in enumerate(st) if op.text.startswith("v_lshrrev_b32 v23, 3, v1")][0]
    i1=[k for k,op in enumerate(st) if op.text=="s_waitcnt lgkmcnt(0)"][0]
    o+=st[i0:i1]
    o+=[I(f"v_mov_b32 v{ACC0+i}, 0") for i in range(96)]+[I(f"v_mov_b32 v{V_CSA+i}, 0") for i in range(24)]+[I(f"v_mov_b32 v{V_ONE+i}, 0x3f803f80") for i in range(4)]
    o+=stamp("prek")
    A("s_waitcnt lgkmcnt(0)")
    o+=stamp("kern")
    A(f"s_mov_b32 s6, {BIG}"); A("s_mov_b32 s7, 0x20000")
    A(f"s_mov_b32 s40, s{P_DBG}"); A(f"s_mov_b32 s41, s{P_DBG+1}"); A("s_mov_b32 s42, 256"); A("s_mov_b32 s43, 0x20000")
    A(f"s_lshl_b32 s16, s{S_MT}, 18"); A(f"s_add_u32 s12, s{P_X}, s16"); A(f"s_addc_u32 s13, s{P_X+1}, 0"); A("s_sub_u32 s14, 0x400000, s16"); A("s_mov_b32 s15, 0x20000")
    A(f"s_lshl_b32 s16, s{S_J}, 7"); A(f"s_add_u32 s8, s{P_WQKV}, s16"); A(f"s_addc_u32 s9, s{P_WQKV+1}, 0"); A(f"s_sub_u32 s10, {1024*6144}, s16"); A("s_mov_b32 s11, 0x20000")
    return o

def zero_sync():
    o=[]; A=lambda s:o.append(I(s))
    A(f"s_lshl_b32 s16, s{S_MT}, 4"); A(f"s_add_u32 s16, s16, s{S_J}"); A("s_lshl_b32 s16, s16, 8"); A(f"s_add_u32 s16, s16, {S_KV}")
    A("s_lshl_b32 s17, s2, 8"); A(f"s_add_u32 s18, s17, {S_CNT0}"); A(f"s_add_u32 s17, s17, {S_XF}")
    A(f"s_add_u32 s19, s18, {256*256}"); A("s_cmp_lt_u32 s2, 64"); A(f"s_cselect_b32 s19, s19, {BIG}")
    A(f"v_mov_b32 v24, {BIG}")
    for lane,sr in ((0,16),(1,17),(2,18),(3,19)):
        A(f"v_mov_b32 v25, s{sr}"); A(f"v_cmp_eq_u32 vcc, {lane}, v0"); A("s_nop 1"); A("v_cndmask_b32 v24, v24, v25, vcc")
    A("v_mov_b32 v25, 0")
    o.append(VM("buffer_store_dword v25, v24, s[4:7], 0 offen sc1",("z",)))
    return o

R0=128
V_CSA=168
V_ONE=192
S_WM=23
def early_loads():
    o=[]; A=lambda s:o.append(I(s))
    A(f"s_lshl_b32 s16, s{S_J}, 14"); A(f"s_lshl_b32 s17, s{S_W}, 12"); A("s_add_u32 s16, s16, s17")
    A("v_lshlrev_b32 v23, 4, v1")
    for q in range(2):
        for h in range(2):
            r=R0+8*q+4*h
            A(f"buffer_load_dwordx4 v[{r}:{r+3}], v23, s[12:15], s16 offen offset:{q*2048+h*1024}")
    A(f"s_mov_b32 s36, s{P_WO}"); A(f"s_mov_b32 s37, s{P_WO+1}"); A(f"s_mov_b32 s38, {1024*2048}"); A("s_mov_b32 s39, 0x20000")
    A("s_lshl_b32 s16, s2, 2"); A(f"s_add_u32 s16, s16, s{S_W}"); A("s_lshl_b32 s16, s16, 11")
    for h in range(2):
        r=R0+24+4*h
        A(f"buffer_load_dwordx4 v[{r}:{r+3}], v23, s[36:39], s16 offen offset:{h*1024}")
    return o
def early_proc():
    o=[]; A=lambda s:o.append(I(s))
    T=R0+16
    A("v_mov_b32 v24, 0x3f803f80")
    for q in range(2):
        for d in range(8):
            r=R0+8*q+d
            if d==0:
                A(f"v_dot2_f32_bf16 v{T+2*q}, v{r}, v24, 0"); A(f"v_dot2_f32_bf16 v{T+2*q+1}, v{r}, v{r}, 0")
            else:
                A(f"v_dot2_f32_bf16 v{T+2*q}, v{r}, v24, v{T+2*q}"); A(f"v_dot2_f32_bf16 v{T+2*q+1}, v{r}, v{r}, v{T+2*q+1}")
    for d in range(8):
        r=R0+24+d
        A(f"v_dot2_f32_bf16 v{T+4}, v{r}, v24, {0 if d==0 else 'v%d'%(T+4)}")
    regs=list(range(T,T+5))
    A("s_nop 2")
    for sh in (8,4,2,1):
        A("s_nop 1")
        for r in regs: A(f"v_add_f32_dpp v{r}, v{r}, v{r} row_ror:{sh} row_mask:0xf bank_mask:0xf")
    swap_sum(A,regs,R0,"v_permlane16_swap_b32"); swap_sum(A,regs,R0,"v_permlane32_swap_b32")
    A("s_mov_b32 s16, 0x3a800000"); A(f"v_mul_f32 v25, s16, v{T+4}")
    A("v_cvt_pk_bf16_f32 v26, v25, v25"); A("v_lshlrev_b32 v27, 16, v26"); A("v_sub_f32 v27, v25, v27"); A("v_cvt_pk_bf16_f32 v27, v27, v27")
    A("v_cmp_eq_u32 vcc, 1, v1"); A("s_nop 1"); A("v_cndmask_b32 v26, v26, v27, vcc")
    A("s_lshl_b32 s16, s2, 2"); A(f"s_add_u32 s16, s16, s{S_W}")
    A("s_lshr_b32 s17, s16, 5"); A("s_lshl_b32 s17, s17, 7")
    A("s_bfe_u32 s18, s16, 0x20002"); A("s_lshl_b32 s18, s18, 5"); A("s_add_u32 s17, s17, s18")
    A("s_bfe_u32 s18, s16, 0x10004"); A("s_lshl_b32 s18, s18, 3"); A("s_add_u32 s17, s17, s18")
    A("s_and_b32 s18, s16, 3"); A("s_lshl_b32 s18, s18, 1"); A("s_add_u32 s17, s17, s18"); A(f"s_add_u32 s17, s17, {WBAR}")
    A("v_lshlrev_b32 v23, 4, v1"); A(f"v_mov_b32 v25, {BIG}"); A("v_cmp_gt_u32 vcc, 2, v1"); A("s_nop 1"); A("v_cndmask_b32 v23, v25, v23, vcc")
    A("buffer_store_short v26, v23, s[4:7], s17 offen sc1")
    A("v_cmp_eq_u32 vcc, 1, v1"); A("s_nop 1")
    A(f"v_cndmask_b32 v26, v{T}, v{T+2}, vcc"); A(f"v_cndmask_b32 v27, v{T+1}, v{T+3}, vcc")
    A("s_mov_b32 s16, 0x3a800000"); A("s_mov_b32 s17, 0x3727c5ac")
    A("v_mul_f32 v26, s16, v26"); A("v_mul_f32 v27, s16, v27"); A("v_fma_f32 v27, -v26, v26, v27"); A("v_add_f32 v27, s17, v27")
    A("v_rsq_f32 v27, v27")
    A(f"s_lshl_b32 s16, s{S_MT}, 10"); A(f"s_lshl_b32 s17, s{S_J}, 6"); A("s_add_u32 s16, s16, s17"); A(f"s_lshl_b32 s17, s{S_W}, 4"); A("s_add_u32 s16, s16, s17"); A(f"s_add_u32 s16, s16, {STATS1}")
    A("v_lshlrev_b32 v23, 3, v1"); A(f"v_mov_b32 v24, {BIG}"); A("v_cmp_gt_u32 vcc, 2, v1"); A("s_nop 1"); A("v_cndmask_b32 v23, v24, v23, vcc")
    A(f"buffer_store_dwordx2 v[26:27], v23, s[4:7], s16 offen sc1")
    return o

def prefetch(which, part=0, parts=1):
    o=[]; A=lambda s:o.append(I(s))
    ptr,nbytes={"wo":(P_WO,1024*2048),"wg":(P_WG,1024*7168),"wu":(P_WU,1024*7168),"wd":(P_WD,3584*2048)}[which]
    lines=nbytes//128//256
    per=lines//4//parts
    assert per*4*parts==lines
    A(f"s_mov_b32 s36, s{ptr}"); A(f"s_mov_b32 s37, s{ptr+1}"); A(f"s_mov_b32 s38, {nbytes}"); A("s_mov_b32 s39, 0x20000")
    A(f"s_mul_i32 s16, s2, {lines*128}"); A(f"s_mul_i32 s17, s{S_W}, {per*parts*128}"); A("s_add_u32 s16, s16, s17"); A(f"s_add_u32 s16, s16, {part*per*128}")
    A("v_lshlrev_b32 v28, 7, v1"); A(f"v_mov_b32 v29, {BIG}"); A(f"v_cmp_gt_u32 vcc, {per}, v1"); A("s_nop 1"); A("v_cndmask_b32 v28, v29, v28, vcc")
    A("buffer_load_dword v29, v28, s[36:39], s16 offen")
    return o

def stats_loads():
    st=P.load_stats()
    k=[i for i,op in enumerate(st) if op.text.startswith("v_lshrrev_b32 v23, 6, v0")][0]
    st=st[:k]
    for op in st:
        if op.kind=="vm": op.text+=" sc1"
    return st

def early_query():
    return [I(f"buffer_load_dword v31, v{V_L0}, {DBG}, 0 offen sc1")]
def mid_section():
    o=[]; A=lambda s:o.append(I(s))
    L=lbl("Lm"); Pl=lbl("Lmp")
    A("v_readfirstlane_b32 s17, v31"); A("s_cmp_ge_u32 s17, 256"); A(f"s_cbranch_scc1 {L}")
    A("s_mov_b32 s19, 0"); o.append(RAW(f"{Pl}:")); A("s_add_u32 s19, s19, 1"); A("s_cmp_gt_u32 s19, 300000"); A(f"s_cbranch_scc1 {L}")
    A(f"buffer_load_dword v31, v{V_L0}, {DBG}, 0 offen sc1"); A("s_waitcnt vmcnt(0)")
    A("v_readfirstlane_b32 s17, v31"); A("s_cmp_ge_u32 s17, 256"); A(f"s_cbranch_scc0 {Pl}")
    o.append(RAW(f"{L}:"))
    for op in stats_loads():
        o.append(I(op.text) if op.kind=="vm" else op)
    return o

V_T=21; S_TO=77
TA1=3
def touch_setup():
    o=[]; A=lambda s:o.append(I(s))
    A(f"s_cmp_ge_u32 s{S_W}, 2")
    A(f"s_cselect_b32 s80, s{P_WQKV}, s{P_X}"); A(f"s_cselect_b32 s81, s{P_WQKV+1}, s{P_X+1}"); A("s_mov_b32 s82, 0x400000"); A(f"s_cselect_b32 s82, {1024*6144}, s82"); A("s_mov_b32 s83, 0x20000")
    A("s_movk_i32 s76, 128"); A(f"s_cselect_b32 s76, {64*6144}, s76")
    A("s_lshl_b32 s16, s2, 3"); A(f"s_lshl_b32 s17, s{S_W}, 2"); A("s_add_u32 s16, s16, s17"); A("s_lshl_b32 s16, s16, 11")
    A("s_lshr_b32 s17, s2, 2"); A("s_mul_i32 s17, s17, 6144"); A("s_and_b32 s18, s2, 3"); A("s_mul_i32 s18, s18, 12"); A(f"s_sub_u32 s19, s{S_W}, 2"); A("s_mul_i32 s19, s19, 6"); A("s_add_u32 s18, s18, s19"); A("s_lshl_b32 s18, s18, 7"); A("s_add_u32 s17, s17, s18")
    A(f"s_cmp_ge_u32 s{S_W}, 2"); A("s_cselect_b32 s16, s17, s16"); A("s_cselect_b32 s17, 7, 11"); A("s_cselect_b32 s18, 6, 4")
    A(f"v_lshlrev_b32 v{V_T}, s17, v1"); A(f"v_add_u32 v{V_T}, s16, v{V_T}"); A(f"v_mov_b32 v24, {BIG}"); A("v_cmp_gt_u32 vcc, s18, v1"); A("s_nop 1"); A(f"v_cndmask_b32 v{V_T}, v24, v{V_T}, vcc")
    A(f"s_mul_i32 s{S_TO}, s76, 3")
    return o
def touch(reg=True):
    t=f"buffer_load_dword v29, v{V_T}, s[80:83], s{S_TO} offen"
    return [VM(t,("T",)) if reg else I(t), I(f"s_add_u32 s{S_TO}, s{S_TO}, s76")]
def cs_block(n):
    o=[]
    for nb in range(6):
        a=P.wa(n,nb); c=V_CSA+4*nb
        if nb<4: o.append(I(f"v_mfma_f32_16x16x32_bf16 v[{c}:{c+3}], a[{a}:{a+3}], v[{V_ONE}:{V_ONE+3}], v[{c}:{c+3}]"))
        else:    o.append(I(f"v_mfma_f32_16x16x32_bf16 v[{c}:{c+3}], v[{V_ONE}:{V_ONE+3}], a[{a}:{a+3}], v[{c}:{c+3}]"))
    return o
def step_ops(n, wm):
    t=n//2; s_=n%2
    mf=[]
    for nb in range(6):
        a=P.wa(n,nb)
        for mb in (range(4) if nb%2==0 else range(3,-1,-1)):
            if nb<4: mf.append(I(f"v_mfma_f32_16x16x32_bf16 {P.accr(nb,mb)}, a[{a}:{a+3}], {P.xr(n,mb)}, {P.accr(nb,mb)}"))
            else:    mf.append(I(f"v_mfma_f32_16x16x32_bf16 {P.accr(nb,mb)}, {P.xr(n,mb)}, a[{a}:{a+3}], {P.accr(nb,mb)}"))
    if wm==s_: mf+=cs_block(n)
    gaps={}
    def put(g,ops): gaps.setdefault(g,[]).extend(ops if isinstance(ops,list) else [ops])
    put(0,[WL([("X",n,m) for m in range(4)]+[("W",n,0),("W",n,1)],("w0",s_))])
    put(8,[WL([("W",n,2),("W",n,3)],("w1",s_))]); put(16,[WL([("W",n,4),("W",n,5)],("w2",s_))])
    na=n+1
    rds=[x_read(na,m) for m in range(4)]
    for nb in range(6): rds+=w_reads(na,nb)
    if s_==0:
        td=t+2
        dpos=[1,2,3,5,6,7,9,10,11,13,14,15,17,18,19,21]
        for g,r in zip(dpos,rds): put(g,r)
        for i,g in zip(range(1,6),(4,8,12,16,20)):
            d=dma_w(td,i)
            if len(d)==2: put(g-1,d[0]); put(g,d[1])
            else: put(g,d[0])
        put(1,I(f"s_add_u32 s{S_RD}, s{S_RD}, {STAGE}")); put(2,I(f"s_cmp_ge_u32 s{S_RD}, {NST*STAGE}")); put(3,I(f"s_cselect_b32 s{S_RD}, 0, s{S_RD}"))
        tc=touch(); put(22,tc[0]); put(5,tc[1])
        put(21,I(f"s_add_u32 s{S_XO}, s{S_XO}, 128")); put(22,I(f"s_add_u32 s{S_WO}, s{S_WO}, {64*6144}"))
        put(23,[I(f"s_add_u32 s3, s{S_WR}, {STAGE}"), I(f"s_cmp_eq_u32 s3, s{S_LIM}")])
        put(24,[I(f"s_cselect_b32 s{S_WR}, s78, s3"), I(f"s_add_u32 s{S_LIM+1}, s{S_WR}, s{S_LIM+2}")])
    else:
        td=t+3
        put(1,[WV(("D",t+1),("wd",)), I("s_barrier"), I(f"s_cmp_eq_u32 s{S_CNT}, s{S_LIM+3}"), I(f"s_cbranch_scc1 L1_pub{wm}"), RAW(f"L1_pubr{wm}:")])
        put(2,[I(f"v_add_u32 v{V_XR}, s{S_RD}, v{V_XL}"), I(f"v_add_u32 v{V_WR}, s{S_RD}, v{V_WL}")])
        put(3,[I(f"v_add_u32 v{V_WR+1}, s{S_RD}, v{V_WL+1}"), I(f"v_add_u32 v{V_XR+1}, s{S_RD}, v{V_XL+1}")])
        dpos=[4,5,6,8,9,10,12,13,14,16,17,18,20,21,22,24]
        for g,r in zip(dpos,rds): put(g,r)
        for (k,i),g in zip([("x",0),("x",1),("x",2),("x",3),("w",0)],(7,11,15,19,23)):
            d=dma_x(td,i) if k=="x" else dma_w(td,i)
            if len(d)==2: put(g-1,d[0]); put(g,d[1])
            else: put(g,d[0])
    return weave(mf,gaps)
def body(it, wm):
    return step_ops(2*it,wm)+step_ops(2*it+1,wm)

def epilogue():
    o=[]; A=lambda s:o.append(I(s))
    A("s_waitcnt vmcnt(0) lgkmcnt(0)")
    A("s_barrier")
    A(f"v_mov_b32 v{V_CSA+17}, v{V_CSA+20}")
    A(f"s_mul_i32 s16, s{S_W}, 5120"); A(f"s_add_u32 s16, s16, {CS_SCR-20480}"); A(f"s_xor_b32 s17, s{S_W}, 2"); A("s_mul_i32 s17, s17, 5120"); A(f"s_add_u32 s17, s17, {CS_SCR-20480}")
    A("v_lshlrev_b32 v23, 4, v1"); A("v_add_u32 v24, s17, v23"); A("v_add_u32 v23, s16, v23")
    for q in range(5): o.append(DS(f"ds_write_b128 v23, v[{V_CSA+4*q}:{V_CSA+4*q+3}] offset:{q*1024}",("cw",)))
    o.append(WL(("cw",),"cw")); A("s_barrier")
    for q in range(5): o.append(DS(f"ds_read_b128 v[{2+4*q}:{5+4*q}], v24 offset:{q*1024}",("cr",)))
    o.append(WL(("cr",),"cr"))
    for q in range(18): A(f"v_add_f32 v{V_CSA+q}, v{V_CSA+q}, v{2+q}")
    A(f"s_and_b32 s16, s{S_W}, 1"); A(f"s_lshl_b32 s17, s{S_J}, 1"); A("s_add_u32 s16, s16, s17")
    A(f"s_lshr_b32 s17, s{S_W}, 1"); A("s_lshl_b32 s17, s17, 2"); A(f"s_lshl_b32 s18, s{S_MT}, 3"); A("s_add_u32 s17, s17, s18")
    A("s_lshl_b32 s16, s16, 7"); A("s_add_u32 s16, s16, s17"); A("s_lshl_b32 s16, s16, 10")
    A("v_lshlrev_b32 v23, 4, v1"); A("v_add_u32 v23, s16, v23")
    A(f"s_mov_b32 s17, {K_FO}"); A(f"s_mov_b32 s18, {VT_FO}"); A("s_mov_b32 s19, 0x3e8293ee")
    def qk(sec):
        for mb in range(4):
            mu=V_SQ+2*mb; rs=mu+1
            if sec==0: A(f"v_mul_f32 v25, s19, v{rs}")
            tq=(V_Q if sec==0 else V_K)+4*mb
            for h in range(2):
                nb=2*sec+h; a=acc(nb,mb); c=168+4*nb
                for e in range(2):
                    A(f"v_pk_fma_f32 v[{a+2*e}:{a+2*e+1}], v[{c+2*e}:{c+2*e+1}], v[{mu}:{mu+1}], v[{a+2*e}:{a+2*e+1}] op_sel:[0,0,0] op_sel_hi:[1,0,1] neg_lo:[0,1,0] neg_hi:[0,1,0]")
                if sec==0:
                    for e in range(2): A(f"v_pk_mul_f32 v[{a+2*e}:{a+2*e+1}], v[{a+2*e}:{a+2*e+1}], v[24:25] op_sel:[0,1] op_sel_hi:[1,1]")
                else:
                    for e in range(2): A(f"v_pk_mul_f32 v[{a+2*e}:{a+2*e+1}], v[{a+2*e}:{a+2*e+1}], v[{mu}:{mu+1}] op_sel:[0,1] op_sel_hi:[1,1]")
                A(f"v_cvt_pk_bf16_f32 v{tq+2*h}, v{a}, v{a+1}"); A(f"v_cvt_pk_bf16_f32 v{tq+2*h+1}, v{a+2}, v{a+3}")
            if sec==1: o.append(VM(f"buffer_store_dwordx4 v[{tq}:{tq+3}], v23, s[4:7], s17 offen offset:{mb*1024} sc1",("KV",)))
    qk(1)
    for gam in range(2):
        for db in range(2):
            tq=V_V+4*(2*gam+db)
            for h in range(2):
                mb=2*gam+h; a=acc(4+db,mb); sv=V_SV+8*mb
                for r in range(4):
                    A(f"v_fma_f32 v{a+r}, -v{sv+2*r}, v{184+db}, v{a+r}"); A(f"v_mul_f32 v{a+r}, v{a+r}, v{sv+2*r+1}")
                A(f"v_cvt_pk_bf16_f32 v{tq+2*h}, v{a}, v{a+1}"); A(f"v_cvt_pk_bf16_f32 v{tq+2*h+1}, v{a+2}, v{a+3}")
            o.append(VM(f"buffer_store_dwordx4 v[{tq}:{tq+3}], v23, s[4:7], s18 offen offset:{(gam*2+db)*1024} sc1",("KV",)))
    qk(0)
    return o

def gen():
    out=[]
    out.append(text(stamp("start")))
    e=entry()
    z=zero_sync()
    for op in z:
        if op.kind=="vm": op.kind="x"
    fill=P.fill()
    init=[I(f"s_lshr_b32 s{S_WM}, s{S_W}, 1"), I(f"s_lshl_b32 s78, s{S_W}, 12"), I(f"s_sub_u32 s{S_TO}, s{S_TO}, s76")]
    out.append(text(e))
    out.append(text(fill)); out.append(text(stamp("fiss")))
    ts=touch_setup()
    for _ in range(TA1): ts+=touch(False)
    out.append(text(ts))
    out.append(text(z)); out.append(text(early_loads()))
    out.append(text(init)); out.append(text(stamp("init")))
    pro=[WV(("D",0),"pd0"), I("s_barrier")]+[x_read(0,m) for m in range(4)]
    for nb in range(6): pro+=w_reads(0,nb)
    pro+=[I(f"s_mov_b32 s{S_CNT}, {RUNS[0]}"), I(f"s_mov_b32 s{S_LIM+3}, 99"), I("s_mov_b32 s33, 0")]
    bs=[]
    for wm in range(2):
        bodies=[body(i,wm) for i in range(3)]
        simulate(fill+pro+bodies[0]+bodies[1]+bodies[2])
        bs.append(resolve(bodies))
    out.append(text(pro)); out.append(text(stamp("p1loop")))
    out.append(f"L1_disp:\n    s_cmp_eq_u32 s{S_WM}, 1\n    s_cbranch_scc1 L1_loop1")
    for wm in range(2):
        out.append(f".p2align 6\nL1_loop{wm}:"); out.append(text(bs[wm]))
        out.append(f"    s_sub_u32 s{S_CNT}, s{S_CNT}, 1\n    s_cmp_lg_u32 s{S_CNT}, 0\n    s_cbranch_scc1 L1_loop{wm}")
        out.append("    s_branch L1_after")
    for wm in range(2):
        out.append(f"L1_pub{wm}:\n    v_mov_b32 v24, 1\n    buffer_atomic_add v24, v{V_L0}, {DBG}, 0 offen sc1\n    s_branch L1_pubr{wm}")
    out.append("L1_after:")
    mids=[]
    m0=early_proc()+stamp("early")
    m0+=[I(f"s_cmp_eq_u32 s{S_W}, 0"), I(f"s_cselect_b32 s{S_LIM+3}, {RUNS[1]-1}, 99")]
    mids.append(m0)
    mids.append([I(f"s_mov_b32 s{S_LIM+3}, 99")])
    mids.append(early_query())
    mids.append(mid_section())
    out.append("    s_add_u32 s33, s33, 1")
    for k in range(len(mids)):
        out.append(f"    s_cmp_eq_u32 s33, {k+1}\n    s_cbranch_scc1 L1_mid{k}")
    out.append("    s_branch L1_end")
    for k,m in enumerate(mids):
        out.append(f"L1_mid{k}:"); out.append(text(m)); out.append(f"    s_mov_b32 s{S_CNT}, {RUNS[k+1]}\n    s_branch L1_disp")
    out.append("L1_end:")
    out.append(text(stamp("p1end")))
    return "\n".join(out)
RUNS=[2,3,4,3,4]
assert sum(RUNS)==16
```

```python
from common import *
import p2 as P
import pw
import m1
from p2 import (V_SR,V_P,V_O,V_CG,V_MF,V_ML,V_CM,V_NM,V_MFM,V_MLM,V_ONE,V_M,NEG,q4)
KA=0; VA=80
def kfr(b):
    if b>=16: a=m1.V_K+4*(b-16); return f"v[{a}:{a+3}]"
    a=KA+4*b; return f"a[{a}:{a+3}]"
def vfr(gam,db):
    if gam>=8: a=m1.V_V+4*(2*(gam-8)+db); return f"v[{a}:{a+3}]"
    a=VA+4*(2*gam+db); return f"a[{a}:{a+3}]"
def qfr(i): a=m1.V_Q+4*i; return f"v[{a}:{a+3}]"
P.kfr=kfr; P.vfr=vfr; P.qfr=qfr
pw.S_MT=S_MT; pw.S_NT=S_J
V_A=16
S_R,S_HEAD,S_OA=23,34,35
CSG=140
GSRD="s[36:39]"
TBUF=pw.TBUF
CSG_LDS=TBUF+16384

def kv_publish_and_wait():
    o=[]; A=lambda s:o.append(I(s))
    o.append(WV(("KV",),"kvd")); A("s_barrier")
    L0=lbl("Lkv"); L=lbl("Lkv"); Pl=lbl("Lkvp")
    A(f"s_lshl_b32 s16, s{S_MT}, 4"); A(f"s_add_u32 s16, s16, s{S_J}"); A("s_lshl_b32 s16, s16, 8"); A(f"s_add_u32 s16, s16, {S_KV}")
    A(f"s_cmp_eq_u32 s{S_W}, 1"); A(f"s_cbranch_scc0 {L0}")
    A("v_add_u32 v24, 1, v1"); A("v_lshlrev_b32 v24, 12, v24"); A(f"s_sub_u32 s17, 15, s{S_MT}"); A("s_min_u32 s17, s17, 2")
    A(f"v_mov_b32 v25, {BIG}"); A("v_cmp_gt_u32 vcc, s17, v1"); A("s_nop 1"); A("v_cndmask_b32 v24, v25, v24, vcc")
    A("v_mov_b32 v25, 1"); A("buffer_atomic_add v25, v24, s[4:7], s16 offen sc1")
    o.append(RAW(f"{L0}:"))
    A(f"s_cmp_eq_u32 s{S_W}, 0"); A(f"s_cbranch_scc0 {L}")
    A(f"s_min_u32 s18, s{S_MT}, 2")
    A("s_mov_b32 s19, 0"); o.append(RAW(f"{Pl}:")); A("s_add_u32 s19, s19, 1"); A("s_cmp_gt_u32 s19, 300000"); A(f"s_cbranch_scc1 {L}")
    A(f"buffer_load_dword v24, v{V_L0}, s[4:7], s16 offen sc1"); A("s_waitcnt vmcnt(0)")
    A("v_readfirstlane_b32 s17, v24"); A("s_cmp_ge_u32 s17, s18"); A(f"s_cbranch_scc0 {Pl}")
    o.append(RAW(f"{L}:")); A("s_barrier")
    return o

def setup():
    o=[]; A=lambda s:o.append(I(s))
    A(f"s_and_b32 s16, s{S_W}, 1"); A(f"s_lshl_b32 s17, s{S_J}, 1"); A(f"s_add_u32 s{S_HEAD}, s16, s17")
    A(f"s_lshr_b32 s17, s{S_W}, 1"); A("s_lshl_b32 s17, s17, 2"); A(f"s_lshl_b32 s18, s{S_MT}, 3"); A(f"s_add_u32 s{S_R}, s17, s18")
    A(f"s_lshl_b32 s{S_OA}, s{S_R}, 5"); A(f"s_add_u32 s{S_OA}, s{S_OA}, s{S_HEAD}"); A(f"s_lshl_b32 s{S_OA}, s{S_OA}, 10"); A(f"s_add_u32 s{S_OA}, s{S_OA}, {O_FO}")
    A(f"v_lshlrev_b32 v{V_A}, 4, v1")
    for q in range(4):
        A(f"s_cmp_ge_i32 s{S_R}, {16-4*q}"); A(f"s_cselect_b32 s17, 0, {NEG}")
        for r in range(4): A(f"v_mov_b32 v{V_CG+4*q+r}, s17")
    A("v_and_b32 v17, 15, v1"); A("v_lshrrev_b32 v18, 4, v1"); A("v_lshlrev_b32 v18, 2, v18"); A(f"v_mov_b32 v19, {NEG}")
    for r in range(4):
        A(f"v_add_u32 v20, {r}, v18"); A("v_cmp_gt_u32 vcc, v20, v17"); A("s_nop 1")
        A(f"v_cndmask_b32 v{V_MF+r}, v19, v{V_CG+r}, vcc"); A(f"v_cndmask_b32 v{V_ML+r}, 0, v19, vcc")
    for r in range(4): A(f"v_mov_b32 v{V_ONE+r}, 0x3f803f80")
    st=pw.setup("L3",A_WO,O_FO,32*1024)
    i0=[k for k,op in enumerate(st) if op.text.startswith("v_lshrrev_b32 v23, 3, v1")][0]
    i1=[k for k,op in enumerate(st) if op.text=="s_waitcnt lgkmcnt(0)"][0]
    o+=st[i0:i1]
    A(f"s_lshl_b32 s16, s{S_J}, 7"); A(f"s_add_u32 s8, s{P_WO}, s16"); A(f"s_addc_u32 s9, s{P_WO+1}, 0"); A(f"s_sub_u32 s10, {1024*2048}, s16"); A("s_mov_b32 s11, 0x20000")
    return o

def kv_group(kind,q):
    base=K_FO if kind=="K" else VT_FO
    o=[I(f"s_add_u32 s31, s30, {base}"), I(f"s_add_i32 s31, s31, {(4*q-16)*1024}"), I(f"s_cmp_ge_i32 s{S_R}, {16-4*q}"), I(f"s_cselect_b32 s31, s31, {BIG}")]
    ld=[]
    for e in range(4):
        reg=kfr(4*q+e) if kind=="K" else vfr(2*q+e//2,e%2)
        ld.append(VM(f"buffer_load_dwordx4 {reg}, v{V_A}, s[4:7], s31 offen offset:{e*1024} sc1",(kind,q)))
    return [o+[ld[0]]]+[[x] for x in ld[1:]]
def kv_loads():
    o=[I(f"s_lshl_b32 s30, s{S_HEAD}, 7"), I(f"s_add_u32 s30, s30, s{S_R}"), I("s_lshl_b32 s30, s30, 10")]
    for q in range(3):
        for g in kv_group("K",q): o+=g
    return o

def sprinkle():
    g=[]
    g.append([I(f"s_lshl_b32 s{pw.S_WR}, s{S_W}, 13"), I(f"s_mov_b32 s{pw.S_WO}, 0")])
    for t in range(4):
        for i in range(8):
            d=pw.dma(t,i)
            if len(d)==2: g.append([d[0],I("s_nop 0"),d[1]])
            else: g.append(d)
        g.append([I(f"s_add_u32 s{pw.S_WO}, s{pw.S_WO}, {256*2048}"), I(f"s_add_u32 s{pw.S_WR}, s{pw.S_WR}, {pw.STAGE}")])
    g.append([I(f"s_lshl_b32 s27, s{S_W}, 16"), I(f"s_lshl_b32 s17, s{S_J}, 7"), I("s_add_u32 s27, s27, s17"),
              I("v_lshrrev_b32 v23, 3, v1"), I("v_mul_u32_u24 v23, 1920, v23"), I("v_lshlrev_b32 v24, 4, v1"), I("v_add_u32 v23, v23, v24"),
              I(f"s_lshl_b32 s28, s{S_W}, 12"), I(f"s_add_u32 s28, s28, {TBUF}")])
    for jj in range(4):
        g.append([I(f"s_add_u32 m0, s28, {jj*1024}"), I(f"s_add_u32 s18, s27, {jj*16384}"), VM(f"buffer_load_dwordx4 v23, s[12:15], s18 offen lds",("R",))])
    g.append([I(f"s_mov_b32 s29, {WBAR}"), I("v_lshlrev_b32 v21, 4, v0"), VM(f"buffer_load_dwordx4 v[140:143], v21, s[4:7], s29 offen sc1",("wb",))])
    g.append([I(f"s_lshl_b32 s29, s{S_MT}, 10"), I(f"s_lshl_b32 s17, s{S_W}, 8"), I("s_add_u32 s29, s29, s17"), I(f"s_add_u32 s29, s29, {STATS1}"),
              I("v_and_b32 v22, 15, v1"), I("v_lshlrev_b32 v22, 3, v22"),
              VM(f"buffer_load_dword v144, v22, s[4:7], s29 offen sc1",("mx",)), VM(f"buffer_load_dword v145, v22, s[4:7], s29 offen offset:128 sc1",("mx",))])
    return g

def attention(extra=()):
    early=kv_group("K",3)+kv_group("V",0)+kv_group("V",1)+kv_group("V",2)+kv_group("V",3)
    g=list(extra)+sprinkle(); out=[]
    for i in range(4):
        ops=P.qblock(i)
        res=[]; npass1=0
        for n,op in enumerate(ops):
            t=op.text or ""
            if op.kind in("wv",) and op.tag[0]=="Q": continue
            if op.kind=="wv" and op.tag[0]=="K" and op.tag[1]==4: continue
            if op.kind=="wv" and op.tag[0]=="V" and op.tag[1]==4: continue
            if op.kind=="vm" and "buffer_store_dwordx4" in t:
                op.text=f"buffer_store_dwordx4 {q4(76)}, v{V_A}, s[4:7], s{S_OA} offen sc1"; op.tag=("O",)
            if t=="s_add_u32 s25, s25, 32768": op.text=f"s_add_u32 s{S_OA}, s{S_OA}, 32768"
            res.append(op)
            if i==0 and early:
                if t.startswith("v_mfma") and npass1<17:
                    npass1+=1; res+=early.pop(0); continue
            if t.startswith("v_cvt_pk_bf16_f32") and (ops[n-1].text or "").startswith("v_cvt_pk_bf16_f32") and all(f"v{r}," not in t for r in (76,77,78,79)):
                if i==0 and early: res+=early.pop(0)
                elif g and i>0: res+=g.pop(0)
        out+=res
    assert not g and not early, (len(g),len(early))
    return out

WB_LDS=TBUF+16384
def wbar_to_lds():
    o=[]; A=lambda s:o.append(I(s))
    o.append(WV(("wb",),"wb"))
    A("v_lshlrev_b32 v21, 4, v0"); A(f"v_add_u32 v21, {WB_LDS}, v21")
    o.append(DS("ds_write_b128 v21, v[140:143]",("wbw",)))
    for r in range(4): A(f"v_mov_b32 v{148+r}, 0")
    o.append(DS("ds_write_b128 v21, v[148:151] offset:4096",("wbw",)))
    o.append(WL(("wbw",),"wbw"))
    return o
```

```python
from common import *
import pw, m2
from pw import (acc,accr,xr,wr_,V_DS,V_XO,S_XO,S_XEND,S_CNT,w_reads,TBUF)
XD=6
def x_load(n,mb): return VM(f"buffer_load_dwordx4 {xr(n,mb)}, v{V_XO+mb}, s[4:7], s{S_XO} offen sc1", ("X",n))
V_WB=20
V_MUX=144
V_MUA=64
WBA=192
def wb_read(n):
    a=WBA+(n%4)*4
    return DS(f"ds_read_b128 a[{a}:{a+3}], v{V_WB} offset:{(n%16)*128}",("W",n))
def step_ops(n):
    mf=[]; gaps={}
    def put(idx,ops): gaps.setdefault(idx,[]).extend(ops)
    for nb in range(4):
        a=wr_(n,nb)
        for mb in ((0,1) if nb%2==0 else (1,0)):
            mf.append(I(f"v_mfma_f32_16x16x32_bf16 {accr(nb,mb)}, a[{a}:{a+3}], {xr(n,mb)}, {accr(nb,mb)}"))
    a=WBA+(n%4)*4
    for mb in range(2):
        mf.append(I(f"v_mfma_f32_16x16x32_bf16 v[{V_MUA+4*mb}:{V_MUA+4*mb+3}], a[{a}:{a+3}], {xr(n,mb)}, v[{V_MUA+4*mb}:{V_MUA+4*mb+3}]"))
    put(9,[wb_read(n+2)])
    put(0,[WV(("X",n),("wx",n%16)), WL(("W",n),("wl",n%16))])
    na=n+2
    if na%16==0: put(1,[I(f"v_xor_b32 v{V_DS+u}, {2*pw.STAGE}, v{V_DS+u}") for u in range(4)]+[I(f"v_xor_b32 v{V_WB}, 2048, v{V_WB}")])
    for nb in range(4):
        r=w_reads(na,nb); put(1+2*nb,[r[0]]); put(2+2*nb,[r[1]])
    put(2,[x_load(n+XD,0)]); put(5,[x_load(n+XD,1)])
    put(6,[I(f"s_add_u32 s{S_XO}, s{S_XO}, 1024")]); put(7,[I(f"s_cmp_ge_u32 s{S_XO}, s{S_XEND}")]); put(8,[I(f"s_cselect_b32 s{S_XO}, {BIG}, s{S_XO}")])
    return weave(mf,gaps)
def body(it):
    o=[]
    for n in range(16*it,16*it+16): o+=step_ops(n)
    return o
def resid_unpack(): return pw.resid_p3_unpack()
def x_fill():
    o=[I(f"s_mov_b32 s{S_XO}, 0"), I(f"s_mov_b32 s{S_XEND}, {32*1024}")]
    for n in range(XD):
        o+= [x_load(n,0), x_load(n,1), I(f"s_add_u32 s{S_XO}, s{S_XO}, 1024")]
    return o
def first_reads():
    o=[]
    for n in range(2):
        for nb in range(4): o+=w_reads(n,nb)
        o.append(wb_read(n))
    return o
def wb_setup():
    o=[]; A=lambda s:o.append(I(s))
    A("v_and_b32 v23, 3, v1"); A("v_lshrrev_b32 v24, 4, v1"); A("v_lshlrev_b32 v24, 1, v24"); A("v_add_u32 v24, v24, v23"); A("v_lshlrev_b32 v24, 4, v24")
    A(f"v_add_u32 v24, {m2.WB_LDS}, v24"); A(f"v_mov_b32 v25, {m2.WB_LDS+4096}"); A("v_cmp_gt_u32 vcc, 2, v23"); A("s_nop 1"); A(f"v_cndmask_b32 v{V_WB}, v25, v24, vcc")
    for r in range(8): A(f"v_mov_b32 v{V_MUA+r}, 0")
    return o
def epilogue_stores():
    o=[]; A=lambda s:o.append(I(s))
    A("s_nop 7")
    for mb in range(2):
        A(f"v_add_f32 v{V_MUA+4*mb}, v{V_MUA+4*mb}, v{V_MUA+4*mb+1}"); A(f"v_add_f32 v{V_MUA+4*mb}, v{V_MUA+4*mb}, v{V_MUX+mb}")
    A(f"s_lshl_b32 s16, s{S_MT}, 2"); A(f"s_add_u32 s16, s16, s{S_W}"); A("s_lshl_b32 s16, s16, 16")
    A(f"s_lshl_b32 s17, s{S_J}, 11"); A("s_add_u32 s16, s16, s17"); A(f"s_add_u32 s16, s16, {H_FO}")
    A("v_lshlrev_b32 v23, 4, v1"); A("v_add_u32 v23, s16, v23"); A("v_add_u32 v24, 32768, v23")
    for mb in range(2):
        m=V_MUA+4*mb
        for j in range(2):
            r=96+(mb*2+j)*4
            for h in range(2):
                a=acc(2*j+h,mb)
                for q in range(2): A(f"v_pk_add_f32 v[{a+2*q}:{a+2*q+1}], v[{a+2*q}:{a+2*q+1}], v[{m}:{m+1}] op_sel:[0,0] op_sel_hi:[1,0] neg_lo:[0,1] neg_hi:[0,1]")
                A(f"v_cvt_pk_bf16_f32 v{r+2*h}, v{a}, v{a+1}"); A(f"v_cvt_pk_bf16_f32 v{r+2*h+1}, v{a+2}, v{a+3}")
            o.append(VM(f"buffer_store_dwordx4 v[{r}:{r+3}], v{23+mb}, s[4:7], 0 offen offset:{j*1024} sc1",("H",)))
    A(f"s_lshl_b32 s16, s{S_MT}, 9"); A(f"s_lshl_b32 s17, s{S_W}, 7"); A("s_add_u32 s16, s16, s17"); A(f"s_add_u32 s16, s16, {MU2}")
    A(f"s_cmp_eq_u32 s{S_J}, 0"); A(f"s_cselect_b32 s16, s16, {BIG}")
    A("v_lshrrev_b32 v26, 4, v1"); A("v_cmp_eq_u32 vcc, 1, v26"); A("v_lshlrev_b32 v25, 2, v1"); A("s_nop 0")
    A(f"v_cndmask_b32 v27, v{V_MUA}, v{V_MUA+4}, vcc"); A("v_cmp_gt_u32 vcc, 32, v1"); A(f"v_mov_b32 v28, {BIG}"); A("s_nop 0"); A("v_cndmask_b32 v25, v28, v25, vcc")
    o.append(VM("buffer_store_dword v27, v25, s[4:7], s16 offen sc1",("H",)))
    for mb in range(2):
        S=112+4*mb; Q=S+2
        a=acc(0,mb)
        A(f"v_pk_add_f32 v[{S}:{S+1}], v[{a}:{a+1}], v[{a+2}:{a+3}]"); A(f"v_pk_mul_f32 v[{Q}:{Q+1}], v[{a}:{a+1}], v[{a}:{a+1}]")
        A(f"v_pk_fma_f32 v[{Q}:{Q+1}], v[{a+2}:{a+3}], v[{a+2}:{a+3}], v[{Q}:{Q+1}]")
        for nb in range(1,4):
            a=acc(nb,mb)
            for q in range(2):
                A(f"v_pk_add_f32 v[{S}:{S+1}], v[{S}:{S+1}], v[{a+2*q}:{a+2*q+1}]")
                A(f"v_pk_fma_f32 v[{Q}:{Q+1}], v[{a+2*q}:{a+2*q+1}], v[{a+2*q}:{a+2*q+1}], v[{Q}:{Q+1}]")
        A(f"v_add_f32 v{120+2*mb}, v{S}, v{S+1}"); A(f"v_add_f32 v{121+2*mb}, v{Q}, v{Q+1}")
    swap_sum(A,[120,121,122,123],124,"v_permlane16_swap_b32"); swap_sum(A,[120,121,122,123],124,"v_permlane32_swap_b32")
    A(f"s_lshl_b32 s16, s{S_MT}, 2"); A(f"s_add_u32 s16, s16, s{S_W}"); A("s_lshl_b32 s16, s16, 12")
    A(f"s_lshl_b32 s17, s{S_J}, 7"); A("s_add_u32 s16, s16, s17"); A(f"s_add_u32 s16, s16, {STATS2}")
    A("v_and_b32 v23, 15, v1"); A("v_lshlrev_b32 v23, 3, v23"); A("v_lshrrev_b32 v24, 4, v1")
    A("v_lshlrev_b32 v25, 11, v24"); A("v_add3_u32 v23, v23, v25, s16")
    A("v_cmp_eq_u32 vcc, 1, v24"); A("s_nop 1")
    A("v_cndmask_b32 v120, v120, v122, vcc"); A("v_cndmask_b32 v121, v121, v123, vcc")
    A("v_cmp_gt_u32 vcc, 2, v24"); A(f"v_mov_b32 v25, {BIG}"); A("s_nop 0")
    A("v_cndmask_b32 v23, v25, v23, vcc")
    o.append(VM("buffer_store_dwordx2 v[120:121], v23, s[4:7], 0 offen sc1",("H",)))
    return o

def full(extra):
    o=[]; extra=list(extra)
    for n in range(32):
        st=step_ops(n)
        if n==16:
            st=[WL([("W",15)],"p3b"), I("s_barrier")]+st
        if n>=17 and extra:
            mf=[i for i,op in enumerate(st) if op.text and op.text.startswith("v_mfma")]
            k=mf[7]; st=st[:k]+extra.pop(0)+st[k:]
        o+=st
    assert not extra
    return o
```

```python
from common import *
import p4 as P
from p4 import (acc,accr,STAGE,NST,CSL,S_XO,S_WO,S_WR,S_RD,S_CNT,V_DSL,V_DS,V_WO,V_XO,dma,w_reads,D)
S_NT,S_M8=34,35
P.S_NT=S_NT; P.S_M8=S_M8
V_R2=2
_xl=P.x_load
def x_load(n,mb):
    op=_xl(n,mb); op.text+=" sc1"; return op
P.x_load=x_load

def ids():
    o=[]; A=lambda s:o.append(I(s))
    A("s_and_b32 s3, s2, 7"); A("s_lshl_b32 s3, s3, 2"); A("s_lshr_b32 s16, s2, 3"); A("s_and_b32 s16, s16, 3")
    A(f"s_add_u32 s{S_NT}, s3, s16"); A(f"s_lshr_b32 s{S_M8}, s2, 5")
    return o
def w_setup():
    o=[]; A=lambda s:o.append(I(s))
    A(f"s_and_b32 s16, s{S_W}, 1"); A("s_mul_i32 s16, s16, 448"); A("s_movk_i32 s17, 4682"); A("s_movk_i32 s18, 7168")
    for i in range(7):
        A(f"v_add_u32 v23, s16, v1")
        if i: A(f"v_add_u32 v23, {64*i}, v23")
        A("v_mul_lo_u32 v24, v23, s17"); A("v_lshrrev_b32 v24, 16, v24")
        A("v_mul_u32_u24 v25, 14, v24"); A("v_sub_u32 v25, v23, v25"); A("v_lshlrev_b32 v25, 4, v25")
        A(f"v_mul_lo_u32 v24, v24, s18"); A(f"v_add_u32 v{V_WO+i}, v24, v25")
    A(f"s_cmp_ge_u32 s{S_W}, 2"); A(f"s_cselect_b32 s8, s{P_WU}, s{P_WG}"); A(f"s_cselect_b32 s9, s{P_WU+1}, s{P_WG+1}")
    A(f"s_mul_i32 s16, s{S_NT}, 224"); A("s_add_u32 s8, s8, s16"); A("s_addc_u32 s9, s9, 0")
    A(f"s_sub_u32 s10, {1024*7168}, s16"); A("s_mov_b32 s11, 0x20000")
    A(f"s_mul_i32 s{S_WR}, s{S_W}, 7168"); A(f"s_mov_b32 s{S_WO}, 0")
    return o
def w_fill():
    o=[]; A=lambda s:o.append(I(s))
    for t in range(3):
        for i in range(7 if t<2 else 4):
            d=dma(t,i); o.extend([d[0],I("s_nop 0"),d[1]])
        if t<2: A(f"s_add_u32 s{S_WO}, s{S_WO}, {64*7168}"); A(f"s_add_u32 s{S_WR}, s{S_WR}, {STAGE}")
    return o
def w_fill_rest():
    o=[]; A=lambda s:o.append(I(s))
    L0=lbl("Lf4"); L1=lbl("Lf4")
    def pieces(so,wr,reg):
        r=[]
        for t,n in ((1,7),(2,4)):
            for i in range(n):
                r.append(I(f"s_add_u32 m0, s{wr}, {i*1024+(t-1)*STAGE}")); r.append(I(f"s_add_u32 s18, s{so}, {(t-1)*64*7168}"))
                txt=f"buffer_load_dwordx4 v{V_WO+i}, s[8:11], s18 offen lds"
                r.append(VM(txt,("D",t)) if reg else I(txt))
        return r
    A(f"s_add_u32 s{S_WO}, s{S_WO}, {64*7168}"); A(f"s_add_u32 s{S_WR}, s{S_WR}, {STAGE}")
    own=pieces(S_WO,S_WR,True)
    A(f"s_cmp_eq_u32 s{S_W}, 0"); A(f"s_cbranch_scc1 {L0}")
    o+=own
    A(f"s_cmp_eq_u32 s{S_W}, 1"); A(f"s_cbranch_scc0 {L0}")
    A(f"s_sub_u32 s16, s{S_WO}, {32*7168}"); A(f"s_sub_u32 s17, s{S_WR}, 7168")
    o+=pieces(16,17,False)
    o.append(RAW(f"{L0}:"))
    A(f"s_add_u32 s{S_WO}, s{S_WO}, {64*7168}"); A(f"s_add_u32 s{S_WR}, s{S_WR}, {STAGE}")
    return o
def rest_setup():
    o=[]; A=lambda s:o.append(I(s))
    A("v_lshrrev_b32 v23, 2, v1"); A("v_mul_u32_u24 v23, 224, v23"); A("v_and_b32 v24, 3, v1"); A("v_lshlrev_b32 v24, 3, v24")
    A(f"v_add_u32 v{V_DSL}, v23, v24"); A(f"v_mov_b32 v{V_DS}, v{V_DSL}")
    A(f"s_lshl_b32 s16, s{S_M8}, 2"); A(f"s_add_u32 s16, s16, s{S_W}"); A("s_lshl_b32 s16, s16, 17")
    A(f"s_add_u32 s17, s16, {H_FO}"); A("v_lshlrev_b32 v23, 4, v1")
    for mb in range(4):
        A(f"v_add_u32 v{V_XO+mb}, s17, v23")
        if mb<3: A(f"s_add_u32 s17, s17, 32768")
    A(f"s_mov_b32 s{S_RD}, 0"); A(f"s_mov_b32 s{S_XO}, 0")
    A(f"s_mul_i32 s{S_CNT+1}, s{S_W}, 7168"); A(f"s_add_u32 s{S_CNT+1}, s{S_CNT+1}, {NST*STAGE}")
    for i in list(range(32,128))+[144,145]: A(f"v_mov_b32 v{i}, 0")
    return o
def x_fill():
    o=[]
    for t in range(3):
        for mb in range(4): o.append(x_load(t,mb))
        o.append(I(f"s_add_u32 s{S_XO}, s{S_XO}, 1024"))
    return o
def start():
    o=[WV(("D",0),"pd0"), I("s_barrier")]
    for f in range(D): o.extend(w_reads(0,f))
    return o
V_T=17; V_T2=29; S_TO=77; S_TO2=79
def touch_setup():
    o=[]; A=lambda s:o.append(I(s))
    A(f"s_cmp_ge_u32 s{S_W}, 2"); A(f"s_cselect_b32 s80, s{P_WU}, s{P_WG}"); A(f"s_cselect_b32 s81, s{P_WU+1}, s{P_WG+1}"); A(f"s_mov_b32 s82, {1024*7168}"); A("s_mov_b32 s83, 0x20000")
    A("s_lshr_b32 s16, s2, 2"); A("s_mul_i32 s16, s16, 7168"); A("s_and_b32 s17, s2, 3"); A("s_mul_i32 s17, s17, 14"); A(f"s_and_b32 s18, s{S_W}, 1"); A("s_mul_i32 s18, s18, 7"); A("s_add_u32 s17, s17, s18"); A("s_lshl_b32 s17, s17, 7"); A("s_add_u32 s16, s16, s17")
    A(f"v_lshlrev_b32 v{V_T}, 7, v1"); A(f"v_add_u32 v{V_T}, s16, v{V_T}"); A(f"v_mov_b32 v24, {BIG}"); A("v_cmp_gt_u32 vcc, 7, v1"); A("s_nop 1"); A(f"v_cndmask_b32 v{V_T}, v24, v{V_T}, vcc")
    A(f"s_mov_b32 s36, s{P_WD}"); A(f"s_mov_b32 s37, s{P_WD+1}"); A(f"s_mov_b32 s38, {3584*2048}"); A("s_mov_b32 s39, 0x20000")
    A(f"s_mul_i32 s16, s2, {224*128}"); A(f"s_mul_i32 s17, s{S_W}, {56*128}"); A("s_add_u32 s16, s16, s17")
    A(f"v_lshlrev_b32 v{V_T2}, 7, v1"); A(f"v_add_u32 v{V_T2}, s16, v{V_T2}"); A(f"v_cndmask_b32 v{V_T2}, v24, v{V_T2}, vcc")
    A(f"s_mov_b32 s{S_TO2}, 0")
    return o
def touch(reg=True):
    t=f"buffer_load_dword v28, v{V_T}, s[80:83], s{S_TO} offen"
    return [VM(t,("T",)) if reg else I(t), I(f"s_add_u32 s{S_TO}, s{S_TO}, {64*7168}")]
def touch_wd():
    return [VM(f"buffer_load_dword v28, v{V_T2}, s[36:39], s{S_TO2} offen",("T",)), I(f"s_add_u32 s{S_TO2}, s{S_TO2}, {7*128}")]
def body(it):
    out=[]
    for n in range(4*it,4*it+4):
        st=P.step_ops(n)
        mf=[i for i,op in enumerate(st) if op.text and op.text.startswith("v_mfma")]
        if n%2==0:
            k=mf[2]; st=st[:k]+touch()+st[k:]
        if n%4==1:
            k=mf[2]; st=st[:k]+touch_wd()+st[k:]
        out+=st
    return out
AX=96
def mid_loads():
    o=[]; A=lambda s:o.append(I(s))
    A(f"s_lshl_b32 s16, s{S_M8}, 2"); A(f"s_add_u32 s16, s16, s{S_W}"); A("s_lshl_b32 s16, s16, 13"); A(f"s_add_u32 s16, s16, {STATS2}")
    A("v_and_b32 v4, 15, v1"); A("v_lshlrev_b32 v4, 3, v4"); A("v_lshrrev_b32 v5, 4, v1"); A("v_lshlrev_b32 v5, 9, v5")
    A("v_add_u32 v4, v4, v5"); A("v_add_u32 v4, s16, v4")
    for mb in range(4):
        A(f"s_mov_b32 s17, {mb*2048}")
        for i in range(4):
            r=AX+8+(mb*4+i)*2
            A(f"buffer_load_dwordx2 a[{r}:{r+1}], v4, s[4:7], s17 offen offset:{i*128} sc1")
    return o
def epi_prep():
    o=[]; A=lambda s:o.append(I(s))
    for mb in range(4):
        for c in range(2):
            r=AX+8+mb*8+c; d=2+2*mb+c
            A(f"v_accvgpr_read_b32 v{d}, a{r}")
            for i in range(1,4):
                A(f"v_accvgpr_read_b32 v27, a{r+2*i}"); A(f"v_add_f32 v{d}, v{d}, v27")
    regs=list(range(2,10))
    swap_sum(A,regs,10,"v_permlane16_swap_b32"); swap_sum(A,regs,10,"v_permlane32_swap_b32")
    A("s_mov_b32 s16, 0x3a800000"); A("s_mov_b32 s17, 0x3727c5ac")
    for mb in range(4):
        r=2+2*mb
        A(f"v_mul_f32 v{r}, s16, v{r}"); A(f"v_mul_f32 v{r+1}, s16, v{r+1}")
        A(f"v_fma_f32 v{r+1}, -v{r}, v{r}, v{r+1}"); A(f"v_add_f32 v{r+1}, s17, v{r+1}")
        A(f"v_rcp_f32 v{V_R2+mb}, v{r+1}")
    A(f"s_lshl_b32 s16, s{S_M8}, 4"); A(f"s_lshl_b32 s17, s{S_W}, 2"); A("s_add_u32 s16, s16, s17")
    A("s_mul_i32 s16, s16, 112"); A(f"s_mul_i32 s17, s{S_NT}, 7"); A("s_lshr_b32 s17, s17, 1"); A("s_add_u32 s16, s16, s17")
    A("s_lshl_b32 s16, s16, 10"); A(f"s_add_u32 s16, s16, {ACT_FO}")
    A("v_lshlrev_b32 v26, 4, v1")
    for mb in range(4):
        A(f"v_add_u32 v{V_XO+mb}, s16, v26"); A(f"s_add_u32 s16, s16, {112*1024}")
    A("s_barrier")
    return o
def epilogue(parity, extra):
    o=[]; A=lambda s:o.append(I(s))
    extra=list(extra); nst=[0]
    o+=extra.pop(0)+extra.pop(0)
    if parity==0: pairs=[(0,1,0),(2,3,1),(4,5,2),(6,None,3)]
    else: pairs=[(None,0,0),(1,2,1),(3,4,2),(5,6,3)]
    def bc(reg): return (reg&~1, reg&1)
    for (ba,bb,go) in pairs:
        for mb in range(4):
            for pos,nb in enumerate((ba,bb)):
                if nb is None: continue
                g=acc(nb,mb); u=acc(nb+7,mb); mp,hi=bc(V_R2+mb)
                for h in range(2): A(f"v_pk_mul_f32 v[{g+2*h}:{g+2*h+1}], v[{g+2*h}:{g+2*h+1}], v[{u+2*h}:{u+2*h+1}]")
                for h in range(2): A(f"v_pk_mul_f32 v[{g+2*h}:{g+2*h+1}], v[{g+2*h}:{g+2*h+1}], v[{mp}:{mp+1}] op_sel:[0,{hi}] op_sel_hi:[1,{hi}]")
                d = g if (pos==0 or ba is None) else acc(ba,mb)+2
                A(f"v_cvt_pk_bf16_f32 v{d}, v{g}, v{g+1}"); A(f"v_cvt_pk_bf16_f32 v{d+1}, v{g+2}, v{g+3}")
            if ba is not None and bb is not None:
                a=acc(ba,mb); o.append(VM(f"buffer_store_dwordx4 v[{a}:{a+3}], v{V_XO+mb}, s[4:7], 0 offen offset:{go*1024} sc1",("ACT",)))
            elif bb is None:
                a=acc(ba,mb); o.append(VM(f"buffer_store_dwordx2 v[{a}:{a+1}], v{V_XO+mb}, s[4:7], 0 offen offset:{go*1024} sc1",("ACT",)))
            else:
                a=acc(bb,mb); o.append(VM(f"buffer_store_dwordx2 v[{a}:{a+1}], v{V_XO+mb}, s[4:7], 0 offen offset:{go*1024+8} sc1",("ACT",)))
            nst[0]+=1
            if nst[0]<16 and extra: o+=extra.pop(0)
    assert not extra
    return o
```

```python
from common import *
import pw
S_MT5,S_NT5,S_KH,S_N2=68,69,70,71
ACC0=32
def acc(nb,mb): return ACC0+(nb*2+mb)*4
def accr(nb,mb): a=acc(nb,mb); return f"v[{a}:{a+3}]"
XA0=0; WA0=64
def xr(n,mb): a=XA0+(n%8)*8+mb*4; return f"a[{a}:{a+3}]"
def wa(n,nb): return WA0+(n%2)*32+nb*4
STAGE=32768; NST=4
S_XO,S_WO,S_WR,S_CNT,S_XEND=24,25,26,28,29
V_DS=2
V_WO=18
V_XO=26
XD=7
def x_load(n,mb): return VM(f"buffer_load_dwordx4 {xr(n,mb)}, v{V_XO+mb}, s[4:7], s{S_XO} offen sc1",("X",n))
def dma(t,i):
    o=[]
    if i%4==0: o.append(I(f"s_add_u32 m0, s{S_WR}, {(i//4)*4096}"))
    o.append(VM(f"buffer_load_dwordx4 v{V_WO+i}, s[12:15], s{S_WO} offen offset:{(i%4)*1024} lds",("D",t)))
    return o
def w_reads(n,nb):
    a=wa(n,nb); t=n//4
    o=(t%2)*STAGE+(n%4)*8192
    return [DS(f"ds_read_b64_tr_b16 a[{a}:{a+1}], v{V_DS+nb} offset:{o}",("W",n,nb)),
            DS(f"ds_read_b64_tr_b16 a[{a+2}:{a+3}], v{V_DS+nb} offset:{o+4096}",("W",n,nb))]
def step_ops(n):
    t=n//4; s=n%4
    mf=[]; gaps={}
    def put(idx,ops): gaps.setdefault(idx,[]).extend(ops)
    for nb in range(8):
        a=wa(n,nb); base=len(mf)
        for mb in ((0,1) if nb%2==0 else (1,0)):
            mf.append(I(f"v_mfma_f32_16x16x32_bf16 {accr(nb,mb)}, a[{a}:{a+3}], {xr(n,mb)}, {accr(nb,mb)}"))
        w=[WL(("W",n,nb),("wl",n%8,nb))] if nb%2==0 or True else []
        if nb==0: w=[WV(("X",n),("wx",n%8))]+w
        put(base,w)
    na=n+1
    pre=[]
    if na%4==0:
        pre=[WV(("D",na//4),("wd",n%8)), I("s_barrier")]
        if (na//4)%2==0: pre+=[I(f"v_xor_b32 v{V_DS+u}, {2*STAGE}, v{V_DS+u}") for u in range(8)]
    put(1,pre)
    for nb in range(8):
        r=w_reads(na,nb); put(1+2*nb,[r[0]]); put(2+2*nb,[r[1]])
    put(3,[x_load(n+XD,0)]); put(9,[x_load(n+XD,1)])
    put(10,[I(f"s_add_u32 s{S_XO}, s{S_XO}, 1024")]); put(11,[I(f"s_cmp_ge_u32 s{S_XO}, s{S_XEND}")]); put(12,[I(f"s_cselect_b32 s{S_XO}, {BIG}, s{S_XO}")])
    if s==3: td,i0=t+3,0
    else: td,i0=t+2,2*(s+1)
    for k,pos in ((0,6),(1,14)):
        d=dma(td,i0+k)
        if len(d)==2: put(pos-1,[d[0]]); put(pos,[d[1]])
        else: put(pos,[d[0]])
    if s==2:
        put(15,[I(f"s_add_u32 s{S_WO}, s{S_WO}, {128*2048}")]); put(16,[I(f"s_add_u32 s{S_WR}, s{S_WR}, {STAGE}"), I(f"s_and_b32 s{S_WR}, s{S_WR}, {NST*STAGE-1}")])
    return weave(mf,gaps)
def body(it):
    o=[]
    for n in range(8*it,8*it+8): o+=step_ops(n)
    return o
def ids():
    o=[]; A=lambda s:o.append(I(s))
    A("s_and_b32 s3, s2, 7"); A("s_lshr_b32 s16, s2, 3")
    A(f"s_and_b32 s{S_KH}, s3, 1"); A("s_lshr_b32 s17, s3, 1"); A("s_lshl_b32 s17, s17, 1"); A("s_and_b32 s18, s16, 1"); A("s_add_u32 s17, s17, s18"); A("s_lshr_b32 s18, s2, 7"); A("s_lshl_b32 s18, s18, 3"); A(f"s_add_u32 s{S_MT5}, s17, s18")
    A(f"s_bfe_u32 s{S_NT5}, s16, 0x30001"); A(f"s_lshl_b32 s{S_N2}, s{S_NT5}, 1"); A(f"s_add_u32 s{S_N2}, s{S_N2}, s{S_KH}")
    return o
def w_setup():
    o=[]; A=lambda s:o.append(I(s))
    A("v_lshrrev_b32 v4, 4, v1"); A("v_bfe_u32 v5, v1, 1, 3"); A("v_and_b32 v26, 1, v1"); A("v_lshlrev_b32 v26, 4, v26")
    A(f"s_lshl_b32 s16, s{S_W}, 16")
    for i in range(8):
        A(f"v_add_u32 v27, {(4*i)&7}, v4"); A("v_xor_b32 v27, v27, v5"); A("v_lshlrev_b32 v27, 5, v27"); A("v_add_u32 v27, v27, v26")
        A(f"v_add_u32 v28, {4*i}, v4"); A("v_lshlrev_b32 v28, 11, v28"); A("v_add3_u32 v27, v27, v28, s16")
        if i%4: A(f"v_subrev_u32 v{V_WO+i}, {(i%4)*1024}, v27")
        else: A(f"v_mov_b32 v{V_WO+i}, v27")
    A(f"s_mul_i32 s16, s{S_KH}, {1792*2048}"); A(f"s_lshl_b32 s17, s{S_NT5}, 8"); A("s_add_u32 s16, s16, s17")
    A(f"s_add_u32 s12, s{P_WD}, s16"); A(f"s_addc_u32 s13, s{P_WD+1}, 0"); A(f"s_sub_u32 s14, {1792*2048}, s17"); A("s_mov_b32 s15, 0x20000")
    return o
def w_fill():
    o=[]; A=lambda s:o.append(I(s))
    for t in range(3):
        for i in range(8 if t<2 else 2):
            d=dma(t,i)
            if len(d)==2: o.extend([d[0],I("s_nop 0"),d[1]])
            else: o.extend(d)
        if t<2: A(f"s_add_u32 s{S_WO}, s{S_WO}, {128*2048}"); A(f"s_add_u32 s{S_WR}, s{S_WR}, {STAGE}")
    return o
def w_fill_groups():
    g=[]
    for t,n in ((0,8),(1,8),(2,2)):
        for i in range(n):
            o=[]
            if t==0 and i==0: o+=[I(f"s_lshl_b32 s{S_WR}, s{S_W}, 13"), I(f"s_mov_b32 s{S_WO}, 0")]
            if t>0 and i==0: o+=[I(f"s_add_u32 s{S_WO}, s{S_WO}, {128*2048}"), I(f"s_add_u32 s{S_WR}, s{S_WR}, {STAGE}")]
            d=dma(t,i)
            o+= [d[0],I("s_nop 0"),d[1]] if len(d)==2 else d
            g.append(o)
    return g
def w_fill_all():
    o=[]; A=lambda s:o.append(I(s))
    L0=lbl("Lf5")
    def pieces(so,wr,reg):
        r=[]
        for t,n in ((0,8),(1,8),(2,2)):
            r.append(I(f"s_add_u32 s18, s{so}, {t*128*2048}"))
            for i in range(n):
                if i%4==0: r.append(I(f"s_add_u32 m0, s{wr}, {t*STAGE+(i//4)*4096}")); r.append(I("s_nop 0"))
                if reg: r.append(VM(f"buffer_load_dwordx4 v{V_WO+i}, s[12:15], s18 offen offset:{(i%4)*1024} lds",("D",t)))
                else:   r.append(I(f"buffer_load_dwordx4 v{96+20+i}, s[12:15], s18 offen offset:{(i%4)*1024} lds"))
        return r
    own=pieces(S_WO,S_WR,True)
    A(f"s_cmp_eq_u32 s{S_W}, 0"); A(f"s_cbranch_scc1 {L0}")
    o+=own
    A(f"s_cmp_eq_u32 s{S_W}, 1"); A(f"s_cbranch_scc0 {L0}")
    for i in range(8): A(f"v_subrev_u32 v{96+20+i}, {32*2048}, v{V_WO+i}")
    A(f"s_sub_u32 s17, s{S_WR}, 8192")
    o+=pieces(S_WO,17,False)
    o.append(RAW(f"{L0}:"))
    A(f"s_add_u32 s{S_WO}, s{S_WO}, {2*128*2048}"); A(f"s_add_u32 s{S_WR}, s{S_WR}, {2*STAGE}"); A(f"s_mov_b32 m0, s{S_WR}")
    return o
def rest_setup():
    o=[]; A=lambda s:o.append(I(s))
    A("v_lshrrev_b32 v28, 2, v1"); A("v_lshlrev_b32 v29, 8, v28"); A("v_and_b32 v31, 7, v28"); A("v_lshlrev_b32 v31, 5, v31"); A("v_add_u32 v29, v29, v31")
    A("v_and_b32 v31, 3, v1"); A("v_lshlrev_b32 v31, 3, v31"); A("v_add_u32 v29, v29, v31")
    A(f"s_lshl_b32 s16, s{S_KH}, 7")
    for nb in range(8):
        A(f"s_xor_b32 s17, s16, {nb*32}"); A(f"v_xor_b32 v{V_DS+nb}, s17, v29")
    A(f"s_lshl_b32 s16, s{S_MT5}, 2"); A(f"s_add_u32 s16, s16, s{S_W}"); A(f"s_mul_i32 s16, s16, {2*112*1024}"); A(f"s_mul_i32 s17, s{S_KH}, {56*1024}"); A("s_add_u32 s16, s16, s17")
    A(f"s_add_u32 s16, s16, {ACT_FO}"); A("v_lshlrev_b32 v28, 4, v1"); A(f"v_add_u32 v{V_XO}, s16, v28"); A(f"v_add_u32 v{V_XO+1}, {112*1024}, v{V_XO}")
    A(f"s_mov_b32 s{S_XO}, 0"); A(f"s_mov_b32 s{S_XEND}, {56*1024}")
    return o
def resid():
    r=[]; A=lambda s:r.append(I(s))
    A(f"s_lshl_b32 s16, s{S_MT5}, 2"); A(f"s_add_u32 s16, s16, s{S_W}"); A("s_lshl_b32 s16, s16, 16")
    A(f"s_lshl_b32 s17, s{S_N2}, 11"); A("s_add_u32 s16, s16, s17"); A(f"s_add_u32 s16, s16, {H_FO}")
    A("v_lshlrev_b32 v28, 4, v1"); A("v_add_u32 v28, s16, v28"); A("v_add_u32 v29, 32768, v28")
    for mb in range(2):
        for j in range(2):
            q=96+(mb*2+j)*4
            r.append(VM(f"buffer_load_dwordx4 v[{q}:{q+3}], v{28+mb}, s[4:7], 0 offen offset:{j*1024} sc1",("R",)))
    A(f"s_lshl_b32 s16, s{S_MT5}, 9"); A(f"s_lshl_b32 s17, s{S_W}, 7"); A("s_add_u32 s16, s16, s17"); A(f"s_add_u32 s16, s16, {MU2}")
    A("v_and_b32 v28, 15, v1"); A("v_lshlrev_b32 v28, 2, v28")
    r.append(VM("buffer_load_dword v112, v28, s[4:7], s16 offen sc1",("R",))); r.append(VM("buffer_load_dword v114, v28, s[4:7], s16 offen offset:64 sc1",("R",)))
    u=pw.resid_p5_unpack()
    for mb in range(2):
        for nb in range(4):
            a=acc(nb,mb)
            for h in range(2): u.append(I(f"v_pk_add_f32 v[{a+2*h}:{a+2*h+1}], v[{a+2*h}:{a+2*h+1}], v[{112+2*mb}:{113+2*mb}] op_sel:[0,0] op_sel_hi:[1,0]"))
    z=[I(f"v_mov_b32 v{acc(4,0)+i}, 0") for i in range(32)]
    return r,u+z
def x_fill():
    o=[]
    for n in range(XD): o+=[x_load(n,0),x_load(n,1),I(f"s_add_u32 s{S_XO}, s{S_XO}, 1024")]
    return o
def start():
    o=[WV(("D",0),"pd0"), I("s_barrier")]
    for nb in range(8): o+=w_reads(0,nb)
    return o
def exchange():
    o=[]; A=lambda s:o.append(I(s))
    A("s_nop 7")
    A(f"s_lshl_b32 s16, s{S_MT5}, 3"); A(f"s_add_u32 s16, s16, s{S_NT5}"); A("s_lshl_b32 s16, s16, 1"); A(f"s_add_u32 s17, s16, s{S_KH}")
    A(f"s_xor_b32 s18, s17, 1")
    for r in (17,18):
        A(f"s_lshl_b32 s{r}, s{r}, 2"); A(f"s_add_u32 s{r}, s{r}, s{S_W}"); A(f"s_lshl_b32 s{r}, s{r}, 13"); A(f"s_add_u32 s{r}, s{r}, {XCH}")
    A("s_mov_b32 s27, s18")
    A("v_lshlrev_b32 v23, 4, v1"); A("v_add_u32 v22, 4096, v23")
    for i in range(8):
        a=acc(4+i//2,i%2)
        o.append(VM(f"buffer_store_dwordx4 v[{a}:{a+3}], v{23 if i<4 else 22}, s[4:7], s17 offen offset:{(i%4)*1024} sc1",("XS",)))
    o.append(WV(("XS",),"xs")); A("s_barrier")
    L0=lbl("Lx"); L=lbl("Lx"); Pl=lbl("Lxp")
    A("s_lshl_b32 s16, s2, 8"); A(f"s_add_u32 s16, s16, {S_XF}")
    A(f"s_cmp_eq_u32 s{S_W}, 1"); A(f"s_cbranch_scc0 {L0}")
    A("s_xor_b32 s17, s16, 256"); A("v_mov_b32 v24, 1"); A(f"buffer_atomic_add v24, v{V_L0}, s[4:7], s17 offen sc1")
    o.append(RAW(f"{L0}:"))
    A(f"s_cmp_eq_u32 s{S_W}, 0"); A(f"s_cbranch_scc0 {L}")
    A("s_mov_b32 s19, 0"); o.append(RAW(f"{Pl}:")); A("s_add_u32 s19, s19, 1"); A("s_cmp_gt_u32 s19, 300000"); A(f"s_cbranch_scc1 {L}")
    A(f"buffer_load_dword v24, v{V_L0}, s[4:7], s16 offen sc1"); A("s_waitcnt vmcnt(0)")
    A("v_readfirstlane_b32 s17, v24"); A("s_cmp_ge_u32 s17, 1"); A(f"s_cbranch_scc0 {Pl}")
    o.append(RAW(f"{L}:")); A("s_barrier")
    for i in range(8):
        o.append(VM(f"buffer_load_dwordx4 v[{128+4*i}:{131+4*i}], v{23 if i<4 else 22}, s[4:7], s27 offen offset:{(i%4)*1024} sc1",("XR",i)))
    for i in range(8):
        o.append(WV(("XR",i),("xr",i)))
        a=acc(i//2,i%2)
        for h in range(2): A(f"v_pk_add_f32 v[{a+2*h}:{a+2*h+1}], v[{a+2*h}:{a+2*h+1}], v[{128+4*i+2*h}:{129+4*i+2*h}]")
    return o
def final():
    pw.S_MT=S_MT5; pw.S_NT=S_N2
    o=[I(f"s_mov_b32 s12, s{P_OUT}"), I(f"s_mov_b32 s13, s{P_OUT+1}"), I("s_mov_b32 s14, 0x400000"), I("s_mov_b32 s15, 0x20000")]
    return o+pw.epi_p5()
```

```python
from asmlib import *
from layout import *
S_W,S_MT,S_J=20,21,22

def ids_p1():
    o=[]; A=lambda s:o.append(I(s))
    A("v_and_b32 v1, 63, v0"); A("v_lshrrev_b32 v23, 6, v0")
    A("s_and_b32 s3, s2, 7"); A("s_lshr_b32 s16, s2, 3")
    A("s_and_b32 s17, s3, 1"); A("s_lshl_b32 s17, s17, 3"); A("s_and_b32 s18, s16, 7"); A(f"s_add_u32 s{S_MT}, s17, s18")
    A(f"v_readfirstlane_b32 s{S_W}, v23")
    A("s_lshr_b32 s17, s3, 1"); A("s_lshl_b32 s17, s17, 2"); A("s_lshr_b32 s18, s16, 3"); A(f"s_add_u32 s{S_J}, s17, s18")
    return o

def dpp_sum16(A,regs):
    for sh in (8,4,2,1):
        A("s_nop 1")
        for r in regs: A(f"v_add_f32_dpp v{r}, v{r}, v{r} row_ror:{sh} row_mask:0xf bank_mask:0xf")
def swap_sum(A,regs,tmp,which):
    for i,r in enumerate(regs): A(f"v_mov_b32 v{tmp+i}, v{r}")
    A("s_nop 1")
    for i,r in enumerate(regs): A(f"{which} v{r}, v{tmp+i}")
    A("s_nop 1")
    for i,r in enumerate(regs): A(f"v_add_f32 v{r}, v{r}, v{tmp+i}")

def ln1_part(xsrd, wsrd, R0=64, fl=""):
    o=[]; A=lambda s:o.append(I(s))
    A(f"s_cmp_eq_u32 s{S_W}, 3"); A("s_cbranch_scc1 L0_rows")
    A(f"s_mul_i32 s16, s{S_MT}, {64*6144}"); A(f"s_lshl_b32 s17, s{S_W}, 11"); A("s_add_u32 s16, s16, s17"); A(f"s_lshl_b32 s17, s{S_J}, 7"); A("s_add_u32 s16, s16, s17")
    A("v_lshrrev_b32 v23, 3, v1"); A("v_mul_u32_u24 v23, 6144, v23"); A("v_and_b32 v24, 7, v1"); A("v_lshlrev_b32 v24, 4, v24"); A("v_add_u32 v23, v23, v24")
    for q in range(8):
        o.append(VM(f"buffer_load_dwordx4 v[{R0+4*q}:{R0+4*q+3}], v23, {wsrd}, s16 offen",("cw",q)))
        A(f"s_add_u32 s16, s16, {8*6144}")
    T=R0+32
    for c in range(8): A(f"v_mov_b32 v{T+c}, 0")
    for q in range(8):
        o.append(WV(("cw",q),("cw",q)))
        for d in range(4):
            r=R0+4*q+d
            A(f"v_lshlrev_b32 v24, 16, v{r}"); A(f"v_and_b32 v25, 0xffff0000, v{r}")
            A(f"v_add_f32 v{T+2*d}, v{T+2*d}, v24"); A(f"v_add_f32 v{T+2*d+1}, v{T+2*d+1}, v25")
    regs=list(range(T,T+8))
    A("s_nop 1")
    for r in regs: A(f"v_add_f32_dpp v{r}, v{r}, v{r} row_ror:8 row_mask:0xf bank_mask:0xf")
    swap_sum(A,regs,T+8,"v_permlane16_swap_b32"); swap_sum(A,regs,T+8,"v_permlane32_swap_b32")
    A(f"s_mul_i32 s16, s{S_MT}, {3072*4}"); A(f"s_lshl_b32 s17, s{S_W}, 12"); A("s_add_u32 s16, s16, s17"); A(f"s_lshl_b32 s17, s{S_J}, 8"); A("s_add_u32 s16, s16, s17")
    A(f"s_add_u32 s16, s16, {CS_QKV}")
    A("v_lshlrev_b32 v23, 5, v1"); A("v_mov_b32 v24, 0x10000000"); A("v_cmp_gt_u32 vcc, 8, v1"); A("s_nop 1"); A("v_cndmask_b32 v23, v24, v23, vcc")
    o.append(VM(f"buffer_store_dwordx4 v[{T}:{T+3}], v23, s[4:7], s16 offen {fl}",("st",)))
    o.append(VM(f"buffer_store_dwordx4 v[{T+4}:{T+7}], v23, s[4:7], s16 offen offset:16 {fl}",("st",)))
    A("s_branch L0_join")
    o.append(RAW("L0_rows:"))
    A(f"s_lshl_b32 s16, s{S_MT}, 18"); A(f"s_lshl_b32 s17, s{S_J}, 14"); A("s_add_u32 s16, s16, s17")
    A("v_lshlrev_b32 v23, 4, v1")
    for q in range(8):
        for h in range(2):
            r=R0+8*q+4*h
            o.append(VM(f"buffer_load_dwordx4 v[{r}:{r+3}], v23, {xsrd}, s16 offen offset:{h*1024}",("xr",q)))
        A(f"s_add_u32 s16, s16, 2048")
    T=R0+64
    A("v_mov_b32 v24, 0x3f803f80")
    for q in range(8):
        o.append(WV(("xr",q),("xr",q)))
        for d in range(8):
            r=R0+8*q+d
            if d==0:
                A(f"v_dot2_f32_bf16 v{T+2*q}, v{r}, v24, 0"); A(f"v_dot2_f32_bf16 v{T+2*q+1}, v{r}, v{r}, 0")
            else:
                A(f"v_dot2_f32_bf16 v{T+2*q}, v{r}, v24, v{T+2*q}"); A(f"v_dot2_f32_bf16 v{T+2*q+1}, v{r}, v{r}, v{T+2*q+1}")
    regs=list(range(T,T+16))
    A("s_nop 2")
    dpp_sum16(A,regs)
    swap_sum(A,regs,T+16,"v_permlane16_swap_b32"); swap_sum(A,regs,T+16,"v_permlane32_swap_b32")
    A(f"v_mov_b32 v26, v{T}"); A(f"v_mov_b32 v27, v{T+1}")
    for q in range(1,8):
        A(f"v_cmp_eq_u32 vcc, {q}, v1"); A("s_nop 1")
        A(f"v_cndmask_b32 v26, v26, v{T+2*q}, vcc"); A(f"v_cndmask_b32 v27, v27, v{T+2*q+1}, vcc")
    A("s_mov_b32 s16, 0x3a800000"); A("s_mov_b32 s17, 0x3727c5ac")
    A("v_mul_f32 v26, s16, v26"); A("v_mul_f32 v27, s16, v27"); A("v_fma_f32 v27, -v26, v26, v27"); A("v_add_f32 v27, s17, v27")
    A("v_rsq_f32 v27, v27")
    A(f"s_lshl_b32 s16, s{S_MT}, 10"); A(f"s_lshl_b32 s17, s{S_J}, 6"); A("s_add_u32 s16, s16, s17"); A(f"s_add_u32 s16, s16, {STATS1}")
    A("v_lshlrev_b32 v23, 3, v1"); A("v_mov_b32 v24, 0x10000000"); A("v_cmp_gt_u32 vcc, 8, v1"); A("s_nop 1"); A("v_cndmask_b32 v23, v24, v23, vcc")
    o.append(VM(f"buffer_store_dwordx2 v[26:27], v23, s[4:7], s16 offen {fl}",("st",)))
    o.append(RAW("L0_join:"))
    return o

def cs_gu(gsrd_lo, R0=64, LB=0, fl=""):
    o=[]; A=lambda s:o.append(I(s))
    A("s_lshr_b32 s16, s2, 5"); A("s_lshl_b32 s16, s16, 2"); A(f"s_add_u32 s16, s16, s{S_W}"); A(f"s_mul_i32 s16, s16, {32*7168}")
    A("v_lshrrev_b32 v23, 5, v1"); A("v_mul_u32_u24 v23, 7168, v23"); A("v_and_b32 v24, 31, v1"); A("v_lshlrev_b32 v25, 4, v24"); A("v_add_u32 v23, v23, v25")
    A("v_mov_b32 v25, 0x70000000"); A("v_cmp_gt_u32 vcc, 28, v24"); A("s_nop 1"); A("v_cndmask_b32 v23, v25, v23, vcc")
    for q in range(16):
        o.append(VM(f"buffer_load_dwordx4 v[{R0+4*q}:{R0+4*q+3}], v23, {gsrd_lo}, s16 offen",("gw",q)))
        A(f"s_add_u32 s16, s16, {2*7168}")
    T=R0+64
    for c in range(8): A(f"v_mov_b32 v{T+c}, 0")
    for q in range(16):
        o.append(WV(("gw",q),("gw",q)))
        for d in range(4):
            r=R0+4*q+d
            A(f"v_lshlrev_b32 v26, 16, v{r}"); A(f"v_and_b32 v27, 0xffff0000, v{r}")
            A(f"v_add_f32 v{T+2*d}, v{T+2*d}, v26"); A(f"v_add_f32 v{T+2*d+1}, v{T+2*d+1}, v27")
    swap_sum(A,list(range(T,T+8)),T+8,"v_permlane32_swap_b32")
    A(f"s_mul_i32 s16, s{S_W}, 896"); A(f"s_add_u32 s16, s16, {LB}"); A("v_lshlrev_b32 v23, 5, v24"); A("v_add_u32 v23, s16, v23")
    A("v_cmp_gt_u32 vcc, 28, v1"); A("s_and_saveexec_b64 s[34:35], vcc")
    o.append(DS(f"ds_write_b128 v23, v[{T}:{T+3}]",("gl",))); o.append(DS(f"ds_write_b128 v23, v[{T+4}:{T+7}] offset:16",("gl",)))
    A("s_mov_b64 exec, s[34:35]")
    o.append(WL(("gl",),"gl")); A("s_barrier")
    A("v_lshlrev_b32 v23, 2, v0"); A(f"v_add_u32 v23, {LB}, v23")
    for w in range(4): o.append(DS(f"ds_read_b32 v{T+w}, v23 offset:{w*896}",("gr",)))
    o.append(WL(("gr",),"gr"))
    A(f"v_add_f32 v{T}, v{T}, v{T+1}"); A(f"v_add_f32 v{T+2}, v{T+2}, v{T+3}"); A(f"v_add_f32 v{T}, v{T}, v{T+2}")
    A("s_lshr_b32 s16, s2, 5"); A(f"s_mul_i32 s16, s16, {7168*4}"); A("s_and_b32 s17, s2, 31"); A("s_mul_i32 s17, s17, 896"); A("s_add_u32 s16, s16, s17"); A(f"s_add_u32 s16, s16, {CS_GU}")
    A("v_lshlrev_b32 v23, 2, v0"); A("v_mov_b32 v24, 0x10000000"); A("v_cmp_gt_u32 vcc, 224, v0"); A("s_nop 1"); A("v_cndmask_b32 v23, v24, v23, vcc")
    o.append(VM(f"buffer_store_dword v{T}, v23, s[4:7], s16 offen {fl}",("st",)))
    return o

def gen(name="p0_kernel", stamps=None):
    o=[]; A=lambda s:o.append(I(s))
    if stamps: o+=stamps[0](0)
    A("s_cmp_ge_u32 s2, 256"); A("s_cbranch_scc1 L0_done")
    A(f"s_load_dwordx2 s[4:5], s[0:1], {D_WS}")
    A(f"s_load_dwordx4 s[8:11], s[0:1], {A_X}")
    A(f"s_load_dwordx4 s[24:27], s[0:1], {B_WG}")
    o+=ids_p1()
    A("s_waitcnt lgkmcnt(0)")
    A("s_mov_b32 s6, 0x10000000"); A("s_mov_b32 s7, 0x20000")
    A("s_mov_b32 s12, s10"); A("s_mov_b32 s13, s11"); A(f"s_mov_b32 s14, {1024*6144}"); A("s_mov_b32 s15, 0x20000")
    A("s_mov_b32 s10, 0x400000"); A("s_mov_b32 s11, 0x20000")
    A("s_and_b32 s16, s2, 31"); A("s_cmp_ge_u32 s16, 16"); A("s_cselect_b32 s28, s26, s24"); A("s_cselect_b32 s29, s27, s25")
    A("s_and_b32 s16, s16, 15"); A("s_mul_i32 s16, s16, 448"); A("s_add_u32 s28, s28, s16"); A("s_addc_u32 s29, s29, 0")
    A(f"s_sub_u32 s30, {1024*7168}, s16"); A("s_mov_b32 s31, 0x20000")
    o+=ln1_part("s[8:11]","s[12:15]")
    if stamps: o+=stamps[0](1)
    o+=cs_gu("s[28:31]")
    if stamps:
        o+=stamps[0](2); A("s_waitcnt vmcnt(0)"); o+=stamps[0](3); o+=stamps[1](4,"L0_st",0)
    simulate(o)
    return khead(name)+"\n"+text(o)+"\nL0_done:\n    s_endpgm", name

if __name__=="__main__":
    code,name=gen()
    h=f"; @launch kernel={name} grid=(256,1,1) block=(256,1,1) lds=4096\n"
    s=h+'.amdgcn_target "amdgcn-amd-amdhsa--gfx950"\n.text\n'+code+'\n.section .rodata,"a"\n'+kd(name,vgpr=256,accum=256)+"\n"
    open("p0.s","w").write(s)
```

```python
import sys
from common import *
import common
import m1,m2,m3,m4,m5,pw,p4,p1
NAME="sequential_preLN__sliding_block__glu_gated_bilinear__prompt_kernel"
HDR=open("sequential_preLN__sliding_block__glu_gated_bilinear__prompt.s.ref").read().split("; Override launch geometry")[0]
def T(ops): return text(ops)
R4=[6,2]
assert sum(R4)==8
def build(stamps=False):
    common.STAMPS[0]=stamps; common.NSTAMP[0]=0; common.NAMES.clear(); common._lbl[0]=0
    out=[khead(NAME)]
    out.append(m1.gen())
    pw.S_MT=S_MT; pw.S_NT=S_J
    e1=m1.epilogue(); s2=m2.setup(); kw=m2.kv_publish_and_wait(); kl=m2.kv_loads()
    od=cnt_addr([I(f"s_lshl_b32 s16, s{S_MT}, 3")],C_OD)
    odw=cnt_addr([I(f"s_lshl_b32 s16, s{S_MT}, 3"), I(f"s_and_b32 s17, s{S_J}, 7"), I("s_add_u32 s16, s16, s17")],C_OD)
    cg=m2.wbar_to_lds()+m3.wb_setup()
    ru=[WV(("D",3),"wo_landed")]+m3.resid_unpack()
    hO=handoff(("O",),"pubO",od,odw,16,cg+ru,[I(f"v_mov_b32 v{r}, 0") for r in range(128,256) if r not in (144,145)]+m4.ids()+m4.w_setup())
    xf=m3.x_fill(); fr=m3.first_reads()
    tch=m4.touch_setup()+[I(f"s_mov_b32 s{m4.S_TO}, 0")]
    ex=[tch]+[m4.touch(True) for _ in range(6)]
    at=m2.attention(ex)
    g4=[]
    for t in range(2):
        for i in range(7):
            d=p4.dma(t,i); d[1].tag=("D4",t)
            pre=[I(f"s_add_u32 s{p4.S_WO}, s{p4.S_WO}, {64*7168}"), I(f"s_add_u32 s{p4.S_WR}, s{p4.S_WR}, {p4.STAGE}")] if (t==1 and i==0) else []
            g4.append(pre+[d[0],I("s_nop 0"),d[1]])
    hd=cnt_addr([I(f"s_lshr_b32 s16, s{S_MT}, 1"), I("s_lshl_b32 s16, s16, 3")],C_HD)
    hw=cnt_addr([I(f"s_lshl_b32 s16, s{m4.S_M8}, 3"), I(f"s_and_b32 s17, s{m4.S_NT}, 7"), I("s_add_u32 s16, s16, s17")],C_HD)
    d2a=[I(f"s_add_u32 s{p4.S_WO}, s{p4.S_WO}, {64*7168}"), I(f"s_add_u32 s{p4.S_WR}, s{p4.S_WR}, {p4.STAGE}")]
    for i in range(4):
        d=p4.dma(2,i); d2a+=[d[0],I("s_nop 0"),d[1]]
    seg=e1+stamp("p1epi")+s2+kw+stamp("kvsync")+kl+at+stamp("attn")+hO+stamp("osync")+xf+fr+m3.full(g4)
    seg+=stamp("p3end")+m3.epilogue_stores()+stamp("hst")
    seg+=handoff(("H",),"pubH",hd,hw,32,m4.rest_setup()+m5.ids()+m5.w_setup(),[])
    st4=m4.start(); st4[0]=WV(("D4",1),"pd0")
    seg+=stamp("hsync")+m4.x_fill()+d2a+st4+[I(f"s_mov_b32 s{p4.S_CNT}, {R4[0]}"), I("s_mov_b32 s33, 0")]
    bodies=[m4.body(i) for i in range(3)]
    simulate(seg+bodies[0]+bodies[1]+bodies[2]); b4=resolve(bodies)
    out.append(T(seg)); out.append(T(stamp("p4loop"))); out.append(".p2align 6\nL4_loop:"); out.append(T(b4))
    out.append(f"    s_sub_u32 s{p4.S_CNT}, s{p4.S_CNT}, 1\n    s_cmp_lg_u32 s{p4.S_CNT}, 0\n    s_cbranch_scc1 L4_loop")
    mids=[m4.mid_loads()]
    out.append("    s_add_u32 s33, s33, 1")
    for k in range(len(mids)): out.append(f"    s_cmp_eq_u32 s33, {k+1}\n    s_cbranch_scc1 L4_mid{k}")
    out.append("    s_branch L4_end")
    for k,m in enumerate(mids):
        out.append(f"L4_mid{k}:"); out.append(T(m)); out.append(f"    s_mov_b32 s{p4.S_CNT}, {R4[k+1]}\n    s_branch L4_loop")
    out.append("L4_end:")
    seg=stamp("p4end")+[I("s_waitcnt vmcnt(0) lgkmcnt(0)")]+m4.epi_prep()
    simulate(seg); out.append(T(seg))
    out.append(f"    s_and_b32 s17, s{m4.S_NT}, 1\n    s_cmp_eq_u32 s17, 1\n    s_cbranch_scc1 L4_epi1")
    e0=m4.epilogue(0,m5.w_fill_groups()[:17]); e1_=m4.epilogue(1,m5.w_fill_groups()[:17])
    out.append(T(e0)); out.append("    s_branch L4_fin\nL4_epi1:"); out.append(T(e1_)); out.append("L4_fin:")
    r,u=m5.resid()
    ad=cnt_addr([I(f"s_lshr_b32 s16, s{m4.S_NT}, 4"), I(f"s_lshl_b32 s17, s{m4.S_M8}, 1"), I("s_add_u32 s16, s16, s17"), I("s_lshl_b32 s16, s16, 3")],C_AD)
    aw=cnt_addr([I(f"s_lshr_b32 s16, s{m5.S_MT5}, 1"), I("s_lshl_b32 s16, s16, 1"), I(f"s_add_u32 s16, s16, s{m5.S_KH}"), I("s_lshl_b32 s16, s16, 3"), I(f"s_add_u32 s16, s16, s{m5.S_NT5}")],C_AD)
    seg=stamp("p4epi")+m5.w_fill_groups()[17]+r
    seg+=handoff(("ACT",),"pubA",ad,aw,16,m5.rest_setup(),[])
    seg+=stamp("async")+m5.x_fill()+u+m5.start()+[I(f"s_mov_b32 s{m5.S_CNT}, 7")]+stamp("p5loop")
    acts=list(e0)
    bodies=[m5.body(i) for i in range(3)]
    simulate(acts+seg+bodies[0]+bodies[1]+bodies[2]); b5=resolve(bodies)
    out.append(T(seg)); out.append(".p2align 6\nL5_loop:"); out.append(T(b5))
    out.append(f"    s_sub_u32 s{m5.S_CNT}, s{m5.S_CNT}, 1\n    s_cmp_lg_u32 s{m5.S_CNT}, 0\n    s_cbranch_scc1 L5_loop")
    seg=stamp("p5end")+[I("s_waitcnt vmcnt(0) lgkmcnt(0)")]+m5.exchange()+stamp("xchg")+m5.final()
    simulate(seg); out.append(T(seg))
    if stamps:
        out.append("    s_waitcnt vmcnt(0)"); out.append(T(stamp("end"))); out.append(T(stamp_flush()))
    out.append("L_done:\n    s_endpgm\nL_codeend:")
    s=HDR+"; @launch grid=(256,1,1) block=(256,1,1) lds=163840\n"+'.amdgcn_target "amdgcn-amd-amdhsa--gfx950"\n.text\n'+"\n".join(out)+'\n.section .rodata,"a"\n'+kd(NAME)+"\n"
    return s, list(common.NAMES)
if __name__=="__main__":
    sel=sys.argv[1].split(",") if len(sys.argv)>1 else "start,early,p1loop,p1end,p1epi,kvsync,attn,csgu,osync,p3end,p3pub,hsync,p4loop,p4end,p4epi,p4pub,async,p5end,xchg,end".split(",")
    common.ONLY[0]=set(sel); common.CYC[0]=len(sel)<=8
    s,names=build(True); open("mega_st.s","w").write(s); open("mega_st.names","w").write("\n".join(names))
    s,_=build(False); open("mega.s","w").write(s)
    m1.CODEPF[0]=1; s,_=build(False); open("mega_pf.s","w").write(s)
    m1.CODEPF[0]=0
```

```python
from common import *
import p1 as P
from p1 import (S_XO,S_WO,S_WR,S_RD,S_CNT,S_LIM,ACC0,acc,STAGE,NST,V_XD,V_WD,V_XL,V_WL,V_XR,V_WR,V_CS,V_SQ,V_SV,dma_x,dma_w,x_read,w_reads)
V_Q=204; V_K=220; V_V=236
CS_SCR=153600

LATE=[]
LASTMID=[]
WOSET=[]
DELAY=[0]
CODEPF=[0]
KNAME="sequential_preLN__sliding_block__glu_gated_bilinear__prompt_kernel"
def entry():
    o=[]; A=lambda s:o.append(I(s))
    A("s_cmp_ge_u32 s2, 256"); A("s_cbranch_scc1 L_done")
    A(f"s_load_dwordx16 s[84:99], s[0:1], 0")
    A(f"s_load_dwordx2 s[{P_DBG}:{P_DBG+1}], s[0:1], {D_DBG}")
    A(f"s_load_dwordx2 s[4:5], s[0:1], {D_WS}")
    A("v_and_b32 v1, 63, v0"); A("v_lshrrev_b32 v23, 6, v0")
    if CODEPF[0]:
        A("s_getpc_b64 s[24:25]"); o.append(RAW("L_pc:")); A(f"s_sub_u32 s24, s24, L_pc-{KNAME}"); A("s_subb_u32 s25, s25, 0")
        A("s_lshr_b32 s16, s2, 3"); A("s_lshl_b32 s16, s16, 11")
        A("v_and_b32 v2, 15, v0"); A("v_lshlrev_b32 v2, 7, v2"); A("v_add_u32 v2, s16, v2"); A(f"s_mov_b32 s17, L_codeend-{KNAME}")
        A("v_cmp_gt_u32 vcc, s17, v2"); A("v_cmp_gt_u32 s[26:27], 16, v0"); A("s_nop 1"); A("s_and_b64 vcc, vcc, s[26:27]")
        A("s_and_saveexec_b64 s[26:27], vcc"); A("s_cbranch_execz L_nopf")
        A("global_load_dword v29, v2, s[24:25]")
        o.append(RAW("L_nopf:")); A("s_mov_b64 exec, s[26:27]")
    A("s_and_b32 s3, s2, 7"); A("s_lshr_b32 s16, s2, 3")
    A("s_and_b32 s17, s3, 1"); A("s_lshl_b32 s17, s17, 2"); A("s_and_b32 s18, s16, 3"); A("s_add_u32 s17, s17, s18"); A("s_lshr_b32 s18, s2, 7"); A("s_lshl_b32 s18, s18, 3"); A(f"s_add_u32 s{S_MT}, s17, s18")
    A(f"v_readfirstlane_b32 s{S_W}, v23")
    A("s_lshr_b32 s17, s3, 1"); A("s_lshl_b32 s17, s17, 2"); A("s_bfe_u32 s18, s16, 0x20002"); A(f"s_add_u32 s{S_J}, s17, s18")
    if DELAY[0]:
        A("s_cmp_ge_u32 s2, 128"); A("s_cbranch_scc0 L_nodelay"); A("s_memrealtime s[24:25]"); A("s_waitcnt lgkmcnt(0)")
        o.append(RAW("L_dl:")); A("s_memrealtime s[26:27]"); A("s_waitcnt lgkmcnt(0)"); A("s_sub_u32 s26, s26, s24"); A(f"s_cmp_lt_u32 s26, {DELAY[0]}"); A("s_cbranch_scc1 L_dl")
        o.append(RAW("L_nodelay:"))
    A(f"v_mov_b32 v{V_L0}, {BIG}"); A("v_cmp_eq_u32 vcc, 0, v1"); A("s_nop 1"); A(f"v_cndmask_b32 v{V_L0}, v{V_L0}, 0, vcc")
    st=P.setup()
    i0=[k for k,op in enumerate(st) if op.text.startswith("v_lshrrev_b32 v23, 3, v1")][0]
    i1=[k for k,op in enumerate(st) if op.text=="s_waitcnt lgkmcnt(0)"][0]
    o+=touch_voff()
    body_=st[i0:i1]
    k=[i for i,op in enumerate(body_) if op.text.startswith(f"s_lshr_b32 s16, s{S_W}, 1")][0]
    o+=body_[:k]
    LATE[:]=body_[k:]
    o+=stamp("prek")
    A("s_waitcnt lgkmcnt(0)")
    o+=stamp("kern")
    A(f"s_mov_b32 s6, {BIG}"); A("s_mov_b32 s7, 0x20000")
    A(f"s_mov_b32 s40, s{P_DBG}"); A(f"s_mov_b32 s41, s{P_DBG+1}"); A("s_mov_b32 s42, 256"); A("s_mov_b32 s43, 0x20000")
    A(f"s_lshl_b32 s16, s{S_MT}, 18"); A(f"s_add_u32 s12, s{P_X}, s16"); A(f"s_addc_u32 s13, s{P_X+1}, 0"); A("s_sub_u32 s14, 0x400000, s16"); A("s_mov_b32 s15, 0x20000")
    A(f"s_lshl_b32 s16, s{S_J}, 7"); A(f"s_add_u32 s8, s{P_WQKV}, s16"); A(f"s_addc_u32 s9, s{P_WQKV+1}, 0"); A(f"s_sub_u32 s10, {1024*6144}, s16"); A("s_mov_b32 s11, 0x20000")
    o+=touch_setup()+touch()
    return o

def zero_sync():
    o=[]; A=lambda s:o.append(I(s))
    A(f"s_lshl_b32 s16, s{S_MT}, 4"); A(f"s_add_u32 s16, s16, s{S_J}"); A("s_lshl_b32 s16, s16, 8"); A(f"s_add_u32 s16, s16, {S_KV}")
    A("s_lshl_b32 s17, s2, 8"); A(f"s_add_u32 s18, s17, {S_CNT0}"); A(f"s_add_u32 s17, s17, {S_XF}")
    A(f"s_add_u32 s19, s18, {256*256}"); A("s_cmp_lt_u32 s2, 64"); A(f"s_cselect_b32 s19, s19, {BIG}")
    A(f"v_mov_b32 v24, {BIG}")
    for lane,sr in ((0,16),(1,17),(2,18),(3,19)):
        A(f"v_mov_b32 v25, s{sr}"); A(f"v_cmp_eq_u32 vcc, {lane}, v0"); A("s_nop 1"); A("v_cndmask_b32 v24, v24, v25, vcc")
    A("v_mov_b32 v25, 0")
    o.append(VM("buffer_store_dword v25, v24, s[4:7], 0 offen sc1",("z",)))
    return o

R0=128
V_CSA=168
V_ONE=192
S_WM=23
def early_loads():
    o=[]; A=lambda s:o.append(I(s))
    A(f"s_lshl_b32 s16, s{S_J}, 14"); A(f"s_lshl_b32 s17, s{S_W}, 12"); A("s_add_u32 s16, s16, s17")
    A("v_lshlrev_b32 v23, 4, v1")
    for q in range(2):
        for h in range(2):
            r=R0+8*q+4*h
            A(f"buffer_load_dwordx4 v[{r}:{r+3}], v23, s[12:15], s16 offen offset:{q*2048+h*1024}")
    A(f"s_mov_b32 s36, s{P_WO}"); A(f"s_mov_b32 s37, s{P_WO+1}"); A(f"s_mov_b32 s38, {1024*2048}"); A("s_mov_b32 s39, 0x20000")
    A("s_lshl_b32 s16, s2, 2"); A(f"s_add_u32 s16, s16, s{S_W}"); A("s_lshl_b32 s16, s16, 11")
    for h in range(2):
        r=R0+24+4*h
        A(f"buffer_load_dwordx4 v[{r}:{r+3}], v23, s[36:39], s16 offen offset:{h*1024}")
    return o
def early_proc():
    o=[]; A=lambda s:o.append(I(s))
    T=R0+16
    A("v_mov_b32 v24, 0x3f803f80")
    for q in range(2):
        for d in range(8):
            r=R0+8*q+d
            if d==0:
                A(f"v_dot2_f32_bf16 v{T+2*q}, v{r}, v24, 0"); A(f"v_dot2_f32_bf16 v{T+2*q+1}, v{r}, v{r}, 0")
            else:
                A(f"v_dot2_f32_bf16 v{T+2*q}, v{r}, v24, v{T+2*q}"); A(f"v_dot2_f32_bf16 v{T+2*q+1}, v{r}, v{r}, v{T+2*q+1}")
    for d in range(8):
        r=R0+24+d
        A(f"v_dot2_f32_bf16 v{T+4}, v{r}, v24, {0 if d==0 else 'v%d'%(T+4)}")
    regs=list(range(T,T+5))
    A("s_nop 2")
    for sh in (8,4,2,1):
        A("s_nop 1")
        for r in regs: A(f"v_add_f32_dpp v{r}, v{r}, v{r} row_ror:{sh} row_mask:0xf bank_mask:0xf")
    swap_sum(A,regs,R0,"v_permlane16_swap_b32"); swap_sum(A,regs,R0,"v_permlane32_swap_b32")
    A("s_mov_b32 s16, 0x3a800000"); A(f"v_mul_f32 v25, s16, v{T+4}")
    A("v_cvt_pk_bf16_f32 v26, v25, v25"); A("v_lshlrev_b32 v27, 16, v26"); A("v_sub_f32 v27, v25, v27"); A("v_cvt_pk_bf16_f32 v27, v27, v27")
    A("v_cmp_eq_u32 vcc, 1, v1"); A("s_nop 1"); A("v_cndmask_b32 v26, v26, v27, vcc")
    A("s_lshl_b32 s16, s2, 2"); A(f"s_add_u32 s16, s16, s{S_W}")
    A("s_lshr_b32 s17, s16, 5"); A("s_lshl_b32 s17, s17, 7")
    A("s_bfe_u32 s18, s16, 0x20002"); A("s_lshl_b32 s18, s18, 5"); A("s_add_u32 s17, s17, s18")
    A("s_bfe_u32 s18, s16, 0x10004"); A("s_lshl_b32 s18, s18, 3"); A("s_add_u32 s17, s17, s18")
    A("s_and_b32 s18, s16, 3"); A("s_lshl_b32 s18, s18, 1"); A("s_add_u32 s17, s17, s18"); A(f"s_add_u32 s17, s17, {WBAR}")
    A("v_lshlrev_b32 v23, 4, v1"); A(f"v_mov_b32 v25, {BIG}"); A("v_cmp_gt_u32 vcc, 2, v1"); A("s_nop 1"); A("v_cndmask_b32 v23, v25, v23, vcc")
    A("buffer_store_short v26, v23, s[4:7], s17 offen sc1")
    A("v_cmp_eq_u32 vcc, 1, v1"); A("s_nop 1")
    A(f"v_cndmask_b32 v26, v{T}, v{T+2}, vcc"); A(f"v_cndmask_b32 v27, v{T+1}, v{T+3}, vcc")
    A("s_mov_b32 s16, 0x3a800000"); A("s_mov_b32 s17, 0x3727c5ac")
    A("v_mul_f32 v26, s16, v26"); A("v_mul_f32 v27, s16, v27"); A("v_fma_f32 v27, -v26, v26, v27"); A("v_add_f32 v27, s17, v27")
    A("v_rsq_f32 v27, v27")
    A(f"s_lshl_b32 s16, s{S_MT}, 10"); A(f"s_lshl_b32 s17, s{S_J}, 6"); A("s_add_u32 s16, s16, s17"); A(f"s_lshl_b32 s17, s{S_W}, 4"); A("s_add_u32 s16, s16, s17"); A(f"s_add_u32 s16, s16, {STATS1}")
    A("v_lshlrev_b32 v23, 3, v1"); A(f"v_mov_b32 v24, {BIG}"); A("v_cmp_gt_u32 vcc, 2, v1"); A("s_nop 1"); A("v_cndmask_b32 v23, v24, v23, vcc")
    A(f"buffer_store_dwordx2 v[26:27], v23, s[4:7], s16 offen sc1")
    return o

def prefetch(which, part=0, parts=1):
    o=[]; A=lambda s:o.append(I(s))
    ptr,nbytes={"wo":(P_WO,1024*2048),"wg":(P_WG,1024*7168),"wu":(P_WU,1024*7168),"wd":(P_WD,3584*2048)}[which]
    lines=nbytes//128//256
    per=lines//4//parts
    assert per*4*parts==lines
    A(f"s_mov_b32 s36, s{ptr}"); A(f"s_mov_b32 s37, s{ptr+1}"); A(f"s_mov_b32 s38, {nbytes}"); A("s_mov_b32 s39, 0x20000")
    A(f"s_mul_i32 s16, s2, {lines*128}"); A(f"s_mul_i32 s17, s{S_W}, {per*parts*128}"); A("s_add_u32 s16, s16, s17"); A(f"s_add_u32 s16, s16, {part*per*128}")
    A("v_lshlrev_b32 v28, 7, v1"); A(f"v_mov_b32 v29, {BIG}"); A(f"v_cmp_gt_u32 vcc, {per}, v1"); A("s_nop 1"); A("v_cndmask_b32 v28, v29, v28, vcc")
    A("buffer_load_dword v29, v28, s[36:39], s16 offen")
    return o

def stats_loads():
    st=P.load_stats()
    k=[i for i,op in enumerate(st) if op.text.startswith("v_lshrrev_b32 v23, 6, v0")][0]
    st=st[:k]
    for op in st:
        if op.kind=="vm": op.text+=" sc1"
    return st

def early_query():
    return [I(f"buffer_load_dword v31, v{V_L0}, {DBG}, 0 offen sc1")]
def mid_section():
    o=[]; A=lambda s:o.append(I(s))
    L=lbl("Lm"); Pl=lbl("Lmp")
    A("v_readfirstlane_b32 s17, v31"); A("s_cmp_ge_u32 s17, 256"); A(f"s_cbranch_scc1 {L}")
    A("s_mov_b32 s19, 0"); o.append(RAW(f"{Pl}:")); A("s_add_u32 s19, s19, 1"); A("s_cmp_gt_u32 s19, 300000"); A(f"s_cbranch_scc1 {L}")
    A(f"buffer_load_dword v31, v{V_L0}, {DBG}, 0 offen sc1"); A("s_waitcnt vmcnt(0)")
    A("v_readfirstlane_b32 s17, v31"); A("s_cmp_ge_u32 s17, 256"); A(f"s_cbranch_scc0 {Pl}")
    o.append(RAW(f"{L}:"))
    for op in stats_loads():
        o.append(I(op.text) if op.kind=="vm" else op)
    return o

V_T=21; S_TO=77
V_T2=22
def touch_setup():
    o=[]; A=lambda s:o.append(I(s))
    A(f"s_mov_b32 s80, s{P_X}"); A(f"s_mov_b32 s81, s{P_X+1}"); A("s_mov_b32 s82, 0x400000"); A("s_mov_b32 s83, 0x20000")
    A(f"s_mov_b32 s{S_TO}, 0"); A("s_mov_b32 s76, 0")
    return o
def touch_voff():
    o=[]; A=lambda s:o.append(I(s))
    A("s_lshl_b32 s16, s2, 3"); A(f"s_lshl_b32 s17, s{S_W}, 2"); A("s_add_u32 s16, s16, s17"); A("s_lshl_b32 s16, s16, 11")
    A("v_lshrrev_b32 v24, 3, v1"); A("v_lshlrev_b32 v24, 11, v24"); A("v_and_b32 v25, 7, v1"); A("v_lshlrev_b32 v25, 7, v25"); A("v_add3_u32 v24, v24, v25, s16")
    A(f"s_cmp_ge_u32 s{S_W}, 2"); A("s_cselect_b32 s18, 0, 32")
    A(f"v_mov_b32 v25, {BIG}"); A("v_cmp_gt_u32 vcc, s18, v1"); A("s_nop 1"); A(f"v_cndmask_b32 v{V_T}, v25, v24, vcc")
    A("s_lshr_b32 s16, s2, 7"); A("s_lshl_b32 s16, s16, 2"); A("s_bfe_u32 s17, s2, 0x20003"); A("s_add_u32 s16, s16, s17"); A("s_mul_i32 s16, s16, 192")
    A(f"s_mul_i32 s17, s{S_W}, 48"); A("s_add_u32 s16, s16, s17"); A("v_add_u32 v24, s16, v1"); A("v_lshlrev_b32 v24, 11, v24")
    A("v_cmp_gt_u32 vcc, 48, v1"); A("s_nop 1"); A(f"v_cndmask_b32 v{V_T2}, v25, v24, vcc")
    return o
def touch():
    return [I(f"buffer_load_dword v29, v{V_T2}, s[8:11], s76 offen"), I(f"buffer_load_dword v29, v{V_T}, s[80:83], s{S_TO} offen"),
            I(f"s_add_u32 s{S_TO}, s{S_TO}, 1024"), I(f"s_add_u32 s76, s76, {1536*2048}")]
def cs_block(n):
    o=[]
    for nb in range(6):
        a=P.wa(n,nb); c=V_CSA+4*nb
        if nb<4: o.append(I(f"v_mfma_f32_16x16x32_bf16 v[{c}:{c+3}], a[{a}:{a+3}], v[{V_ONE}:{V_ONE+3}], v[{c}:{c+3}]"))
        else:    o.append(I(f"v_mfma_f32_16x16x32_bf16 v[{c}:{c+3}], v[{V_ONE}:{V_ONE+3}], a[{a}:{a+3}], v[{c}:{c+3}]"))
    return o
def step_ops(n, wm):
    t=n//2; s_=n%2
    mf=[]
    for nb in range(6):
        a=P.wa(n,nb)
        for mb in (range(4) if nb%2==0 else range(3,-1,-1)):
            if nb<4: mf.append(I(f"v_mfma_f32_16x16x32_bf16 {P.accr(nb,mb)}, a[{a}:{a+3}], {P.xr(n,mb)}, {P.accr(nb,mb)}"))
            else:    mf.append(I(f"v_mfma_f32_16x16x32_bf16 {P.accr(nb,mb)}, {P.xr(n,mb)}, a[{a}:{a+3}], {P.accr(nb,mb)}"))
    if wm==s_: mf+=cs_block(n)
    gaps={}
    def put(g,ops): gaps.setdefault(g,[]).extend(ops if isinstance(ops,list) else [ops])
    put(0,[WL([("X",n,m) for m in range(4)]+[("W",n,0),("W",n,1)],("w0",s_))])
    put(8,[WL([("W",n,2),("W",n,3)],("w1",s_))]); put(16,[WL([("W",n,4),("W",n,5)],("w2",s_))])
    na=n+1
    rds=[x_read(na,m) for m in range(4)]
    for nb in range(6): rds+=w_reads(na,nb)
    if s_==0:
        td=t+2
        dpos=[1,2,3,5,6,7,9,10,11,13,14,15,17,18,19,21]
        for g,r in zip(dpos,rds): put(g,r)
        for i,g in zip(range(1,6),(4,8,12,16,20)):
            d=dma_w(td,i)
            if len(d)==2: put(g-1,d[0]); put(g,d[1])
            else: put(g,d[0])
        put(1,I(f"s_add_u32 s{S_RD}, s{S_RD}, {STAGE}")); put(2,I(f"s_cmp_ge_u32 s{S_RD}, {NST*STAGE}")); put(3,I(f"s_cselect_b32 s{S_RD}, 0, s{S_RD}"))
        put(21,I(f"s_add_u32 s{S_XO}, s{S_XO}, 128")); put(22,I(f"s_add_u32 s{S_WO}, s{S_WO}, {64*6144}"))
        put(23,[I(f"s_add_u32 s3, s{S_WR}, {STAGE}"), I(f"s_cmp_eq_u32 s3, s{S_LIM}")])
        put(24,[I(f"s_cselect_b32 s{S_WR}, s78, s3"), I(f"s_add_u32 s{S_LIM+1}, s{S_WR}, s{S_LIM+2}")])
    else:
        td=t+3
        put(1,[WV(("D",t+1),("wd",)), I("s_barrier"), I(f"s_cmp_eq_u32 s{S_CNT}, s{S_LIM+3}"), I(f"s_cbranch_scc1 L1_pub{wm}"), RAW(f"L1_pubr{wm}:")])
        put(2,[I(f"v_add_u32 v{V_XR}, s{S_RD}, v{V_XL}"), I(f"v_add_u32 v{V_WR}, s{S_RD}, v{V_WL}")])
        put(3,[I(f"v_add_u32 v{V_WR+1}, s{S_RD}, v{V_WL+1}"), I(f"v_add_u32 v{V_XR+1}, s{S_RD}, v{V_XL+1}")])
        dpos=[4,5,6,8,9,10,12,13,14,16,17,18,20,21,22,24]
        for g,r in zip(dpos,rds): put(g,r)
        for (k,i),g in zip([("x",0),("x",1),("x",2),("x",3),("w",0)],(7,11,15,19,23)):
            d=dma_x(td,i) if k=="x" else dma_w(td,i)
            if len(d)==2: put(g-1,d[0]); put(g,d[1])
            else: put(g,d[0])
    return weave(mf,gaps)
def body(it, wm):
    return step_ops(2*it,wm)+step_ops(2*it+1,wm)

def epilogue(pre=(), groups=()):
    o=_epilogue(pre)
    groups=list(groups); out=[]; cnt=0; started=False
    for op in o:
        out.append(op)
        t=op.text or ""
        if t.startswith("v_pk_fma_f32"): started=True
        if started and t.startswith("v_") and groups:
            cnt+=1
            if cnt%9==0: out+=groups.pop(0)
    assert not groups, len(groups)
    return out
def _epilogue(pre):
    o=[]; A=lambda s:o.append(I(s))
    A("s_waitcnt vmcnt(0) lgkmcnt(0)")
    A("s_barrier")
    o+=list(pre)
    A(f"v_mov_b32 v{V_CSA+17}, v{V_CSA+20}")
    A(f"s_mul_i32 s16, s{S_W}, 5120"); A(f"s_add_u32 s16, s16, {CS_SCR-20480}"); A(f"s_xor_b32 s17, s{S_W}, 2"); A("s_mul_i32 s17, s17, 5120"); A(f"s_add_u32 s17, s17, {CS_SCR-20480}")
    A("v_lshlrev_b32 v23, 4, v1"); A("v_add_u32 v24, s17, v23"); A("v_add_u32 v23, s16, v23")
    for q in range(5): o.append(DS(f"ds_write_b128 v23, v[{V_CSA+4*q}:{V_CSA+4*q+3}] offset:{q*1024}",("cw",)))
    o.append(WL(("cw",),"cw")); A("s_barrier")
    for q in range(5): o.append(DS(f"ds_read_b128 v[{2+4*q}:{5+4*q}], v24 offset:{q*1024}",("cr",)))
    o.append(WL(("cr",),"cr"))
    for q in range(18): A(f"v_add_f32 v{V_CSA+q}, v{V_CSA+q}, v{2+q}")
    A(f"s_and_b32 s16, s{S_W}, 1"); A(f"s_lshl_b32 s17, s{S_J}, 1"); A("s_add_u32 s16, s16, s17")
    A(f"s_lshr_b32 s17, s{S_W}, 1"); A("s_lshl_b32 s17, s17, 2"); A(f"s_lshl_b32 s18, s{S_MT}, 3"); A("s_add_u32 s17, s17, s18")
    A("s_lshl_b32 s16, s16, 7"); A("s_add_u32 s16, s16, s17"); A("s_lshl_b32 s16, s16, 10")
    A("v_lshlrev_b32 v23, 4, v1"); A("v_add_u32 v23, s16, v23")
    A(f"s_mov_b32 s17, {K_FO}"); A(f"s_mov_b32 s18, {VT_FO}"); A("s_mov_b32 s19, 0x3e8293ee")
    def qk(sec):
        for mb in range(4):
            mu=V_SQ+2*mb; rs=mu+1
            if sec==0: A(f"v_mul_f32 v25, s19, v{rs}")
            tq=(V_Q if sec==0 else V_K)+4*mb
            for h in range(2):
                nb=2*sec+h; a=acc(nb,mb); c=168+4*nb
                for e in range(2):
                    A(f"v_pk_fma_f32 v[{a+2*e}:{a+2*e+1}], v[{c+2*e}:{c+2*e+1}], v[{mu}:{mu+1}], v[{a+2*e}:{a+2*e+1}] op_sel:[0,0,0] op_sel_hi:[1,0,1] neg_lo:[0,1,0] neg_hi:[0,1,0]")
                if sec==0:
                    for e in range(2): A(f"v_pk_mul_f32 v[{a+2*e}:{a+2*e+1}], v[{a+2*e}:{a+2*e+1}], v[24:25] op_sel:[0,1] op_sel_hi:[1,1]")
                else:
                    for e in range(2): A(f"v_pk_mul_f32 v[{a+2*e}:{a+2*e+1}], v[{a+2*e}:{a+2*e+1}], v[{mu}:{mu+1}] op_sel:[0,1] op_sel_hi:[1,1]")
                A(f"v_cvt_pk_bf16_f32 v{tq+2*h}, v{a}, v{a+1}"); A(f"v_cvt_pk_bf16_f32 v{tq+2*h+1}, v{a+2}, v{a+3}")
            if sec==1: o.append(VM(f"buffer_store_dwordx4 v[{tq}:{tq+3}], v23, s[4:7], s17 offen offset:{mb*1024} sc1",("KV",)))
    qk(1)
    for gam in range(2):
        for db in range(2):
            tq=V_V+4*(2*gam+db)
            for h in range(2):
                mb=2*gam+h; a=acc(4+db,mb); sv=V_SV+8*mb
                for r in range(4):
                    A(f"v_fma_f32 v{a+r}, -v{sv+2*r}, v{184+db}, v{a+r}"); A(f"v_mul_f32 v{a+r}, v{a+r}, v{sv+2*r+1}")
                A(f"v_cvt_pk_bf16_f32 v{tq+2*h}, v{a}, v{a+1}"); A(f"v_cvt_pk_bf16_f32 v{tq+2*h+1}, v{a+2}, v{a+3}")
            o.append(VM(f"buffer_store_dwordx4 v[{tq}:{tq+3}], v23, s[4:7], s18 offen offset:{(gam*2+db)*1024} sc1",("KV",)))
    qk(0)
    return o

def gen():
    out=[]
    out.append(text(stamp("start")))
    e=entry()
    z=zero_sync()
    for op in z:
        if op.kind=="vm": op.kind="x"
    fill=P.fill()
    init=[I(f"s_lshr_b32 s{S_WM}, s{S_W}, 1"), I(f"s_lshl_b32 s78, s{S_W}, 12")]
    k1=[i for i,op in enumerate(fill) if op.text.startswith(f"s_add_u32 s{S_XO}, s{S_XO}, 128")][0]
    zi=[I(f"v_mov_b32 v{ACC0+i}, 0") for i in range(96)]+[I(f"v_mov_b32 v{V_CSA+i}, 0") for i in range(24)]+[I(f"v_mov_b32 v{V_ONE+i}, 0x3f803f80") for i in range(4)]
    rest=fill[k1:]
    vm=[i for i,op in enumerate(rest) if op.kind=="vm"]
    mix=[]; zq=list(LATE)+zi+list(WOSET)
    per=(len(zq)+len(vm)-1)//len(vm)
    for i,op in enumerate(rest):
        mix.append(op)
        if op.kind=="vm":
            mix+=zq[:per]; zq=zq[per:]
    mix+=zq
    out.append(text(e))
    out.append(text(touch_setup()+touch()+early_loads()))
    out.append(text(fill[:k1])); out.append(text(touch())); out.append(text(stamp("d0iss"))); out.append(text(mix)); out.append(text(stamp("fiss")))
    ts=touch()
    out.append(text(init)); out.append(text(stamp("init")))
    pro=[WV(("D",0),"pd0")]+stamp("d0land")+[I("s_barrier")]+[x_read(0,m) for m in range(4)]
    for nb in range(6): pro+=w_reads(0,nb)
    pro+=[I(f"s_mov_b32 s{S_CNT}, {RUNS[0]}"), I(f"s_mov_b32 s{S_LIM+3}, 99"), I("s_mov_b32 s33, 0")]
    bs=[]
    for wm in range(2):
        bodies=[body(i,wm) for i in range(3)]
        simulate(fill+pro+bodies[0]+bodies[1]+bodies[2])
        bs.append(resolve(bodies))
    out.append(text(pro)); out.append(text(stamp("p1loop")))
    out.append(f"L1_disp:\n    s_cmp_eq_u32 s{S_WM}, 1\n    s_cbranch_scc1 L1_loop1")
    for wm in range(2):
        out.append(f".p2align 6\nL1_loop{wm}:"); out.append(text(bs[wm]))
        out.append(f"    s_sub_u32 s{S_CNT}, s{S_CNT}, 1\n    s_cmp_lg_u32 s{S_CNT}, 0\n    s_cbranch_scc1 L1_loop{wm}")
        out.append("    s_branch L1_after")
    for wm in range(2):
        out.append(f"L1_pub{wm}:\n    v_mov_b32 v24, 1\n    buffer_atomic_add v24, v{V_L0}, {DBG}, 0 offen sc1\n    s_branch L1_pubr{wm}")
    out.append("L1_after:")
    mids=[]
    m0=z+early_proc()+stamp("early")
    m0+=[I(f"s_cmp_eq_u32 s{S_W}, 0"), I(f"s_cselect_b32 s{S_LIM+3}, {RUNS[1]-1}, 99")]
    mids.append(m0)
    mids.append([I(f"s_mov_b32 s{S_LIM+3}, 99")])
    mids.append(early_query())
    mids.append(mid_section())
    for k in range(len(mids)):
        out.append(f"    s_cmp_eq_u32 s33, {k}\n    s_cbranch_scc1 L1_mid{k}")
    out.append("    s_branch L1_end")
    for k,m in enumerate(mids):
        out.append(f"L1_mid{k}:"); out.append(text(m)); out.append(f"    s_mov_b32 s33, {k+1}\n    s_mov_b32 s{S_CNT}, {RUNS[k+1]}\n    s_branch L1_disp")
    out.append("L1_end:")
    out.append(text(stamp("p1end")))
    return "\n".join(out)
RUNS=[1,3,5,3,4]
assert sum(RUNS)==16
```

```python
from common import *
import p2 as P
import pw
import m1
from p2 import (V_SR,V_P,V_O,V_CG,V_MF,V_ML,V_CM,V_NM,V_MFM,V_MLM,V_ONE,V_M,NEG,q4)
KA=0; VA=80
def kfr(b):
    if b>=16: a=m1.V_K+4*(b-16); return f"v[{a}:{a+3}]"
    a=KA+4*b; return f"a[{a}:{a+3}]"
def vfr(gam,db):
    if gam>=8: a=m1.V_V+4*(2*(gam-8)+db); return f"v[{a}:{a+3}]"
    a=VA+4*(2*gam+db); return f"a[{a}:{a+3}]"
def qfr(i): a=m1.V_Q+4*i; return f"v[{a}:{a+3}]"
P.kfr=kfr; P.vfr=vfr; P.qfr=qfr
pw.S_MT=S_MT; pw.S_NT=S_J
pw.V_WO=196
V_A=16
S_R,S_HEAD,S_OA=23,34,35
CSG=140
GSRD="s[36:39]"
TBUF=pw.TBUF
CSG_LDS=TBUF+16384

def kv_publish_and_wait():
    o=[]; A=lambda s:o.append(I(s))
    o.append(WV(("KV",),"kvd")); A("s_barrier")
    L0=lbl("Lkv"); L=lbl("Lkv"); Pl=lbl("Lkvp")
    A(f"s_lshl_b32 s16, s{S_MT}, 4"); A(f"s_add_u32 s16, s16, s{S_J}"); A("s_lshl_b32 s16, s16, 8"); A(f"s_add_u32 s16, s16, {S_KV}")
    A(f"s_cmp_eq_u32 s{S_W}, 1"); A(f"s_cbranch_scc0 {L0}")
    A("v_add_u32 v24, 1, v1"); A("v_lshlrev_b32 v24, 12, v24"); A(f"s_sub_u32 s17, 15, s{S_MT}"); A("s_min_u32 s17, s17, 2")
    A(f"v_mov_b32 v25, {BIG}"); A("v_cmp_gt_u32 vcc, s17, v1"); A("s_nop 1"); A("v_cndmask_b32 v24, v25, v24, vcc")
    A("v_mov_b32 v25, 1"); A("buffer_atomic_add v25, v24, s[4:7], s16 offen sc1")
    o.append(RAW(f"{L0}:"))
    A(f"s_cmp_eq_u32 s{S_W}, 0"); A(f"s_cbranch_scc0 {L}")
    A(f"s_min_u32 s18, s{S_MT}, 2")
    A("s_mov_b32 s19, 0"); o.append(RAW(f"{Pl}:")); A("s_add_u32 s19, s19, 1"); A("s_cmp_gt_u32 s19, 300000"); A(f"s_cbranch_scc1 {L}")
    A(f"buffer_load_dword v24, v{V_L0}, s[4:7], s16 offen sc1"); A("s_waitcnt vmcnt(0)")
    A("v_readfirstlane_b32 s17, v24"); A("s_cmp_ge_u32 s17, s18"); A(f"s_cbranch_scc0 {Pl}")
    o.append(RAW(f"{L}:")); A("s_barrier")
    return o

def setup():
    o=[]; A=lambda s:o.append(I(s))
    A(f"s_and_b32 s16, s{S_W}, 1"); A(f"s_lshl_b32 s17, s{S_J}, 1"); A(f"s_add_u32 s{S_HEAD}, s16, s17")
    A(f"s_lshr_b32 s17, s{S_W}, 1"); A("s_lshl_b32 s17, s17, 2"); A(f"s_lshl_b32 s18, s{S_MT}, 3"); A(f"s_add_u32 s{S_R}, s17, s18")
    A(f"s_lshl_b32 s{S_OA}, s{S_R}, 5"); A(f"s_add_u32 s{S_OA}, s{S_OA}, s{S_HEAD}"); A(f"s_lshl_b32 s{S_OA}, s{S_OA}, 10"); A(f"s_add_u32 s{S_OA}, s{S_OA}, {O_FO}")
    A(f"v_lshlrev_b32 v{V_A}, 4, v1")
    for q in range(4):
        A(f"s_cmp_ge_i32 s{S_R}, {16-4*q}"); A(f"s_cselect_b32 s17, 0, {NEG}")
        for r in range(4): A(f"v_mov_b32 v{V_CG+4*q+r}, s17")
    A("v_and_b32 v17, 15, v1"); A("v_lshrrev_b32 v18, 4, v1"); A("v_lshlrev_b32 v18, 2, v18"); A(f"v_mov_b32 v19, {NEG}")
    for r in range(4):
        A(f"v_add_u32 v20, {r}, v18"); A("v_cmp_gt_u32 vcc, v20, v17"); A("s_nop 1")
        A(f"v_cndmask_b32 v{V_MF+r}, v19, v{V_CG+r}, vcc"); A(f"v_cndmask_b32 v{V_ML+r}, 0, v19, vcc")
    for r in range(4): A(f"v_mov_b32 v{V_ONE+r}, 0x3f803f80")
    st=pw.setup("L3",A_WO,O_FO,32*1024)
    i0=[k for k,op in enumerate(st) if op.text.startswith("v_lshrrev_b32 v23, 3, v1")][0]
    i1=[k for k,op in enumerate(st) if op.text=="s_waitcnt lgkmcnt(0)"][0]
    body_=st[i0:i1]
    k=[i for i,op in enumerate(body_) if op.text.startswith("v_lshrrev_b32 v23, 2, v1")][0]
    o+=body_[k:]
    return o

def wo_voffsets():
    st=pw.setup("L3",A_WO,O_FO,32*1024)
    i0=[k for k,op in enumerate(st) if op.text.startswith("v_lshrrev_b32 v23, 3, v1")][0]
    k=[i for i,op in enumerate(st) if op.text.startswith("v_lshrrev_b32 v23, 2, v1")][0]
    return st[i0:k]
def wo_srd():
    return [I(f"s_lshl_b32 s16, s{S_J}, 7"), I(f"s_add_u32 s8, s{P_WO}, s16"), I(f"s_addc_u32 s9, s{P_WO+1}, 0"), I(f"s_sub_u32 s10, {1024*2048}, s16"), I("s_mov_b32 s11, 0x20000")]
def kv_group(kind,q):
    base=K_FO if kind=="K" else VT_FO
    o=[I(f"s_add_u32 s31, s30, {base}"), I(f"s_add_i32 s31, s31, {(4*q-16)*1024}"), I(f"s_cmp_ge_i32 s{S_R}, {16-4*q}"), I(f"s_cselect_b32 s31, s31, {BIG}")]
    ld=[]
    for e in range(4):
        reg=kfr(4*q+e) if kind=="K" else vfr(2*q+e//2,e%2)
        ld.append(VM(f"buffer_load_dwordx4 {reg}, v{V_A}, s[4:7], s31 offen offset:{e*1024} sc1",(kind,q)))
    return [o+[ld[0]]]+[[x] for x in ld[1:]]
def kv_loads():
    o=[I(f"s_lshl_b32 s30, s{S_HEAD}, 7"), I(f"s_add_u32 s30, s30, s{S_R}"), I("s_lshl_b32 s30, s30, 10")]
    for q in range(3):
        for g in kv_group("K",q): o+=g
    return o

def sprinkle():
    g=[]
    g.append([I(f"s_lshl_b32 s{pw.S_WR}, s{S_W}, 13"), I(f"s_mov_b32 s{pw.S_WO}, 0")])
    for t in range(4):
        for i in range(8):
            d=pw.dma(t,i)
            if len(d)==2: g.append([d[0],I("s_nop 0"),d[1]])
            else: g.append(d)
        g.append([I(f"s_add_u32 s{pw.S_WO}, s{pw.S_WO}, {256*2048}"), I(f"s_add_u32 s{pw.S_WR}, s{pw.S_WR}, {pw.STAGE}")])
    g.append([I(f"s_lshl_b32 s27, s{S_W}, 16"), I(f"s_lshl_b32 s17, s{S_J}, 7"), I("s_add_u32 s27, s27, s17"),
              I("v_lshrrev_b32 v23, 3, v1"), I("v_mul_u32_u24 v23, 1920, v23"), I("v_lshlrev_b32 v24, 4, v1"), I("v_add_u32 v23, v23, v24"),
              I(f"s_lshl_b32 s28, s{S_W}, 12"), I(f"s_add_u32 s28, s28, {TBUF}")])
    for jj in range(4):
        g.append([I(f"s_add_u32 m0, s28, {jj*1024}"), I(f"s_add_u32 s18, s27, {jj*16384}"), VM(f"buffer_load_dwordx4 v23, s[12:15], s18 offen lds",("R",))])
    g.append([I(f"s_mov_b32 s29, {WBAR}"), I("v_lshlrev_b32 v21, 4, v0"), VM(f"buffer_load_dwordx4 v[140:143], v21, s[4:7], s29 offen sc1",("wb",))])
    g.append([I(f"s_lshl_b32 s29, s{S_MT}, 10"), I(f"s_lshl_b32 s17, s{S_W}, 8"), I("s_add_u32 s29, s29, s17"), I(f"s_add_u32 s29, s29, {STATS1}"),
              I("v_and_b32 v22, 15, v1"), I("v_lshlrev_b32 v22, 3, v22"),
              VM(f"buffer_load_dword v144, v22, s[4:7], s29 offen sc1",("mx",)), VM(f"buffer_load_dword v145, v22, s[4:7], s29 offen offset:128 sc1",("mx",))])
    return g

def split_sprinkle():
    g=sprinkle()
    return g[:1+2*9], g[1+2*9:]
def attention(extra=(), rest=None):
    early=kv_group("K",3)+kv_group("V",0)+kv_group("V",1)+kv_group("V",2)+kv_group("V",3)
    g=list(extra)+(rest if rest is not None else sprinkle()); out=[]
    slot=[0]; rem=[51]
    for i in range(4):
        ops=P.qblock(i)
        res=[]; npass1=0
        for n,op in enumerate(ops):
            t=op.text or ""
            if op.kind in("wv",) and op.tag[0]=="Q": continue
            if op.kind=="wv" and op.tag[0]=="K" and op.tag[1]==4: continue
            if op.kind=="wv" and op.tag[0]=="V" and op.tag[1]==4: continue
            if op.kind=="vm" and "buffer_store_dwordx4" in t:
                op.text=f"buffer_store_dwordx4 {q4(76)}, v{V_A}, s[4:7], s{S_OA} offen sc1"; op.tag=("O",)
            if t=="s_add_u32 s25, s25, 32768": op.text=f"s_add_u32 s{S_OA}, s{S_OA}, 32768"
            res.append(op)
            if i==0 and early:
                if t.startswith("v_mfma") and npass1<17:
                    npass1+=1; res+=early.pop(0); continue
            if t.startswith("v_cvt_pk_bf16_f32") and (ops[n-1].text or "").startswith("v_cvt_pk_bf16_f32") and all(f"v{r}," not in t for r in (76,77,78,79)):
                if i==0 and early: res+=early.pop(0)
                elif g and i>0 and (slot[0]%2==0 or len(g)>rem[0]//2): res+=g.pop(0)
                if i>0: slot[0]+=1; rem[0]-=1
        out+=res+stamp(f"q{i}")
    assert not g and not early, (len(g),len(early))
    return out

WB_LDS=TBUF+16384
def wbar_to_lds():
    o=[]; A=lambda s:o.append(I(s))
    o.append(WV(("wb",),"wb"))
    A("v_lshlrev_b32 v21, 4, v0"); A(f"v_add_u32 v21, {WB_LDS}, v21")
    o.append(DS("ds_write_b128 v21, v[140:143]",("wbw",)))
    for r in range(4): A(f"v_mov_b32 v{148+r}, 0")
    o.append(DS("ds_write_b128 v21, v[148:151] offset:4096",("wbw",)))
    o.append(WL(("wbw",),"wbw"))
    return o
```

```python
from common import *
import pw, m2
from pw import (acc,accr,xr,wr_,V_DS,V_XO,S_XO,S_XEND,S_CNT,w_reads,TBUF)
XD=6
def x_load(n,mb): return VM(f"buffer_load_dwordx4 {xr(n,mb)}, v{V_XO+mb}, s[4:7], s{S_XO} offen sc1", ("X",n))
V_WB=20
V_MUX=144
V_MUA=64
WBA=192
def wb_read(n):
    a=WBA+(n%4)*4
    return DS(f"ds_read_b128 a[{a}:{a+3}], v{V_WB} offset:{(n%16)*128}",("W",n))
def step_ops(n):
    mf=[]; gaps={}
    def put(idx,ops): gaps.setdefault(idx,[]).extend(ops)
    for nb in range(4):
        a=wr_(n,nb)
        for mb in ((0,1) if nb%2==0 else (1,0)):
            mf.append(I(f"v_mfma_f32_16x16x32_bf16 {accr(nb,mb)}, a[{a}:{a+3}], {xr(n,mb)}, {accr(nb,mb)}"))
    a=WBA+(n%4)*4
    for mb in range(2):
        mf.append(I(f"v_mfma_f32_16x16x32_bf16 v[{V_MUA+4*mb}:{V_MUA+4*mb+3}], a[{a}:{a+3}], {xr(n,mb)}, v[{V_MUA+4*mb}:{V_MUA+4*mb+3}]"))
    put(9,[wb_read(n+2)])
    put(0,[WV(("X",n),("wx",n%16)), WL(("W",n),("wl",n%16))])
    na=n+2
    if na%16==0: put(1,[I(f"v_xor_b32 v{V_DS+u}, {2*pw.STAGE}, v{V_DS+u}") for u in range(4)]+[I(f"v_xor_b32 v{V_WB}, 2048, v{V_WB}")])
    for nb in range(4):
        r=w_reads(na,nb); put(1+2*nb,[r[0]]); put(2+2*nb,[r[1]])
    put(2,[x_load(n+XD,0)]); put(5,[x_load(n+XD,1)])
    put(6,[I(f"s_add_u32 s{S_XO}, s{S_XO}, 1024")]); put(7,[I(f"s_cmp_ge_u32 s{S_XO}, s{S_XEND}")]); put(8,[I(f"s_cselect_b32 s{S_XO}, {BIG}, s{S_XO}")])
    return weave(mf,gaps)
def body(it):
    o=[]
    for n in range(16*it,16*it+16): o+=step_ops(n)
    return o
def resid_unpack(): return pw.resid_p3_unpack()
def x_fill():
    o=[I(f"s_mov_b32 s{S_XO}, 0"), I(f"s_mov_b32 s{S_XEND}, {32*1024}")]
    for n in range(XD):
        o+= [x_load(n,0), x_load(n,1), I(f"s_add_u32 s{S_XO}, s{S_XO}, 1024")]
    return o
def first_reads():
    o=[]
    for n in range(2):
        for nb in range(4): o+=w_reads(n,nb)
        o.append(wb_read(n))
    return o
def wb_setup():
    o=[]; A=lambda s:o.append(I(s))
    A("v_and_b32 v23, 3, v1"); A("v_lshrrev_b32 v24, 4, v1"); A("v_lshlrev_b32 v24, 1, v24"); A("v_add_u32 v24, v24, v23"); A("v_lshlrev_b32 v24, 4, v24")
    A(f"v_add_u32 v24, {m2.WB_LDS}, v24"); A(f"v_mov_b32 v25, {m2.WB_LDS+4096}"); A("v_cmp_gt_u32 vcc, 2, v23"); A("s_nop 1"); A(f"v_cndmask_b32 v{V_WB}, v25, v24, vcc")
    for r in range(8): A(f"v_mov_b32 v{V_MUA+r}, 0")
    return o
def epilogue_stores():
    o=[]; A=lambda s:o.append(I(s))
    A("s_nop 7")
    for mb in range(2):
        A(f"v_add_f32 v{V_MUA+4*mb}, v{V_MUA+4*mb}, v{V_MUA+4*mb+1}"); A(f"v_add_f32 v{V_MUA+4*mb}, v{V_MUA+4*mb}, v{V_MUX+mb}")
    A(f"s_lshl_b32 s16, s{S_MT}, 2"); A(f"s_add_u32 s16, s16, s{S_W}"); A("s_lshl_b32 s16, s16, 16")
    A(f"s_lshl_b32 s17, s{S_J}, 11"); A("s_add_u32 s16, s16, s17"); A(f"s_add_u32 s16, s16, {H_FO}")
    A("v_lshlrev_b32 v23, 4, v1"); A("v_add_u32 v23, s16, v23"); A("v_add_u32 v24, 32768, v23")
    for mb in range(2):
        m=V_MUA+4*mb
        for j in range(2):
            r=96+(mb*2+j)*4
            for h in range(2):
                a=acc(2*j+h,mb)
                for q in range(2): A(f"v_pk_add_f32 v[{a+2*q}:{a+2*q+1}], v[{a+2*q}:{a+2*q+1}], v[{m}:{m+1}] op_sel:[0,0] op_sel_hi:[1,0] neg_lo:[0,1] neg_hi:[0,1]")
                A(f"v_cvt_pk_bf16_f32 v{r+2*h}, v{a}, v{a+1}"); A(f"v_cvt_pk_bf16_f32 v{r+2*h+1}, v{a+2}, v{a+3}")
            o.append(VM(f"buffer_store_dwordx4 v[{r}:{r+3}], v{23+mb}, s[4:7], 0 offen offset:{j*1024} sc1",("H",)))
    A(f"s_lshl_b32 s16, s{S_MT}, 9"); A(f"s_lshl_b32 s17, s{S_W}, 7"); A("s_add_u32 s16, s16, s17"); A(f"s_add_u32 s16, s16, {MU2}")
    A(f"s_cmp_eq_u32 s{S_J}, 0"); A(f"s_cselect_b32 s16, s16, {BIG}")
    A("v_lshrrev_b32 v26, 4, v1"); A("v_cmp_eq_u32 vcc, 1, v26"); A("v_lshlrev_b32 v25, 2, v1"); A("s_nop 0")
    A(f"v_cndmask_b32 v27, v{V_MUA}, v{V_MUA+4}, vcc"); A("v_cmp_gt_u32 vcc, 32, v1"); A(f"v_mov_b32 v28, {BIG}"); A("s_nop 0"); A("v_cndmask_b32 v25, v28, v25, vcc")
    o.append(VM("buffer_store_dword v27, v25, s[4:7], s16 offen sc1",("H",)))
    for mb in range(2):
        S=112+4*mb; Q=S+2
        a=acc(0,mb)
        A(f"v_pk_add_f32 v[{S}:{S+1}], v[{a}:{a+1}], v[{a+2}:{a+3}]"); A(f"v_pk_mul_f32 v[{Q}:{Q+1}], v[{a}:{a+1}], v[{a}:{a+1}]")
        A(f"v_pk_fma_f32 v[{Q}:{Q+1}], v[{a+2}:{a+3}], v[{a+2}:{a+3}], v[{Q}:{Q+1}]")
        for nb in range(1,4):
            a=acc(nb,mb)
            for q in range(2):
                A(f"v_pk_add_f32 v[{S}:{S+1}], v[{S}:{S+1}], v[{a+2*q}:{a+2*q+1}]")
                A(f"v_pk_fma_f32 v[{Q}:{Q+1}], v[{a+2*q}:{a+2*q+1}], v[{a+2*q}:{a+2*q+1}], v[{Q}:{Q+1}]")
        A(f"v_add_f32 v{120+2*mb}, v{S}, v{S+1}"); A(f"v_add_f32 v{121+2*mb}, v{Q}, v{Q+1}")
    swap_sum(A,[120,121,122,123],124,"v_permlane16_swap_b32"); swap_sum(A,[120,121,122,123],124,"v_permlane32_swap_b32")
    A(f"s_lshl_b32 s16, s{S_MT}, 2"); A(f"s_add_u32 s16, s16, s{S_W}"); A("s_lshl_b32 s16, s16, 12")
    A(f"s_lshl_b32 s17, s{S_J}, 7"); A("s_add_u32 s16, s16, s17"); A(f"s_add_u32 s16, s16, {STATS2}")
    A("v_and_b32 v23, 15, v1"); A("v_lshlrev_b32 v23, 3, v23"); A("v_lshrrev_b32 v24, 4, v1")
    A("v_lshlrev_b32 v25, 11, v24"); A("v_add3_u32 v23, v23, v25, s16")
    A("v_cmp_eq_u32 vcc, 1, v24"); A("s_nop 1")
    A("v_cndmask_b32 v120, v120, v122, vcc"); A("v_cndmask_b32 v121, v121, v123, vcc")
    A("v_cmp_gt_u32 vcc, 2, v24"); A(f"v_mov_b32 v25, {BIG}"); A("s_nop 0")
    A("v_cndmask_b32 v23, v25, v23, vcc")
    o.append(VM("buffer_store_dwordx2 v[120:121], v23, s[4:7], 0 offen sc1",("H",)))
    return o

def x_load_abs(n,mb):
    return VM(f"buffer_load_dwordx4 {xr(n,mb)}, v{V_XO+mb}, s[4:7], s{S_XO} offen offset:{(n%4)*1024} sc1", ("X",n))
def x_group(n):
    o=[]
    if n%4==0: o.append(I(f"s_mov_b32 s{S_XO}, {n*1024}"))
    return o
XD0=6; XDMAX=13
def x_fill2():
    o=[]
    for n in range(XD0): o+=x_group(n)+[x_load_abs(n,0),x_load_abs(n,1)]
    return o
def full(extra):
    o=[]; extra=list(extra); nxt=XD0
    for n in range(32):
        mf=[]; gaps={}
        def put(idx,ops): gaps.setdefault(idx,[]).extend(ops)
        for nb in range(4):
            a=wr_(n,nb)
            for mb in ((0,1) if nb%2==0 else (1,0)):
                mf.append(I(f"v_mfma_f32_16x16x32_bf16 {accr(nb,mb)}, a[{a}:{a+3}], {xr(n,mb)}, {accr(nb,mb)}"))
        a=WBA+(n%4)*4
        for mb in range(2):
            mf.append(I(f"v_mfma_f32_16x16x32_bf16 v[{V_MUA+4*mb}:{V_MUA+4*mb+3}], a[{a}:{a+3}], {xr(n,mb)}, v[{V_MUA+4*mb}:{V_MUA+4*mb+3}]"))
        put(0,[WV(("X",n),("wx3",n)), WL(("W",n),("wl3",n))])
        if n==16: put(0,[I("s_barrier")])
        na=n+2
        rd=[]
        if na<32:
            if na%16==0: put(1,[I(f"v_xor_b32 v{V_DS+u}, {2*pw.STAGE}, v{V_DS+u}") for u in range(4)]+[I(f"v_xor_b32 v{V_WB}, 2048, v{V_WB}")])
            for nb in range(4): rd+=w_reads(na,nb)
            rd.append(wb_read(na))
        for k,r in enumerate(rd): put(1+k,[r])
        mem=[]
        want=min(32, n+1+min(XDMAX, XD0+2*(n+1)//1))
        cnt=0
        while nxt<32 and nxt<=n+XDMAX and cnt<(2 if nxt<n+XDMAX else 1) and nxt<want+XDMAX:
            mem.append(x_group(nxt)+[x_load_abs(nxt,0)]); mem.append([x_load_abs(nxt,1)]); nxt+=1; cnt+=1
        if n>=17 and extra: mem.append(extra.pop(0))
        pos=[2,5,8,10,4]
        for k,g in enumerate(mem): put(pos[k],g)
        o+=weave(mf,gaps)
    assert not extra and nxt==32
    return o
```

```python
from common import *
import p4 as P
from p4 import (acc,accr,STAGE,NST,CSL,S_XO,S_WO,S_WR,S_RD,S_CNT,V_DSL,V_DS,V_WO,V_XO,dma,w_reads,D)
S_NT,S_M8=34,35
P.S_NT=S_NT; P.S_M8=S_M8
V_R2=2
_xl=P.x_load
def x_load(n,mb):
    op=_xl(n,mb); op.text+=" sc1"; return op
P.x_load=x_load

def ids():
    o=[]; A=lambda s:o.append(I(s))
    A("s_and_b32 s3, s2, 7"); A("s_lshl_b32 s3, s3, 2"); A("s_lshr_b32 s16, s2, 3"); A("s_and_b32 s16, s16, 3")
    A(f"s_add_u32 s{S_NT}, s3, s16"); A(f"s_lshr_b32 s{S_M8}, s2, 5")
    return o
def w_setup():
    o=[]; A=lambda s:o.append(I(s))
    A(f"s_and_b32 s16, s{S_W}, 1"); A("s_mul_i32 s16, s16, 448"); A("s_movk_i32 s17, 4682"); A("s_movk_i32 s18, 7168")
    for i in range(7):
        A(f"v_add_u32 v23, s16, v1")
        if i: A(f"v_add_u32 v23, {64*i}, v23")
        A("v_mul_lo_u32 v24, v23, s17"); A("v_lshrrev_b32 v24, 16, v24")
        A("v_mul_u32_u24 v25, 14, v24"); A("v_sub_u32 v25, v23, v25"); A("v_lshlrev_b32 v25, 4, v25")
        A(f"v_mul_lo_u32 v24, v24, s18"); A(f"v_add_u32 v{V_WO+i}, v24, v25")
    A(f"s_cmp_ge_u32 s{S_W}, 2"); A(f"s_cselect_b32 s8, s{P_WU}, s{P_WG}"); A(f"s_cselect_b32 s9, s{P_WU+1}, s{P_WG+1}")
    A(f"s_mul_i32 s16, s{S_NT}, 224"); A("s_add_u32 s8, s8, s16"); A("s_addc_u32 s9, s9, 0")
    A(f"s_sub_u32 s10, {1024*7168}, s16"); A("s_mov_b32 s11, 0x20000")
    A(f"s_mul_i32 s{S_WR}, s{S_W}, 7168"); A(f"s_mov_b32 s{S_WO}, 0")
    return o
def w_fill():
    o=[]; A=lambda s:o.append(I(s))
    for t in range(3):
        for i in range(7 if t<2 else 4):
            d=dma(t,i); o.extend([d[0],I("s_nop 0"),d[1]])
        if t<2: A(f"s_add_u32 s{S_WO}, s{S_WO}, {64*7168}"); A(f"s_add_u32 s{S_WR}, s{S_WR}, {STAGE}")
    return o
def w_fill_rest():
    o=[]; A=lambda s:o.append(I(s))
    L0=lbl("Lf4"); L1=lbl("Lf4")
    def pieces(so,wr,reg):
        r=[]
        for t,n in ((1,7),(2,4)):
            for i in range(n):
                r.append(I(f"s_add_u32 m0, s{wr}, {i*1024+(t-1)*STAGE}")); r.append(I(f"s_add_u32 s18, s{so}, {(t-1)*64*7168}"))
                txt=f"buffer_load_dwordx4 v{V_WO+i}, s[8:11], s18 offen lds"
                r.append(VM(txt,("D",t)) if reg else I(txt))
        return r
    A(f"s_add_u32 s{S_WO}, s{S_WO}, {64*7168}"); A(f"s_add_u32 s{S_WR}, s{S_WR}, {STAGE}")
    own=pieces(S_WO,S_WR,True)
    A(f"s_cmp_eq_u32 s{S_W}, 0"); A(f"s_cbranch_scc1 {L0}")
    o+=own
    A(f"s_cmp_eq_u32 s{S_W}, 1"); A(f"s_cbranch_scc0 {L0}")
    A(f"s_sub_u32 s16, s{S_WO}, {32*7168}"); A(f"s_sub_u32 s17, s{S_WR}, 7168")
    o+=pieces(16,17,False)
    o.append(RAW(f"{L0}:"))
    A(f"s_add_u32 s{S_WO}, s{S_WO}, {64*7168}"); A(f"s_add_u32 s{S_WR}, s{S_WR}, {STAGE}")
    return o
def rest_setup():
    o=[]; A=lambda s:o.append(I(s))
    A("v_lshrrev_b32 v23, 2, v1"); A("v_mul_u32_u24 v23, 224, v23"); A("v_and_b32 v24, 3, v1"); A("v_lshlrev_b32 v24, 3, v24")
    A(f"v_add_u32 v{V_DSL}, v23, v24"); A(f"v_mov_b32 v{V_DS}, v{V_DSL}")
    A(f"s_lshl_b32 s16, s{S_M8}, 2"); A(f"s_add_u32 s16, s16, s{S_W}"); A("s_lshl_b32 s16, s16, 17")
    A(f"s_add_u32 s17, s16, {H_FO}"); A("v_lshlrev_b32 v23, 4, v1")
    for mb in range(4):
        A(f"v_add_u32 v{V_XO+mb}, s17, v23")
        if mb<3: A(f"s_add_u32 s17, s17, 32768")
    A(f"s_mov_b32 s{S_RD}, 0"); A(f"s_mov_b32 s{S_XO}, 0")
    A(f"s_mul_i32 s{S_CNT+1}, s{S_W}, 7168"); A(f"s_add_u32 s{S_CNT+1}, s{S_CNT+1}, {NST*STAGE}")
    for i in list(range(32,128))+[144,145]: A(f"v_mov_b32 v{i}, 0")
    return o
def x_fill():
    o=[]
    for t in range(3):
        for mb in range(4): o.append(x_load(t,mb))
        o.append(I(f"s_add_u32 s{S_XO}, s{S_XO}, 1024"))
    return o
def start():
    o=[WV(("D",0),"pd0"), I("s_barrier")]
    for f in range(D): o.extend(w_reads(0,f))
    return o
V_T=17; V_T2=29
def touch_setup():
    o=[]; A=lambda s:o.append(I(s))
    A(f"s_cmp_ge_u32 s{S_W}, 2"); A(f"s_cselect_b32 s80, s{P_WU}, s{P_WG}"); A(f"s_cselect_b32 s81, s{P_WU+1}, s{P_WG+1}"); A(f"s_mov_b32 s82, {1024*7168}"); A("s_mov_b32 s83, 0x20000")
    A(f"s_mov_b32 s36, s{P_WD}"); A(f"s_mov_b32 s37, s{P_WD+1}"); A(f"s_mov_b32 s38, {3584*2048}"); A("s_mov_b32 s39, 0x20000")
    return o
def touch_w(t0,ns):
    o=[]; A=lambda s:o.append(I(s))
    A("s_lshl_b32 s16, s2, 1"); A(f"s_and_b32 s17, s{S_W}, 1"); A("s_add_u32 s16, s16, s17"); A(f"s_mul_i32 s16, s16, {7*ns*128}"); A(f"s_add_u32 s16, s16, {t0*64*7168}")
    A("v_lshlrev_b32 v28, 7, v1"); A(f"v_mov_b32 v29, {BIG}"); A(f"v_cmp_gt_u32 vcc, {7*ns}, v1"); A("s_nop 1"); A("v_cndmask_b32 v28, v29, v28, vcc")
    A("buffer_load_dword v29, v28, s[80:83], s16 offen")
    return o
def touch_wd(part,parts):
    o=[]; A=lambda s:o.append(I(s))
    per=56//parts
    A(f"s_mul_i32 s16, s2, {224*128}"); A(f"s_mul_i32 s17, s{S_W}, {56*128}"); A("s_add_u32 s16, s16, s17"); A(f"s_add_u32 s16, s16, {part*per*128}")
    A("v_lshlrev_b32 v28, 7, v1"); A(f"v_mov_b32 v29, {BIG}"); A(f"v_cmp_gt_u32 vcc, {per}, v1"); A("s_nop 1"); A("v_cndmask_b32 v28, v29, v28, vcc")
    A("buffer_load_dword v29, v28, s[36:39], s16 offen")
    return o
def body(it): return P.body(it)
AX=96
def mid_loads():
    o=[]; A=lambda s:o.append(I(s))
    A(f"s_lshl_b32 s16, s{S_M8}, 2"); A(f"s_add_u32 s16, s16, s{S_W}"); A("s_lshl_b32 s16, s16, 13"); A(f"s_add_u32 s16, s16, {STATS2}")
    A("v_and_b32 v4, 15, v1"); A("v_lshlrev_b32 v4, 3, v4"); A("v_lshrrev_b32 v5, 4, v1"); A("v_lshlrev_b32 v5, 9, v5")
    A("v_add_u32 v4, v4, v5"); A("v_add_u32 v4, s16, v4")
    for mb in range(4):
        A(f"s_mov_b32 s17, {mb*2048}")
        for i in range(4):
            r=AX+8+(mb*4+i)*2
            A(f"buffer_load_dwordx2 a[{r}:{r+1}], v4, s[4:7], s17 offen offset:{i*128} sc1")
    return o
def epi_prep():
    o=[]; A=lambda s:o.append(I(s))
    for mb in range(4):
        for c in range(2):
            r=AX+8+mb*8+c; d=2+2*mb+c
            A(f"v_accvgpr_read_b32 v{d}, a{r}")
            for i in range(1,4):
                A(f"v_accvgpr_read_b32 v27, a{r+2*i}"); A(f"v_add_f32 v{d}, v{d}, v27")
    regs=list(range(2,10))
    swap_sum(A,regs,10,"v_permlane16_swap_b32"); swap_sum(A,regs,10,"v_permlane32_swap_b32")
    A("s_mov_b32 s16, 0x3a800000"); A("s_mov_b32 s17, 0x3727c5ac")
    for mb in range(4):
        r=2+2*mb
        A(f"v_mul_f32 v{r}, s16, v{r}"); A(f"v_mul_f32 v{r+1}, s16, v{r+1}")
        A(f"v_fma_f32 v{r+1}, -v{r}, v{r}, v{r+1}"); A(f"v_add_f32 v{r+1}, s17, v{r+1}")
        A(f"v_rcp_f32 v{V_R2+mb}, v{r+1}")
    A(f"s_lshl_b32 s16, s{S_M8}, 4"); A(f"s_lshl_b32 s17, s{S_W}, 2"); A("s_add_u32 s16, s16, s17")
    A("s_mul_i32 s16, s16, 112"); A(f"s_mul_i32 s17, s{S_NT}, 7"); A("s_lshr_b32 s17, s17, 1"); A("s_add_u32 s16, s16, s17")
    A("s_lshl_b32 s16, s16, 10"); A(f"s_add_u32 s16, s16, {ACT_FO}")
    A("v_lshlrev_b32 v26, 4, v1")
    for mb in range(4):
        A(f"v_add_u32 v{V_XO+mb}, s16, v26"); A(f"s_add_u32 s16, s16, {112*1024}")
    A("s_barrier")
    return o
def epilogue(parity, extra):
    o=[]; A=lambda s:o.append(I(s))
    extra=list(extra); nst=[0]
    if extra: o+=extra.pop(0)+extra.pop(0)
    if parity==0: pairs=[(0,1,0),(2,3,1),(4,5,2),(6,None,3)]
    else: pairs=[(None,0,0),(1,2,1),(3,4,2),(5,6,3)]
    def bc(reg): return (reg&~1, reg&1)
    for (ba,bb,go) in pairs:
        for mb in range(4):
            for pos,nb in enumerate((ba,bb)):
                if nb is None: continue
                g=acc(nb,mb); u=acc(nb+7,mb); mp,hi=bc(V_R2+mb)
                for h in range(2): A(f"v_pk_mul_f32 v[{g+2*h}:{g+2*h+1}], v[{g+2*h}:{g+2*h+1}], v[{u+2*h}:{u+2*h+1}]")
                for h in range(2): A(f"v_pk_mul_f32 v[{g+2*h}:{g+2*h+1}], v[{g+2*h}:{g+2*h+1}], v[{mp}:{mp+1}] op_sel:[0,{hi}] op_sel_hi:[1,{hi}]")
                d = g if (pos==0 or ba is None) else acc(ba,mb)+2
                A(f"v_cvt_pk_bf16_f32 v{d}, v{g}, v{g+1}"); A(f"v_cvt_pk_bf16_f32 v{d+1}, v{g+2}, v{g+3}")
            if ba is not None and bb is not None:
                a=acc(ba,mb); o.append(VM(f"buffer_store_dwordx4 v[{a}:{a+3}], v{V_XO+mb}, s[4:7], 0 offen offset:{go*1024} sc1",("ACT",)))
            elif bb is None:
                a=acc(ba,mb); o.append(VM(f"buffer_store_dwordx2 v[{a}:{a+1}], v{V_XO+mb}, s[4:7], 0 offen offset:{go*1024} sc1",("ACT",)))
            else:
                a=acc(bb,mb); o.append(VM(f"buffer_store_dwordx2 v[{a}:{a+1}], v{V_XO+mb}, s[4:7], 0 offen offset:{go*1024+8} sc1",("ACT",)))
            nst[0]+=1
            if nst[0]<16 and extra: o+=extra.pop(0)
    assert not extra
    return o
```

```python
from asmlib import *
from layout import *
import p0
S_W,S_MT,S_J=20,21,22
S_XO,S_WO,S_WR,S_RD,S_CNT,S_LIM=24,25,26,27,28,29
ACC0=32
def acc(nb,mb): return ACC0+(nb*4+mb)*4
def accr(nb,mb): a=acc(nb,mb); return f"v[{a}:{a+3}]"
XA0=0
WA0=32
def xr(n,mb): a=XA0+(n%2)*16+mb*4; return f"a[{a}:{a+3}]"
def wa(n,nb): return WA0+(n%2)*24+nb*4
STAGE=40960; NST=4; WOFF=16384
V_XD=2
V_WD=6
V_XL=12
V_WL=14
V_XR=16
V_WR=18
V_CS=20
V_SQ=128; V_SV=136

def dma_x(t,i):
    o=[]
    if i==0: o.append(I(f"s_mov_b32 m0, s{S_WR}"))
    o.append(VM(f"buffer_load_dwordx4 v{V_XD+i}, s[12:15], s{S_XO} offen offset:{i*1024} lds",("D",t)))
    return o
def dma_w(t,i):
    o=[]
    if i%4==0: o.append(I(f"s_add_u32 m0, s{S_LIM+1}, {WOFF+(i//4)*4096}"))
    o.append(VM(f"buffer_load_dwordx4 v{V_WD+i}, s[8:11], s{S_WO} offen offset:{(i%4)*1024} lds",("D",t)))
    return o
def x_read(n,mb):
    s=n%2
    return DS(f"ds_read_b128 {xr(n,mb)}, v{V_XR+s} offset:{mb*2048}",("X",n,mb))
def w_reads(n,nb):
    s=n%2; sec=nb//2; h=nb%2; a=wa(n,nb)
    o=WOFF+sec*128+s*32*384
    return [DS(f"ds_read_b64_tr_b16 a[{a}:{a+1}], v{V_WR+h} offset:{o}",("W",n,nb)),
            DS(f"ds_read_b64_tr_b16 a[{a+2}:{a+3}], v{V_WR+h} offset:{o+4*384}",("W",n,nb))]

def step_ops(n):
    t=n//2; s=n%2
    mf=[]; gaps={}
    def put(idx,ops): gaps.setdefault(idx,[]).extend(ops)
    for nb in range(6):
        a=wa(n,nb); base=len(mf)
        for mb in (range(4) if nb%2==0 else range(3,-1,-1)):
            if nb<4: mf.append(I(f"v_mfma_f32_16x16x32_bf16 {accr(nb,mb)}, a[{a}:{a+3}], {xr(n,mb)}, {accr(nb,mb)}"))
            else:    mf.append(I(f"v_mfma_f32_16x16x32_bf16 {accr(nb,mb)}, {xr(n,mb)}, a[{a}:{a+3}], {accr(nb,mb)}"))
        w=[WL(("W",n,nb),("wl",s,nb))]
        if nb==0: w=[WL([("X",n,m) for m in range(4)],("wx",s))]+w
        put(base,w)
    na=n+1
    pre=[]
    if s==1:
        pre=[WV(("D",t+1),("wd",)), I("s_barrier")]
        pre+=[I(f"v_add_u32 v{V_XR}, s{S_RD}, v{V_XL}"), I(f"v_add_u32 v{V_XR+1}, s{S_RD}, v{V_XL+1}"),
              I(f"v_add_u32 v{V_WR}, s{S_RD}, v{V_WL}"), I(f"v_add_u32 v{V_WR+1}, s{S_RD}, v{V_WL+1}")]
    rds=[x_read(na,m) for m in range(4)]
    for nb in range(6): rds+=w_reads(na,nb)
    put(1,pre)
    pos=1
    for r in rds:
        put(pos,[r]); pos+=1
    pieces=[("x",0),("x",1),("x",2),("x",3),("w",0),("w",1),("w",2),("w",3),("w",4),("w",5)]
    if s==1: td,ps=t+3,pieces[:5]
    else: td,ps=t+2,pieces[5:]
    slots=[3,7,11,15,19]
    for (k,i),sl in zip(ps,slots):
        d=dma_x(td,i) if k=="x" else dma_w(td,i)
        if len(d)==2: put(sl-1,[d[0]]); put(sl,[d[1]])
        else: put(sl,[d[0]])
    if s==0:
        put(20,[I(f"s_add_u32 s{S_XO}, s{S_XO}, 128")]); put(20,[I(f"s_add_u32 s{S_WO}, s{S_WO}, {64*6144}")])
        put(21,[I(f"s_add_u32 s{S_WR}, s{S_WR}, {STAGE}")])
        put(21,[I(f"s_cmp_ge_u32 s{S_WR}, s{S_LIM}")])
        put(22,[I(f"s_cselect_b32 s3, {NST*STAGE}, 0")]); put(22,[I(f"s_sub_u32 s{S_WR}, s{S_WR}, s3")])
        put(23,[I(f"s_add_u32 s{S_LIM+1}, s{S_WR}, s{S_LIM+2}")])
        put(17,[I(f"s_add_u32 s{S_RD}, s{S_RD}, {STAGE}")]); put(18,[I(f"s_cmp_ge_u32 s{S_RD}, {NST*STAGE}")]); put(18,[I(f"s_cselect_b32 s{S_RD}, 0, s{S_RD}")])
        put(23,[I(f"s_cmp_ge_u32 s{S_WO}, {1024*6144}")]); put(24,[I(f"s_cselect_b32 s{S_XO}, 0x10000000, s{S_XO}")])
    return weave(mf,gaps)

def body(it):
    return step_ops(2*it)+step_ops(2*it+1)

def setup():
    o=[]; A=lambda s:o.append(I(s))
    A("s_cmp_ge_u32 s2, 256"); A("s_cbranch_scc1 L1_done")
    A(f"s_load_dwordx2 s[4:5], s[0:1], {D_WS}")
    A(f"s_load_dwordx2 s[12:13], s[0:1], {A_X}")
    A(f"s_load_dwordx2 s[8:9], s[0:1], {A_WQKV}")
    o+=p0.ids_p1()
    A("v_lshrrev_b32 v23, 3, v1"); A("v_lshrrev_b32 v24, 4, v1"); A("v_and_b32 v25, 7, v1")
    A(f"s_lshl_b32 s16, s{S_W}, 16")
    for i in range(4):
        A(f"v_add_u32 v26, {4*i}, v24"); A("v_and_b32 v26, 7, v26"); A("v_xor_b32 v26, v26, v25"); A("v_lshlrev_b32 v26, 4, v26")
        A(f"v_add_u32 v27, {8*i}, v23"); A("v_lshlrev_b32 v27, 11, v27"); A("v_add3_u32 v26, v26, v27, s16")
        if i: A(f"v_subrev_u32 v{V_XD+i}, {i*1024}, v26")
        else: A(f"v_mov_b32 v{V_XD}, v26")
    A("v_bfe_u32 v25, v1, 1, 2"); A("v_and_b32 v26, 1, v1"); A("v_lshlrev_b32 v26, 4, v26")
    A(f"s_mul_i32 s16, s{S_W}, {48*2048}")
    for q in range(6):
        A(f"v_add_u32 v27, {8*q}, v23"); A("v_mul_u32_u24 v28, 43, v27"); A("v_lshrrev_b32 v28, 7, v28")
        A("v_bfe_u32 v24, v28, 1, 1"); A("v_bfe_u32 v28, v28, 3, 1"); A("v_lshl_or_b32 v24, v28, 1, v24"); A("v_xor_b32 v24, v24, v25")
        A("v_lshl_add_u32 v24, v24, 5, v26"); A("v_lshl_add_u32 v24, v27, 11, v24")
        if q%4: A(f"v_subrev_u32 v24, {(q%4)*1024}, v24")
        A(f"v_add_u32 v{V_WD+q}, s16, v24")
    A(f"s_lshr_b32 s16, s{S_W}, 1"); A("s_lshl_b32 s16, s16, 13")
    A("v_and_b32 v23, 15, v1"); A("v_lshrrev_b32 v24, 4, v1"); A("v_lshrrev_b32 v25, 1, v23"); A("v_lshlrev_b32 v26, 7, v23")
    for s in range(2):
        A(f"v_or_b32 v27, {4*s}, v24"); A("v_xor_b32 v27, v27, v25"); A("v_lshlrev_b32 v27, 4, v27"); A(f"v_add3_u32 v{V_XL+s}, v27, v26, s16")
    A("v_bfe_u32 v23, v1, 2, 2"); A("v_lshlrev_b32 v25, 3, v24"); A("v_add_u32 v25, v25, v23"); A("v_mul_u32_u24 v25, 384, v25")
    A("v_and_b32 v26, 3, v1"); A("v_lshlrev_b32 v26, 3, v26"); A("v_add_u32 v25, v25, v26")
    A("v_lshrrev_b32 v23, 1, v23"); A("v_and_b32 v26, 1, v24"); A("v_lshlrev_b32 v26, 1, v26"); A("v_or_b32 v23, v23, v26")
    A(f"s_and_b32 s16, s{S_W}, 1"); A("s_lshl_b32 s16, s16, 1")
    for h in range(2):
        A(f"s_or_b32 s17, s16, {h}"); A("v_xor_b32 v26, s17, v23"); A("v_lshlrev_b32 v26, 5, v26"); A(f"v_add_u32 v{V_WL+h}, v25, v26")
    for r in range(2):
        A(f"v_mov_b32 v{V_XR+r}, v{V_XL+r}"); A(f"v_mov_b32 v{V_WR+r}, v{V_WL+r}")
    A("s_waitcnt lgkmcnt(0)")
    A("s_mov_b32 s6, 0x10000000"); A("s_mov_b32 s7, 0x20000")
    A(f"s_lshl_b32 s16, s{S_MT}, 18"); A("s_add_u32 s12, s12, s16"); A("s_addc_u32 s13, s13, 0"); A("s_sub_u32 s14, 0x400000, s16"); A("s_mov_b32 s15, 0x20000")
    A(f"s_lshl_b32 s16, s{S_J}, 7"); A("s_add_u32 s8, s8, s16"); A("s_addc_u32 s9, s9, 0"); A(f"s_sub_u32 s10, {1024*6144}, s16"); A("s_mov_b32 s11, 0x20000")
    return o

def fill():
    o=[]; A=lambda s:o.append(I(s))
    A(f"s_lshl_b32 s{S_WR}, s{S_W}, 12"); A(f"s_add_u32 s{S_LIM}, s{S_WR}, {NST*STAGE}")
    A(f"s_lshl_b32 s{S_LIM+2}, s{S_W}, 11")
    A(f"s_add_u32 s{S_LIM+1}, s{S_WR}, s{S_LIM+2}")
    A(f"s_mov_b32 s{S_XO}, 0"); A(f"s_mov_b32 s{S_WO}, 0"); A(f"s_mov_b32 s{S_RD}, 0")
    pieces=[("x",0),("x",1),("x",2),("x",3),("w",0),("w",1),("w",2),("w",3),("w",4),("w",5)]
    for t in range(3):
        for (k,i) in (pieces if t<2 else pieces[:5]):
            d=dma_x(t,i) if k=="x" else dma_w(t,i)
            if len(d)==2: o.extend([d[0],I("s_nop 0"),d[1]])
            else: o.extend(d)
        if t<2:
            A(f"s_add_u32 s{S_XO}, s{S_XO}, 128"); A(f"s_add_u32 s{S_WO}, s{S_WO}, {64*6144}")
            A(f"s_add_u32 s{S_WR}, s{S_WR}, {STAGE}"); A(f"s_add_u32 s{S_LIM+1}, s{S_WR}, s{S_LIM+2}")
    return o

def load_stats():
    o=[]; A=lambda s:o.append(I(s))
    A(f"s_lshl_b32 s16, s{S_MT}, 10"); A(f"s_lshr_b32 s17, s{S_W}, 1"); A("s_lshl_b32 s17, s17, 9"); A("s_add_u32 s16, s16, s17"); A(f"s_add_u32 s16, s16, {STATS1}")
    A("v_and_b32 v23, 15, v1"); A("v_lshlrev_b32 v23, 3, v23")
    for mb in range(4): o.append(VM(f"buffer_load_dwordx2 v[{V_SQ+2*mb}:{V_SQ+2*mb+1}], v23, s[4:7], s16 offen offset:{mb*128}",("S",)))
    A("v_lshrrev_b32 v23, 4, v1"); A("v_lshlrev_b32 v23, 5, v23")
    for mb in range(4):
        for h in range(2):
            r=V_SV+8*mb+4*h
            o.append(VM(f"buffer_load_dwordx4 v[{r}:{r+3}], v23, s[4:7], s16 offen offset:{mb*128+h*16}",("S",)))
    A("v_lshrrev_b32 v23, 6, v0"); A("v_lshlrev_b32 v23, 12, v23"); A("v_lshlrev_b32 v24, 2, v1"); A("v_add_u32 v23, v23, v24")
    A("v_mov_b32 v24, 0x10000000"); A("v_cmp_gt_u32 vcc, 192, v0"); A("s_nop 1"); A("v_cndmask_b32 v23, v24, v23, vcc")
    A(f"s_lshl_b32 s16, s{S_J}, 8"); A(f"s_add_u32 s16, s16, {CS_QKV}")
    for ks in range(16):
        o.append(VM(f"buffer_load_dword v{168+ks}, v23, s[4:7], s16 offen",("C",))); A(f"s_add_u32 s16, s16, {3072*4}")
    return o
def reduce_cs():
    o=[WV(("C",),"pc")]; A=lambda s:o.append(I(s))
    A(f"v_add_f32 v{V_CS}, v168, v169")
    for ks in range(2,16): A(f"v_add_f32 v{V_CS}, v{V_CS}, v{168+ks}")
    return o

def epilogue():
    o=[]; A=lambda s:o.append(I(s))
    A("s_barrier")
    A("v_lshlrev_b32 v23, 2, v0"); o.append(DS(f"ds_write_b32 v23, v{V_CS}",("cw",))); o.append(WL(("cw",),"cw")); A("s_barrier")
    A(f"s_and_b32 s16, s{S_W}, 1"); A("s_lshl_b32 s16, s16, 7")
    A("v_lshrrev_b32 v23, 4, v1"); A("v_lshlrev_b32 v23, 4, v23"); A("v_add_u32 v23, s16, v23")
    for nb in range(4): o.append(DS(f"ds_read_b128 v[{168+4*nb}:{171+4*nb}], v23 offset:{(nb//2)*256+(nb%2)*64}",("cr",)))
    A("v_and_b32 v24, 15, v1"); A("v_lshlrev_b32 v24, 2, v24"); A("v_add_u32 v24, s16, v24")
    for h in range(2): o.append(DS(f"ds_read_b32 v{184+h}, v24 offset:{512+h*64}",("cr",)))
    A(f"s_and_b32 s16, s{S_W}, 1"); A(f"s_lshl_b32 s17, s{S_J}, 1"); A("s_add_u32 s16, s16, s17")
    A(f"s_lshr_b32 s17, s{S_W}, 1"); A("s_lshl_b32 s17, s17, 2"); A(f"s_lshl_b32 s18, s{S_MT}, 3"); A("s_add_u32 s17, s17, s18")
    A("s_lshl_b32 s16, s16, 7"); A("s_add_u32 s16, s16, s17"); A("s_lshl_b32 s16, s16, 10")
    A("v_lshlrev_b32 v23, 4, v1"); A("v_add_u32 v23, s16, v23")
    A(f"s_mov_b32 s17, {K_FO}"); A(f"s_mov_b32 s18, {VT_FO}"); A("s_mov_b32 s19, 0x3e8293ee")
    o.append(WL(("cr",),"cr"))
    k=0
    for sec in range(2):
        for mb in range(4):
            mu=V_SQ+2*mb; rs=mu+1
            if sec==0: A(f"v_mul_f32 v25, s19, v{rs}")
            tq=192+4*(k%2); k+=1
            for h in range(2):
                nb=2*sec+h; a=acc(nb,mb); c=168+4*nb
                for e in range(2):
                    A(f"v_pk_fma_f32 v[{a+2*e}:{a+2*e+1}], v[{c+2*e}:{c+2*e+1}], v[{mu}:{mu+1}], v[{a+2*e}:{a+2*e+1}] op_sel:[0,0,0] op_sel_hi:[1,0,1] neg_lo:[0,1,0] neg_hi:[0,1,0]")
                if sec==0:
                    for e in range(2): A(f"v_pk_mul_f32 v[{a+2*e}:{a+2*e+1}], v[{a+2*e}:{a+2*e+1}], v[24:25] op_sel:[0,1] op_sel_hi:[1,1]")
                else:
                    for e in range(2): A(f"v_pk_mul_f32 v[{a+2*e}:{a+2*e+1}], v[{a+2*e}:{a+2*e+1}], v[{mu}:{mu+1}] op_sel:[0,1] op_sel_hi:[1,1]")
                A(f"v_cvt_pk_bf16_f32 v{tq+2*h}, v{a}, v{a+1}"); A(f"v_cvt_pk_bf16_f32 v{tq+2*h+1}, v{a+2}, v{a+3}")
            so="0" if sec==0 else "s17"
            o.append(VM(f"buffer_store_dwordx4 v[{tq}:{tq+3}], v23, s[4:7], {so} offen offset:{mb*1024}",("ST",)))
    for gam in range(2):
        for db in range(2):
            tq=192+4*(k%2); k+=1
            for h in range(2):
                mb=2*gam+h; a=acc(4+db,mb); sv=V_SV+8*mb
                for r in range(4):
                    A(f"v_fma_f32 v{a+r}, -v{sv+2*r}, v{184+db}, v{a+r}"); A(f"v_mul_f32 v{a+r}, v{a+r}, v{sv+2*r+1}")
                A(f"v_cvt_pk_bf16_f32 v{tq+2*h}, v{a}, v{a+1}"); A(f"v_cvt_pk_bf16_f32 v{tq+2*h+1}, v{a+2}, v{a+3}")
            o.append(VM(f"buffer_store_dwordx4 v[{tq}:{tq+3}], v23, s[4:7], s18 offen offset:{(gam*2+db)*1024}",("ST",)))
    return o

def gen(name="p1_kernel", stamps=None):
    init=[I(f"v_mov_b32 v{ACC0+i}, 0") for i in range(96)]
    pro=setup()+load_stats()+fill()+init+reduce_cs()
    pro+=[WV(("D",0),"pd0"), I("s_barrier")]+[x_read(0,m) for m in range(4)]
    for nb in range(6): pro+=w_reads(0,nb)
    pro+=[I(f"s_mov_b32 s{S_CNT}, 16")]
    bodies=[body(i) for i in range(3)]
    simulate(pro+bodies[0]+bodies[1]+bodies[2])
    b=resolve(bodies)
    out=[khead(name)]
    if stamps: out.append(text(stamps[0](0)))
    out.append(text(pro))
    if stamps: out.append(text(stamps[0](1)))
    out.append(".p2align 6\nL1_loop:")
    out.append(text(b))
    out.append(f"    s_sub_u32 s{S_CNT}, s{S_CNT}, 1\n    s_cmp_lg_u32 s{S_CNT}, 0\n    s_cbranch_scc1 L1_loop")
    if stamps: out.append(text(stamps[0](2)))
    out.append("    s_waitcnt vmcnt(0) lgkmcnt(0)")
    e=epilogue(); simulate(e); out.append(text(e))
    if stamps:
        out.append("    s_waitcnt vmcnt(0)"); out.append(text(stamps[0](3))); out.append(text(stamps[1](4,"L1_st",1)))
    out.append("L1_done:\n    s_endpgm")
    return "\n".join(out), name

if __name__=="__main__":
    import p4
    code,name=gen(stamps=(p4.stamp,p4.stamp_flush))
    h=f"; @launch kernel={name} grid=(256,1,1) block=(256,1,1) lds={NST*STAGE}\n"
    s=h+'.amdgcn_target "amdgcn-amd-amdhsa--gfx950"\n.text\n'+code+'\n.section .rodata,"a"\n'+kd(name)+"\n"
    open("p1.s","w").write(s)
```

```python
import sys
from common import *
import common
import m1,m2,m3,m4,m5,pw,p4,p1
NAME="sequential_preLN__sliding_block__glu_gated_bilinear__prompt_kernel"
HDR=open("sequential_preLN__sliding_block__glu_gated_bilinear__prompt.s.ref").read().split("; Override launch geometry")[0]
def T(ops): return text(ops)
R4=[1,2,2,1,2]
assert sum(R4)==8
def build(stamps=False):
    common.STAMPS[0]=stamps; common.NSTAMP[0]=0; common.NAMES.clear(); common._lbl[0]=0
    out=[khead(NAME)]
    pw.S_MT=S_MT; pw.S_NT=S_J
    m1.WOSET[:]=m2.wo_voffsets()
    out.append(m1.gen())
    sh,rest=m2.split_sprinkle()
    e1=m1.epilogue(m2.wo_srd()+sh[0],sh[1:]); s2=m2.setup(); kw=m2.kv_publish_and_wait(); kl=m2.kv_loads()
    od=cnt_addr([I(f"s_lshl_b32 s16, s{S_MT}, 3")],C_OD)
    odw=cnt_addr([I(f"s_lshl_b32 s16, s{S_MT}, 3"), I(f"s_and_b32 s17, s{S_J}, 7"), I("s_add_u32 s16, s16, s17")],C_OD)
    cg=m2.wbar_to_lds()+m3.wb_setup()
    ru=[WV(("D",3),"wo_landed")]+m3.resid_unpack()
    hO=handoff(("O",),"pubO",od,odw,16,cg+ru,[I(f"v_mov_b32 v{r}, 0") for r in range(128,256) if r not in (144,145)]+m4.ids()+m4.w_setup())
    xf=m3.x_fill2(); fr=m3.first_reads()
    tch=m4.touch_setup()+m4.touch_w(0,9)
    at=m2.attention([],[tch]+rest)
    g4=[]
    for t in range(2):
        for i in range(7):
            d=p4.dma(t,i); d[1].tag=("D4",t)
            pre=[I(f"s_add_u32 s{p4.S_WO}, s{p4.S_WO}, {64*7168}"), I(f"s_add_u32 s{p4.S_WR}, s{p4.S_WR}, {p4.STAGE}")] if (t==1 and i==0) else []
            g4.append(pre+[d[0],I("s_nop 0"),d[1]])
    hd=cnt_addr([I(f"s_lshr_b32 s16, s{S_MT}, 1"), I("s_lshl_b32 s16, s16, 3")],C_HD)
    hw=cnt_addr([I(f"s_lshl_b32 s16, s{m4.S_M8}, 3"), I(f"s_and_b32 s17, s{m4.S_NT}, 7"), I("s_add_u32 s16, s16, s17")],C_HD)
    d2a=[I(f"s_add_u32 s{p4.S_WO}, s{p4.S_WO}, {64*7168}"), I(f"s_add_u32 s{p4.S_WR}, s{p4.S_WR}, {p4.STAGE}")]
    for i in range(4):
        d=p4.dma(2,i); d2a+=[d[0],I("s_nop 0"),d[1]]
    seg=e1+stamp("p1epi")+s2+kw+stamp("kvsync")+kl+at+stamp("attn")+hO+stamp("osync")+xf+fr+stamp("p3go")+m3.full(g4)
    seg+=stamp("p3end")+m3.epilogue_stores()+stamp("hst")
    seg+=handoff(("H",),"pubH",hd,hw,32,m4.rest_setup()+m5.ids()+m5.w_setup(),[])
    st4=m4.start(); st4[0]=WV(("D4",1),"pd0")
    seg+=stamp("hsync")+m4.x_fill()+d2a+st4+[I(f"s_mov_b32 s{p4.S_CNT}, {R4[0]}"), I("s_mov_b32 s33, 0")]
    bodies=[m4.body(i) for i in range(3)]
    simulate(seg+bodies[0]+bodies[1]+bodies[2]); b4=resolve(bodies)
    out.append(T(seg)); out.append(T(stamp("p4loop"))); out.append(".p2align 6\nL4_loop:"); out.append(T(b4))
    out.append(f"    s_sub_u32 s{p4.S_CNT}, s{p4.S_CNT}, 1\n    s_cmp_lg_u32 s{p4.S_CNT}, 0\n    s_cbranch_scc1 L4_loop")
    mids=[m4.touch_w(9,7), m4.touch_wd(0,2), m4.touch_wd(1,2), m4.mid_loads()]
    for k in range(len(mids)): out.append(f"    s_cmp_eq_u32 s33, {k}\n    s_cbranch_scc1 L4_mid{k}")
    out.append("    s_branch L4_end")
    for k,m in enumerate(mids):
        out.append(f"L4_mid{k}:"); out.append(T(m)); out.append(f"    s_mov_b32 s33, {k+1}\n    s_mov_b32 s{p4.S_CNT}, {R4[k+1]}\n    s_branch L4_loop")
    out.append("L4_end:")
    seg=stamp("p4end")+[I("s_waitcnt vmcnt(0) lgkmcnt(0)")]+m4.epi_prep()
    simulate(seg); out.append(T(seg))
    out.append(f"    s_and_b32 s17, s{m4.S_NT}, 1\n    s_cmp_eq_u32 s17, 1\n    s_cbranch_scc1 L4_epi1")
    e0=m4.epilogue(0,m5.w_fill_groups()[:17]); e1_=m4.epilogue(1,m5.w_fill_groups()[:17])
    out.append(T(e0)); out.append("    s_branch L4_fin\nL4_epi1:"); out.append(T(e1_)); out.append("L4_fin:")
    r,u=m5.resid()
    ad=cnt_addr([I(f"s_lshr_b32 s16, s{m4.S_NT}, 4"), I(f"s_lshl_b32 s17, s{m4.S_M8}, 1"), I("s_add_u32 s16, s16, s17"), I("s_lshl_b32 s16, s16, 3")],C_AD)
    aw=cnt_addr([I(f"s_lshr_b32 s16, s{m5.S_MT5}, 1"), I("s_lshl_b32 s16, s16, 1"), I(f"s_add_u32 s16, s16, s{m5.S_KH}"), I("s_lshl_b32 s16, s16, 3"), I(f"s_add_u32 s16, s16, s{m5.S_NT5}")],C_AD)
    seg=stamp("p4epi")+m5.w_fill_groups()[17]+r
    seg+=handoff(("ACT",),"pubA",ad,aw,16,m5.rest_setup(),[])
    seg+=stamp("async")+m5.x_fill()+u+m5.start()+[I(f"s_mov_b32 s{m5.S_CNT}, 7")]+stamp("p5loop")
    acts=list(e0)
    bodies=[m5.body(i) for i in range(3)]
    simulate(acts+seg+bodies[0]+bodies[1]+bodies[2]); b5=resolve(bodies)
    out.append(T(seg)); out.append(".p2align 6\nL5_loop:"); out.append(T(b5))
    out.append(f"    s_sub_u32 s{m5.S_CNT}, s{m5.S_CNT}, 1\n    s_cmp_lg_u32 s{m5.S_CNT}, 0\n    s_cbranch_scc1 L5_loop")
    seg=stamp("p5end")+[I("s_waitcnt vmcnt(0) lgkmcnt(0)")]+m5.exchange()+stamp("xchg")+m5.final()
    simulate(seg); out.append(T(seg))
    if stamps:
        out.append("    s_waitcnt vmcnt(0)"); out.append(T(stamp("end"))); out.append(T(stamp_flush()))
    out.append("L_done:\n    s_endpgm\nL_codeend:")
    s=HDR+"; @launch grid=(256,1,1) block=(256,1,1) lds=163840\n"+'.amdgcn_target "amdgcn-amd-amdhsa--gfx950"\n.text\n'+"\n".join(out)+'\n.section .rodata,"a"\n'+kd(NAME)+"\n"
    return s, list(common.NAMES)
if __name__=="__main__":
    sel=sys.argv[1].split(",") if len(sys.argv)>1 else "start,p1loop,p1end,kvsync,attn,osync,p3end,hsync,p4end,async,p5end,end".split(",")
    common.ONLY[0]=set(sel); common.CYC[0]=len(sel)<=6
    m1.CODEPF[0]=1
    s,names=build(True); open("mega_st.s","w").write(s); open("mega_st.names","w").write("\n".join(names))
    s,_=build(False); open("mega.s","w").write(s)
```

```python
from common import *
import m2
from m2 import kfr,vfr,qfr,kv_group,V_A,S_OA
from p2 import (V_P,V_O,V_CG,V_MF,V_ML,V_CM,V_NM,V_MFM,V_MLM,V_ONE,NEG,q4)
V_SR=32
V_S1=140
V_M4=164
def cop1(i,b):
    if b==i: return q4(V_MF)
    if b==i+16: return q4(V_ML)
    if b<16: return q4(V_CG+4*(b//4))
    return "0"
def cop2(i,b):
    if b==i: return q4(V_MFM)
    if b==i+16: return q4(V_MLM)
    if b<16: return q4(V_CM+4*(b//4))
    return q4(V_NM)

def pass1_all(loads):
    o=[]; A=lambda s:o.append(I(s))
    for i in range(4): A(f"v_mov_b32 v{V_M4+i}, {NEG}")
    seq=[(i,b) for b in range(20) for i in range(4) if i<=b<=i+16]
    seq=[x for x in seq if x[1]>=16]+[x for x in seq if x[1]<16]
    NR=6; D=4
    waited=set()
    def mx(n):
        i,b=seq[n]; s=V_S1+4*(n%NR); m=V_M4+i
        A(f"v_max3_f32 v{m}, v{m}, v{s}, v{s+1}"); A(f"v_max3_f32 v{m}, v{m}, v{s+2}, v{s+3}")
    for n,(i,b) in enumerate(seq):
        if b<16 and b//4 not in waited:
            o.append(WV(("K",b//4),("k1",b//4))); waited.add(b//4)
        A(f"v_mfma_f32_16x16x32_bf16 {q4(V_S1+4*(n%NR))}, {kfr(b)}, {qfr(i)}, {cop1(i,b)}")
        if loads and n%3!=2: o+=loads.pop(0)
        if n>=D: mx(n-D)
        else: A("s_nop 1")
    A("s_nop 1")
    for n in range(len(seq)-D,len(seq)):
        if n==len(seq)-1: A("s_nop 1")
        mx(n)
    while loads: o+=loads.pop(0)
    regs=[V_M4+i for i in range(4)]
    for sw in ("v_permlane16_swap_b32","v_permlane32_swap_b32"):
        for i in range(4): A(f"v_mov_b32 v{V_M4+4+i}, v{V_M4+i}")
        A("s_nop 0")
        for i in range(4): A(f"{sw} v{V_M4+i}, v{V_M4+4+i}")
        A("s_nop 0")
        for i in range(4): A(f"v_max_f32 v{V_M4+i}, v{V_M4+i}, v{V_M4+4+i}")
    return o

def prep(i):
    o=[]; A=lambda s:o.append(I(s)); m=V_M4+i
    for r in range(4): A(f"v_sub_f32 v{V_MFM+r}, v{V_MF+r}, v{m}")
    for q in range(4):
        for r in range(4): A(f"v_sub_f32 v{V_CM+4*q+r}, v{V_CG+4*q+r}, v{m}")
    for r in range(4): A(f"v_sub_f32 v{V_NM+r}, 0, v{m}")
    for r in range(4): A(f"v_sub_f32 v{V_MLM+r}, v{V_ML+r}, v{m}")
    return o

def pass2(i, extra):
    o=[]; A=lambda s:o.append(I(s))
    blocks=list(range(i,i+17))
    def ring(n): return V_SR+4*(n%4)
    par=i%2; first=[True]
    def S(n): A(f"v_mfma_f32_16x16x32_bf16 {q4(ring(n))}, {kfr(blocks[n])}, {qfr(i)}, {cop2(i,blocks[n])}")
    def PV(gam,ps):
        p=q4(V_P+4*ps)
        if gam<8 and i==0: o.append(WV(("V",gam//2),("v2",gam)))
        for db in range(2):
            c="0" if first[0] else q4(V_O+4*db)
            A(f"v_mfma_f32_16x16x32_bf16 {q4(V_O+4*db)}, {vfr(gam,db)}, {p}, {c}")
        c="0" if first[0] else q4(V_O+8)
        A(f"v_mfma_f32_16x16x32_bf16 {q4(V_O+8)}, {q4(V_ONE)}, {p}, {c}")
        first[0]=False
    return o,A,blocks,ring,par,S,PV

def qblock2(i, extra, tail_prev):
    o,A,blocks,ring,par,S,PV=pass2(i,extra)
    o+=prep(i)
    S(0); S(1)
    fill=list(tail_prev)
    if par==1: fill=[I(f"v_mov_b32 v{V_P}, 0"), I(f"v_mov_b32 v{V_P+1}, 0")]+fill
    o+=fill
    nf=sum(1 for x in fill if x.text)
    if nf<7: A(f"s_nop {6-nf}")
    pend=None; cv=None
    def cvt(n):
        b=blocks[n]; gam=b//2; half=b%2; ps=(gam-i//2)%2; s=ring(n); p=V_P+4*ps+2*half
        A(f"v_cvt_pk_bf16_f32 v{p}, v{s}, v{s+1}"); A(f"v_cvt_pk_bf16_f32 v{p+1}, v{s+2}, v{s+3}")
        if n==16 and half==0:
            A(f"v_mov_b32 v{p+2}, 0"); A(f"v_mov_b32 v{p+3}, 0")
        return (gam,ps) if (half==1 or n==16) else None
    for n in range(17):
        if n+2<17: S(n+2)
        else: A("s_nop 0")
        s=ring(n)
        A(f"v_exp_f32 v{s}, v{s}"); A(f"v_exp_f32 v{s+1}, v{s+1}")
        if pend is not None: PV(*pend); pend=None
        A(f"v_exp_f32 v{s+2}, v{s+2}"); A(f"v_exp_f32 v{s+3}, v{s+3}")
        if extra: o+=extra.pop(0)
        pend=cvt(n) or pend
    A("s_nop 1")
    PV(*pend)
    return o
def tail(i):
    o=[]; A=lambda s:o.append(I(s))
    T=168
    A(f"v_rcp_f32 v{T}, v{V_O+8}"); A("s_nop 0")
    for db in range(2):
        for r in range(4): A(f"v_mul_f32 v{V_O+4*db+r}, v{V_O+4*db+r}, v{T}")
    for db in range(2):
        A(f"v_cvt_pk_bf16_f32 v{76+2*db}, v{V_O+4*db}, v{V_O+4*db+1}"); A(f"v_cvt_pk_bf16_f32 v{76+2*db+1}, v{V_O+4*db+2}, v{V_O+4*db+3}")
    o.append(VM(f"buffer_store_dwordx4 {q4(76)}, v{V_A}, s[4:7], s{S_OA} offen sc1",("O",)))
    A(f"s_add_u32 s{S_OA}, s{S_OA}, 32768")
    return o

def attention(rest):
    first=[]
    o=[I(f"s_lshl_b32 s30, s{m2.S_HEAD}, 7"), I(f"s_add_u32 s30, s30, s{m2.S_R}"), I("s_lshl_b32 s30, s30, 10")]
    for q in range(2):
        for g in kv_group("K",q): o+=g
    loads=kv_group("K",2)+kv_group("K",3)+kv_group("V",0)+kv_group("V",1)+kv_group("V",2)+kv_group("V",3)
    o+=pass1_all(loads)+stamp("a1")
    extra=list(rest)
    prev=[]
    for i in range(4):
        blk=qblock2(i,extra,prev)
        o+=blk+stamp(f"q{i}")
        prev=tail(i)
    o+=[I("s_nop 7")]+prev
    assert not extra, len(extra)
    return o
```

```python
from common import *
import pw
S_MT5,S_NT5,S_KH,S_N2=68,69,70,71
ACC0=32
def acc(nb,mb): return ACC0+(nb*2+mb)*4
def accr(nb,mb): a=acc(nb,mb); return f"v[{a}:{a+3}]"
XA0=0; WA0=64
def xr(n,mb): a=XA0+(n%8)*8+mb*4; return f"a[{a}:{a+3}]"
def wa(n,nb): return WA0+(n%2)*32+nb*4
STAGE=32768; NST=4
S_XO,S_WO,S_WR,S_CNT,S_XEND=24,25,26,28,29
V_DS=2
V_WO=18
V_XO=26
XD=7
def x_load(n,mb): return VM(f"buffer_load_dwordx4 {xr(n,mb)}, v{V_XO+mb}, s[4:7], s{S_XO} offen sc1",("X",n))
def dma(t,i):
    o=[]
    if i%4==0: o.append(I(f"s_add_u32 m0, s{S_WR}, {(i//4)*4096}"))
    o.append(VM(f"buffer_load_dwordx4 v{V_WO+i}, s[12:15], s{S_WO} offen offset:{(i%4)*1024} lds",("D",t)))
    return o
def w_reads(n,nb):
    a=wa(n,nb); t=n//4
    o=(t%2)*STAGE+(n%4)*8192
    return [DS(f"ds_read_b64_tr_b16 a[{a}:{a+1}], v{V_DS+nb} offset:{o}",("W",n,nb)),
            DS(f"ds_read_b64_tr_b16 a[{a+2}:{a+3}], v{V_DS+nb} offset:{o+4096}",("W",n,nb))]
def step_ops(n):
    t=n//4; s=n%4
    mf=[]; gaps={}
    def put(idx,ops): gaps.setdefault(idx,[]).extend(ops)
    for nb in range(8):
        a=wa(n,nb); base=len(mf)
        for mb in ((0,1) if nb%2==0 else (1,0)):
            mf.append(I(f"v_mfma_f32_16x16x32_bf16 {accr(nb,mb)}, a[{a}:{a+3}], {xr(n,mb)}, {accr(nb,mb)}"))
        w=[WL(("W",n,nb),("wl",n%8,nb))] if nb%2==0 or True else []
        if nb==0: w=[WV(("X",n),("wx",n%8))]+w
        put(base,w)
    na=n+1
    pre=[]
    if na%4==0:
        pre=[WV(("D",na//4),("wd",n%8)), I("s_barrier")]
        if (na//4)%2==0: pre+=[I(f"v_xor_b32 v{V_DS+u}, {2*STAGE}, v{V_DS+u}") for u in range(8)]
    put(1,pre)
    for nb in range(8):
        r=w_reads(na,nb); put(1+2*nb,[r[0]]); put(2+2*nb,[r[1]])
    put(3,[x_load(n+XD,0)]); put(9,[x_load(n+XD,1)])
    put(10,[I(f"s_add_u32 s{S_XO}, s{S_XO}, 1024")]); put(11,[I(f"s_cmp_ge_u32 s{S_XO}, s{S_XEND}")]); put(12,[I(f"s_cselect_b32 s{S_XO}, {BIG}, s{S_XO}")])
    if s==3: td,i0=t+3,0
    else: td,i0=t+2,2*(s+1)
    for k,pos in ((0,6),(1,14)):
        d=dma(td,i0+k)
        if len(d)==2: put(pos-1,[d[0]]); put(pos,[d[1]])
        else: put(pos,[d[0]])
    if s==2:
        put(15,[I(f"s_add_u32 s{S_WO}, s{S_WO}, {128*2048}")]); put(16,[I(f"s_add_u32 s{S_WR}, s{S_WR}, {STAGE}"), I(f"s_and_b32 s{S_WR}, s{S_WR}, {NST*STAGE-1}")])
    return weave(mf,gaps)
def body(it):
    o=[]
    for n in range(8*it,8*it+8): o+=step_ops(n)
    return o
def ids():
    o=[]; A=lambda s:o.append(I(s))
    A("s_and_b32 s3, s2, 7"); A("s_lshr_b32 s16, s2, 3")
    A(f"s_and_b32 s{S_KH}, s3, 1"); A("s_lshr_b32 s17, s3, 1"); A("s_lshl_b32 s17, s17, 1"); A("s_and_b32 s18, s16, 1"); A("s_add_u32 s17, s17, s18"); A("s_lshr_b32 s18, s2, 7"); A("s_lshl_b32 s18, s18, 3"); A(f"s_add_u32 s{S_MT5}, s17, s18")
    A(f"s_bfe_u32 s{S_NT5}, s16, 0x30001"); A(f"s_lshl_b32 s{S_N2}, s{S_NT5}, 1"); A(f"s_add_u32 s{S_N2}, s{S_N2}, s{S_KH}")
    return o
def w_setup():
    o=[]; A=lambda s:o.append(I(s))
    A("v_lshrrev_b32 v4, 4, v1"); A("v_bfe_u32 v5, v1, 1, 3"); A("v_and_b32 v26, 1, v1"); A("v_lshlrev_b32 v26, 4, v26")
    A(f"s_lshl_b32 s16, s{S_W}, 16")
    for i in range(8):
        A(f"v_add_u32 v27, {(4*i)&7}, v4"); A("v_xor_b32 v27, v27, v5"); A("v_lshlrev_b32 v27, 5, v27"); A("v_add_u32 v27, v27, v26")
        A(f"v_add_u32 v28, {4*i}, v4"); A("v_lshlrev_b32 v28, 11, v28"); A("v_add3_u32 v27, v27, v28, s16")
        if i%4: A(f"v_subrev_u32 v{V_WO+i}, {(i%4)*1024}, v27")
        else: A(f"v_mov_b32 v{V_WO+i}, v27")
    A(f"s_mul_i32 s16, s{S_KH}, {1792*2048}"); A(f"s_lshl_b32 s17, s{S_NT5}, 8"); A("s_add_u32 s16, s16, s17")
    A(f"s_add_u32 s12, s{P_WD}, s16"); A(f"s_addc_u32 s13, s{P_WD+1}, 0"); A(f"s_sub_u32 s14, {1792*2048}, s17"); A("s_mov_b32 s15, 0x20000")
    return o
def w_fill():
    o=[]; A=lambda s:o.append(I(s))
    for t in range(3):
        for i in range(8 if t<2 else 2):
            d=dma(t,i)
            if len(d)==2: o.extend([d[0],I("s_nop 0"),d[1]])
            else: o.extend(d)
        if t<2: A(f"s_add_u32 s{S_WO}, s{S_WO}, {128*2048}"); A(f"s_add_u32 s{S_WR}, s{S_WR}, {STAGE}")
    return o
def w_fill_groups():
    g=[]
    for t,n in ((0,8),(1,8),(2,2)):
        for i in range(n):
            o=[]
            if t==0 and i==0: o+=[I(f"s_lshl_b32 s{S_WR}, s{S_W}, 13"), I(f"s_mov_b32 s{S_WO}, 0")]
            if t>0 and i==0: o+=[I(f"s_add_u32 s{S_WO}, s{S_WO}, {128*2048}"), I(f"s_add_u32 s{S_WR}, s{S_WR}, {STAGE}")]
            d=dma(t,i)
            o+= [d[0],I("s_nop 0"),d[1]] if len(d)==2 else d
            g.append(o)
    return g
def w_fill_all():
    o=[]; A=lambda s:o.append(I(s))
    L0=lbl("Lf5")
    def pieces(so,wr,reg):
        r=[]
        for t,n in ((0,8),(1,8),(2,2)):
            r.append(I(f"s_add_u32 s18, s{so}, {t*128*2048}"))
            for i in range(n):
                if i%4==0: r.append(I(f"s_add_u32 m0, s{wr}, {t*STAGE+(i//4)*4096}")); r.append(I("s_nop 0"))
                if reg: r.append(VM(f"buffer_load_dwordx4 v{V_WO+i}, s[12:15], s18 offen offset:{(i%4)*1024} lds",("D",t)))
                else:   r.append(I(f"buffer_load_dwordx4 v{96+20+i}, s[12:15], s18 offen offset:{(i%4)*1024} lds"))
        return r
    own=pieces(S_WO,S_WR,True)
    LW=lbl("Lf5w")
    A(f"s_cmp_lg_u32 s{S_W}, 0"); A(f"s_cbranch_scc1 {LW}")
    A("s_waitcnt vmcnt(0)")
    A(f"s_branch {L0}")
    o.append(RAW(f"{LW}:"))
    o+=own
    A(f"s_cmp_eq_u32 s{S_W}, 1"); A(f"s_cbranch_scc0 {L0}")
    for i in range(8): A(f"v_subrev_u32 v{96+20+i}, {32*2048}, v{V_WO+i}")
    A(f"s_sub_u32 s17, s{S_WR}, 8192")
    o+=pieces(S_WO,17,False)
    o.append(RAW(f"{L0}:"))
    A(f"s_add_u32 s{S_WO}, s{S_WO}, {2*128*2048}"); A(f"s_add_u32 s{S_WR}, s{S_WR}, {2*STAGE}"); A(f"s_mov_b32 m0, s{S_WR}")
    return o
def rest_setup():
    o=[]; A=lambda s:o.append(I(s))
    A("v_lshrrev_b32 v28, 2, v1"); A("v_lshlrev_b32 v29, 8, v28"); A("v_and_b32 v31, 7, v28"); A("v_lshlrev_b32 v31, 5, v31"); A("v_add_u32 v29, v29, v31")
    A("v_and_b32 v31, 3, v1"); A("v_lshlrev_b32 v31, 3, v31"); A("v_add_u32 v29, v29, v31")
    A(f"s_lshl_b32 s16, s{S_KH}, 7")
    for nb in range(8):
        A(f"s_xor_b32 s17, s16, {nb*32}"); A(f"v_xor_b32 v{V_DS+nb}, s17, v29")
    A(f"s_lshl_b32 s16, s{S_MT5}, 2"); A(f"s_add_u32 s16, s16, s{S_W}"); A(f"s_mul_i32 s16, s16, {2*112*1024}"); A(f"s_mul_i32 s17, s{S_KH}, {56*1024}"); A("s_add_u32 s16, s16, s17")
    A(f"s_add_u32 s16, s16, {ACT_FO}"); A("v_lshlrev_b32 v28, 4, v1"); A(f"v_add_u32 v{V_XO}, s16, v28"); A(f"v_add_u32 v{V_XO+1}, {112*1024}, v{V_XO}")
    A(f"s_mov_b32 s{S_XO}, 0"); A(f"s_mov_b32 s{S_XEND}, {56*1024}")
    return o
def resid():
    r=[]; A=lambda s:r.append(I(s))
    A(f"s_lshl_b32 s16, s{S_MT5}, 2"); A(f"s_add_u32 s16, s16, s{S_W}"); A("s_lshl_b32 s16, s16, 16")
    A(f"s_lshl_b32 s17, s{S_N2}, 11"); A("s_add_u32 s16, s16, s17"); A(f"s_add_u32 s16, s16, {H_FO}")
    A("v_lshlrev_b32 v28, 4, v1"); A("v_add_u32 v28, s16, v28"); A("v_add_u32 v29, 32768, v28")
    for mb in range(2):
        for j in range(2):
            q=96+(mb*2+j)*4
            r.append(VM(f"buffer_load_dwordx4 v[{q}:{q+3}], v{28+mb}, s[4:7], 0 offen offset:{j*1024} sc1",("R",)))
    A(f"s_lshl_b32 s16, s{S_MT5}, 9"); A(f"s_lshl_b32 s17, s{S_W}, 7"); A("s_add_u32 s16, s16, s17"); A(f"s_add_u32 s16, s16, {MU2}")
    A("v_and_b32 v28, 15, v1"); A("v_lshlrev_b32 v28, 2, v28")
    r.append(VM("buffer_load_dword v112, v28, s[4:7], s16 offen sc1",("R",))); r.append(VM("buffer_load_dword v114, v28, s[4:7], s16 offen offset:64 sc1",("R",)))
    u=pw.resid_p5_unpack()
    for mb in range(2):
        for nb in range(4):
            a=acc(nb,mb)
            for h in range(2): u.append(I(f"v_pk_add_f32 v[{a+2*h}:{a+2*h+1}], v[{a+2*h}:{a+2*h+1}], v[{112+2*mb}:{113+2*mb}] op_sel:[0,0] op_sel_hi:[1,0]"))
    z=[I(f"v_mov_b32 v{acc(4,0)+i}, 0") for i in range(32)]
    return r,u+z
def x_fill():
    o=[]
    for n in range(XD): o+=[x_load(n,0),x_load(n,1),I(f"s_add_u32 s{S_XO}, s{S_XO}, 1024")]
    return o
def start():
    o=[WV(("D",0),"pd0"), I("s_barrier")]
    for nb in range(8): o+=w_reads(0,nb)
    return o
def exchange():
    o=[]; A=lambda s:o.append(I(s))
    A("s_nop 7")
    A(f"s_lshl_b32 s16, s{S_MT5}, 3"); A(f"s_add_u32 s16, s16, s{S_NT5}"); A("s_lshl_b32 s16, s16, 1"); A(f"s_add_u32 s17, s16, s{S_KH}")
    A(f"s_xor_b32 s18, s17, 1")
    for r in (17,18):
        A(f"s_lshl_b32 s{r}, s{r}, 2"); A(f"s_add_u32 s{r}, s{r}, s{S_W}"); A(f"s_lshl_b32 s{r}, s{r}, 13"); A(f"s_add_u32 s{r}, s{r}, {XCH}")
    A("s_mov_b32 s27, s18")
    A("v_lshlrev_b32 v23, 4, v1"); A("v_add_u32 v22, 4096, v23")
    for i in range(8):
        a=acc(4+i//2,i%2)
        o.append(VM(f"buffer_store_dwordx4 v[{a}:{a+3}], v{23 if i<4 else 22}, s[4:7], s17 offen offset:{(i%4)*1024} sc1",("XS",)))
    o.append(WV(("XS",),"xs")); A("s_barrier")
    L0=lbl("Lx"); L=lbl("Lx"); Pl=lbl("Lxp")
    A("s_lshl_b32 s16, s2, 8"); A(f"s_add_u32 s16, s16, {S_XF}")
    A(f"s_cmp_eq_u32 s{S_W}, 1"); A(f"s_cbranch_scc0 {L0}")
    A("s_xor_b32 s17, s16, 256"); A("v_mov_b32 v24, 1"); A(f"buffer_atomic_add v24, v{V_L0}, s[4:7], s17 offen sc1")
    o.append(RAW(f"{L0}:"))
    A(f"s_cmp_eq_u32 s{S_W}, 0"); A(f"s_cbranch_scc0 {L}")
    A("s_mov_b32 s19, 0"); o.append(RAW(f"{Pl}:")); A("s_add_u32 s19, s19, 1"); A("s_cmp_gt_u32 s19, 300000"); A(f"s_cbranch_scc1 {L}")
    A(f"buffer_load_dword v24, v{V_L0}, s[4:7], s16 offen sc1"); A("s_waitcnt vmcnt(0)")
    A("v_readfirstlane_b32 s17, v24"); A("s_cmp_ge_u32 s17, 1"); A(f"s_cbranch_scc0 {Pl}")
    o.append(RAW(f"{L}:")); A("s_barrier")
    for i in range(8):
        o.append(VM(f"buffer_load_dwordx4 v[{128+4*i}:{131+4*i}], v{23 if i<4 else 22}, s[4:7], s27 offen offset:{(i%4)*1024} sc1",("XR",i)))
    for i in range(8):
        o.append(WV(("XR",i),("xr",i)))
        a=acc(i//2,i%2)
        for h in range(2): A(f"v_pk_add_f32 v[{a+2*h}:{a+2*h+1}], v[{a+2*h}:{a+2*h+1}], v[{128+4*i+2*h}:{129+4*i+2*h}]")
    return o
def final():
    pw.S_MT=S_MT5; pw.S_NT=S_N2
    o=[I(f"s_mov_b32 s12, s{P_OUT}"), I(f"s_mov_b32 s13, s{P_OUT+1}"), I("s_mov_b32 s14, 0x400000"), I("s_mov_b32 s15, 0x20000")]
    return o+pw.epi_p5()
```

```python
import sys
from common import *
import common
import m1,m2,m2a,m3,m4,m5,pw,p4,p1
NAME="sequential_preLN__sliding_block__glu_gated_bilinear__prompt_kernel"
HDR=open("sequential_preLN__sliding_block__glu_gated_bilinear__prompt.s.ref").read().split("; Override launch geometry")[0]
def T(ops): return text(ops)
R4=[1,2,2,1,2]
assert sum(R4)==8
def build(stamps=False):
    common.STAMPS[0]=stamps; common.NSTAMP[0]=0; common.NAMES.clear(); common._lbl[0]=0
    out=[khead(NAME)]
    pw.S_MT=S_MT; pw.S_NT=S_J
    m1.WOSET[:]=m2.wo_voffsets()
    out.append(m1.gen())
    sh,rest=m2.split_sprinkle()
    e1=m1.epilogue(m2.wo_srd(),[]); rest=sh+rest; s2=m2.setup(); kw=m2.kv_publish_and_wait(); kl=m2.kv_loads()
    od=cnt_addr([I(f"s_lshl_b32 s16, s{S_MT}, 3")],C_OD)
    odw=cnt_addr([I(f"s_lshl_b32 s16, s{S_MT}, 3"), I(f"s_and_b32 s17, s{S_J}, 7"), I("s_add_u32 s16, s16, s17")],C_OD)
    cg=m2.wbar_to_lds()+m3.wb_setup()
    ru=[WV(("D",3),"wo_landed")]+m3.resid_unpack()
    hO=handoff(("O",),"pubO",od,odw,16,cg+ru,[I(f"v_mov_b32 v{r}, 0") for r in range(128,256) if r not in (144,145)]+m4.ids()+m4.w_setup())
    xf=m3.x_fill2(); fr=m3.first_reads()
    tch=m4.touch_setup()+m4.touch_w(0,9)
    at=m2a.attention(rest+[tch])
    g4=[]
    for t in range(2):
        for i in range(7):
            d=p4.dma(t,i); d[1].tag=("D4",t)
            pre=[I(f"s_add_u32 s{p4.S_WO}, s{p4.S_WO}, {64*7168}"), I(f"s_add_u32 s{p4.S_WR}, s{p4.S_WR}, {p4.STAGE}")] if (t==1 and i==0) else []
            g4.append(pre+[d[0],I("s_nop 0"),d[1]])
    hd=cnt_addr([I(f"s_lshr_b32 s16, s{S_MT}, 1"), I("s_lshl_b32 s16, s16, 3")],C_HD)
    hw=cnt_addr([I(f"s_lshl_b32 s16, s{m4.S_M8}, 3"), I(f"s_and_b32 s17, s{m4.S_NT}, 7"), I("s_add_u32 s16, s16, s17")],C_HD)
    d2a=[I(f"s_add_u32 s{p4.S_WO}, s{p4.S_WO}, {64*7168}"), I(f"s_add_u32 s{p4.S_WR}, s{p4.S_WR}, {p4.STAGE}")]
    for i in range(4):
        d=p4.dma(2,i); d2a+=[d[0],I("s_nop 0"),d[1]]
    seg=e1+stamp("p1epi")+s2+kw+stamp("kvsync")+at+stamp("attn")+hO+stamp("osync")+xf+fr+stamp("p3go")+m3.full(g4)
    seg+=stamp("p3end")+m3.epilogue_stores()+stamp("hst")
    seg+=handoff(("H",),"pubH",hd,hw,32,m4.rest_setup()+m5.ids()+m5.w_setup(),[])
    st4=m4.start(); st4[0]=WV(("D4",1),"pd0")
    seg+=stamp("hsync")+m4.x_fill()+d2a+st4+[I(f"s_mov_b32 s{p4.S_CNT}, {R4[0]}"), I("s_mov_b32 s33, 0")]
    bodies=[m4.body(i) for i in range(3)]
    simulate(seg+bodies[0]+bodies[1]+bodies[2]); b4=resolve(bodies)
    out.append(T(seg)); out.append(T(stamp("p4loop"))); out.append(".p2align 6\nL4_loop:"); out.append(T(b4))
    out.append(f"    s_sub_u32 s{p4.S_CNT}, s{p4.S_CNT}, 1\n    s_cmp_lg_u32 s{p4.S_CNT}, 0\n    s_cbranch_scc1 L4_loop")
    mids=[m4.touch_w(9,7), m4.touch_wd(0,2), m4.touch_wd(1,2), m4.mid_loads()]
    for k in range(len(mids)): out.append(f"    s_cmp_eq_u32 s33, {k}\n    s_cbranch_scc1 L4_mid{k}")
    out.append("    s_branch L4_end")
    for k,m in enumerate(mids):
        out.append(f"L4_mid{k}:"); out.append(T(m)); out.append(f"    s_mov_b32 s33, {k+1}\n    s_mov_b32 s{p4.S_CNT}, {R4[k+1]}\n    s_branch L4_loop")
    out.append("L4_end:")
    seg=stamp("p4end")+[I("s_waitcnt vmcnt(0) lgkmcnt(0)")]+m4.epi_prep()
    simulate(seg); out.append(T(seg))
    out.append(f"    s_and_b32 s17, s{m4.S_NT}, 1\n    s_cmp_eq_u32 s17, 1\n    s_cbranch_scc1 L4_epi1")
    e0=m4.epilogue(0,[]); e1_=m4.epilogue(1,[])
    out.append(T(e0)); out.append("    s_branch L4_fin\nL4_epi1:"); out.append(T(e1_)); out.append("L4_fin:")
    r,u=m5.resid()
    ad=cnt_addr([I(f"s_lshr_b32 s16, s{m4.S_NT}, 4"), I(f"s_lshl_b32 s17, s{m4.S_M8}, 1"), I("s_add_u32 s16, s16, s17"), I("s_lshl_b32 s16, s16, 3")],C_AD)
    aw=cnt_addr([I(f"s_lshr_b32 s16, s{m5.S_MT5}, 1"), I("s_lshl_b32 s16, s16, 1"), I(f"s_add_u32 s16, s16, s{m5.S_KH}"), I("s_lshl_b32 s16, s16, 3"), I(f"s_add_u32 s16, s16, s{m5.S_NT5}")],C_AD)
    seg=stamp("p4epi")
    seg+=handoff(("ACT",),"pubA",ad,aw,16,m5.rest_setup()+[I(f"s_lshl_b32 s{m5.S_WR}, s{S_W}, 13"), I(f"s_mov_b32 s{m5.S_WO}, 0")],r+m5.w_fill_all()+u)
    seg+=stamp("async")+m5.x_fill()+m5.start()+[I(f"s_mov_b32 s{m5.S_CNT}, 7")]+stamp("p5loop")
    acts=list(e0)
    bodies=[m5.body(i) for i in range(3)]
    simulate(acts+seg+bodies[0]+bodies[1]+bodies[2]); b5=resolve(bodies)
    out.append(T(seg)); out.append(".p2align 6\nL5_loop:"); out.append(T(b5))
    out.append(f"    s_sub_u32 s{m5.S_CNT}, s{m5.S_CNT}, 1\n    s_cmp_lg_u32 s{m5.S_CNT}, 0\n    s_cbranch_scc1 L5_loop")
    seg=stamp("p5end")+[I("s_waitcnt vmcnt(0) lgkmcnt(0)")]+m5.exchange()+stamp("xchg")+m5.final()
    simulate(seg); out.append(T(seg))
    if stamps:
        out.append("    s_waitcnt vmcnt(0)"); out.append(T(stamp("end"))); out.append(T(stamp_flush()))
    out.append("L_done:\n    s_endpgm\nL_codeend:")
    s=HDR+"; @launch grid=(256,1,1) block=(256,1,1) lds=163840\n"+'.amdgcn_target "amdgcn-amd-amdhsa--gfx950"\n.text\n'+"\n".join(out)+'\n.section .rodata,"a"\n'+kd(NAME)+"\n"
    return s, list(common.NAMES)
if __name__=="__main__":
    sel=sys.argv[1].split(",") if len(sys.argv)>1 else "start,p1loop,p1end,kvsync,attn,osync,p3end,hsync,p4end,async,p5end,end".split(",")
    common.ONLY[0]=set(sel); common.CYC[0]=len(sel)<=6
    m1.CODEPF[0]=1
    s,names=build(True); open("mega_st.s","w").write(s); open("mega_st.names","w").write("\n".join(names))
    s,_=build(False); open("mega.s","w").write(s)
```

```python
from common import *
import p4 as P
from p4 import (acc,accr,STAGE,NST,CSL,S_XO,S_WO,S_WR,S_RD,S_CNT,V_DSL,V_DS,V_WO,V_XO,dma,w_reads,D)
S_NT,S_M8=34,35
P.S_NT=S_NT; P.S_M8=S_M8
V_R2=2
_xl=P.x_load
def x_load(n,mb):
    op=_xl(n,mb); op.text+=" sc1"; return op
P.x_load=x_load

def ids():
    o=[]; A=lambda s:o.append(I(s))
    A("s_and_b32 s3, s2, 7"); A("s_lshl_b32 s3, s3, 2"); A("s_lshr_b32 s16, s2, 3"); A("s_and_b32 s16, s16, 3")
    A(f"s_add_u32 s{S_NT}, s3, s16"); A(f"s_lshr_b32 s{S_M8}, s2, 5")
    return o
def w_setup():
    o=[]; A=lambda s:o.append(I(s))
    A(f"s_and_b32 s16, s{S_W}, 1"); A("s_mul_i32 s16, s16, 448"); A("s_movk_i32 s17, 4682"); A("s_movk_i32 s18, 7168")
    for i in range(7):
        A(f"v_add_u32 v23, s16, v1")
        if i: A(f"v_add_u32 v23, {64*i}, v23")
        A("v_mul_lo_u32 v24, v23, s17"); A("v_lshrrev_b32 v24, 16, v24")
        A("v_mul_u32_u24 v25, 14, v24"); A("v_sub_u32 v25, v23, v25"); A("v_lshlrev_b32 v25, 4, v25")
        A(f"v_mul_lo_u32 v24, v24, s18"); A(f"v_add_u32 v{V_WO+i}, v24, v25")
    A(f"s_cmp_ge_u32 s{S_W}, 2"); A(f"s_cselect_b32 s8, s{P_WU}, s{P_WG}"); A(f"s_cselect_b32 s9, s{P_WU+1}, s{P_WG+1}")
    A(f"s_mul_i32 s16, s{S_NT}, 224"); A("s_add_u32 s8, s8, s16"); A("s_addc_u32 s9, s9, 0")
    A(f"s_sub_u32 s10, {1024*7168}, s16"); A("s_mov_b32 s11, 0x20000")
    A(f"s_mul_i32 s{S_WR}, s{S_W}, 7168"); A(f"s_mov_b32 s{S_WO}, 0")
    return o
def w_fill():
    o=[]; A=lambda s:o.append(I(s))
    for t in range(3):
        for i in range(7 if t<2 else 4):
            d=dma(t,i); o.extend([d[0],I("s_nop 0"),d[1]])
        if t<2: A(f"s_add_u32 s{S_WO}, s{S_WO}, {64*7168}"); A(f"s_add_u32 s{S_WR}, s{S_WR}, {STAGE}")
    return o
def w_fill_rest():
    o=[]; A=lambda s:o.append(I(s))
    L0=lbl("Lf4"); L1=lbl("Lf4")
    def pieces(so,wr,reg):
        r=[]
        for t,n in ((1,7),(2,4)):
            for i in range(n):
                r.append(I(f"s_add_u32 m0, s{wr}, {i*1024+(t-1)*STAGE}")); r.append(I(f"s_add_u32 s18, s{so}, {(t-1)*64*7168}"))
                txt=f"buffer_load_dwordx4 v{V_WO+i}, s[8:11], s18 offen lds"
                r.append(VM(txt,("D",t)) if reg else I(txt))
        return r
    A(f"s_add_u32 s{S_WO}, s{S_WO}, {64*7168}"); A(f"s_add_u32 s{S_WR}, s{S_WR}, {STAGE}")
    own=pieces(S_WO,S_WR,True)
    A(f"s_cmp_eq_u32 s{S_W}, 0"); A(f"s_cbranch_scc1 {L0}")
    o+=own
    A(f"s_cmp_eq_u32 s{S_W}, 1"); A(f"s_cbranch_scc0 {L0}")
    A(f"s_sub_u32 s16, s{S_WO}, {32*7168}"); A(f"s_sub_u32 s17, s{S_WR}, 7168")
    o+=pieces(16,17,False)
    o.append(RAW(f"{L0}:"))
    A(f"s_add_u32 s{S_WO}, s{S_WO}, {64*7168}"); A(f"s_add_u32 s{S_WR}, s{S_WR}, {STAGE}")
    return o
def rest_setup():
    o=[]; A=lambda s:o.append(I(s))
    A("v_lshrrev_b32 v23, 2, v1"); A("v_mul_u32_u24 v23, 224, v23"); A("v_and_b32 v24, 3, v1"); A("v_lshlrev_b32 v24, 3, v24")
    A(f"v_add_u32 v{V_DSL}, v23, v24"); A(f"v_mov_b32 v{V_DS}, v{V_DSL}")
    A(f"s_lshl_b32 s16, s{S_M8}, 2"); A(f"s_add_u32 s16, s16, s{S_W}"); A("s_lshl_b32 s16, s16, 17")
    A(f"s_add_u32 s17, s16, {H_FO}"); A("v_lshlrev_b32 v23, 4, v1")
    for mb in range(4):
        A(f"v_add_u32 v{V_XO+mb}, s17, v23")
        if mb<3: A(f"s_add_u32 s17, s17, 32768")
    A(f"s_mov_b32 s{S_RD}, 0"); A(f"s_mov_b32 s{S_XO}, 0")
    A(f"s_mul_i32 s{S_CNT+1}, s{S_W}, 7168"); A(f"s_add_u32 s{S_CNT+1}, s{S_CNT+1}, {NST*STAGE}")
    for i in list(range(32,128))+[144,145]: A(f"v_mov_b32 v{i}, 0")
    return o
def x_fill():
    o=[]
    for t in range(3):
        for mb in range(4): o.append(x_load(t,mb))
        o.append(I(f"s_add_u32 s{S_XO}, s{S_XO}, 1024"))
    return o
def start():
    o=[WV(("D",0),"pd0"), I("s_barrier")]
    for f in range(D): o.extend(w_reads(0,f))
    return o
V_T=17; V_T2=29
def touch_setup():
    o=[]; A=lambda s:o.append(I(s))
    A(f"s_cmp_ge_u32 s{S_W}, 2"); A(f"s_cselect_b32 s80, s{P_WU}, s{P_WG}"); A(f"s_cselect_b32 s81, s{P_WU+1}, s{P_WG+1}"); A(f"s_mov_b32 s82, {1024*7168}"); A("s_mov_b32 s83, 0x20000")
    A(f"s_mov_b32 s36, s{P_WD}"); A(f"s_mov_b32 s37, s{P_WD+1}"); A(f"s_mov_b32 s38, {3584*2048}"); A("s_mov_b32 s39, 0x20000")
    return o
def touch_w(t0,ns):
    o=[]; A=lambda s:o.append(I(s))
    A("s_lshl_b32 s16, s2, 1"); A(f"s_and_b32 s17, s{S_W}, 1"); A("s_add_u32 s16, s16, s17"); A(f"s_mul_i32 s16, s16, {7*ns*128}"); A(f"s_add_u32 s16, s16, {t0*64*7168}")
    A("v_lshlrev_b32 v28, 7, v1"); A(f"v_mov_b32 v29, {BIG}"); A(f"v_cmp_gt_u32 vcc, {7*ns}, v1"); A("s_nop 1"); A("v_cndmask_b32 v28, v29, v28, vcc")
    A("buffer_load_dword v29, v28, s[80:83], s16 offen")
    return o
def touch_wd(part,parts):
    o=[]; A=lambda s:o.append(I(s))
    per=56//parts
    A(f"s_mul_i32 s16, s2, {224*128}"); A(f"s_mul_i32 s17, s{S_W}, {56*128}"); A("s_add_u32 s16, s16, s17"); A(f"s_add_u32 s16, s16, {part*per*128}")
    A("v_lshlrev_b32 v28, 7, v1"); A(f"v_mov_b32 v29, {BIG}"); A(f"v_cmp_gt_u32 vcc, {per}, v1"); A("s_nop 1"); A("v_cndmask_b32 v28, v29, v28, vcc")
    A("buffer_load_dword v29, v28, s[36:39], s16 offen")
    return o
def body(it): return P.body(it)
AX=96
def mid_loads():
    o=[]; A=lambda s:o.append(I(s))
    A(f"s_lshl_b32 s16, s{S_M8}, 2"); A(f"s_add_u32 s16, s16, s{S_W}"); A("s_lshl_b32 s16, s16, 13"); A(f"s_add_u32 s16, s16, {STATS2}")
    A("v_and_b32 v4, 15, v1"); A("v_lshlrev_b32 v4, 3, v4"); A("v_lshrrev_b32 v5, 4, v1"); A("v_lshlrev_b32 v5, 9, v5")
    A("v_add_u32 v4, v4, v5"); A("v_add_u32 v4, s16, v4")
    for mb in range(4):
        A(f"s_mov_b32 s17, {mb*2048}")
        for i in range(4):
            r=AX+8+(mb*4+i)*2
            A(f"buffer_load_dwordx2 a[{r}:{r+1}], v4, s[4:7], s17 offen offset:{i*128} sc1")
    return o
def epi_prep():
    o=[]; A=lambda s:o.append(I(s))
    A(f"s_lshl_b32 s16, s{S_M8}, 4"); A(f"s_lshl_b32 s17, s{S_W}, 2"); A("s_add_u32 s16, s16, s17")
    A("s_mul_i32 s16, s16, 112"); A(f"s_mul_i32 s17, s{S_NT}, 7"); A("s_lshr_b32 s17, s17, 1"); A("s_add_u32 s16, s16, s17")
    A("s_lshl_b32 s16, s16, 10"); A(f"s_add_u32 s16, s16, {ACT_FO}")
    A("v_lshlrev_b32 v26, 4, v1")
    for mb in range(4):
        A(f"v_add_u32 v{V_XO+mb}, s16, v26"); A(f"s_add_u32 s16, s16, {112*1024}")
    return o
def epilogue(parity, extra):
    o=[]; A=lambda s:o.append(I(s))
    extra=list(extra); nst=[0]
    if extra: o+=extra.pop(0)+extra.pop(0)
    if parity==0: pairs=[(0,1,0),(2,3,1),(4,5,2),(6,None,3)]
    else: pairs=[(None,0,0),(1,2,1),(3,4,2),(5,6,3)]
    def bc(reg): return (reg&~1, reg&1)
    for (ba,bb,go) in pairs:
        for mb in range(4):
            for pos,nb in enumerate((ba,bb)):
                if nb is None: continue
                g=acc(nb,mb); u=acc(nb+7,mb); mp,hi=bc(V_R2+mb)
                for h in range(2): A(f"v_pk_mul_f32 v[{g+2*h}:{g+2*h+1}], v[{g+2*h}:{g+2*h+1}], v[{u+2*h}:{u+2*h+1}]")
                d = g if (pos==0 or ba is None) else acc(ba,mb)+2
                A(f"v_cvt_pk_bf16_f32 v{d}, v{g}, v{g+1}"); A(f"v_cvt_pk_bf16_f32 v{d+1}, v{g+2}, v{g+3}")
            if ba is not None and bb is not None:
                a=acc(ba,mb); o.append(VM(f"buffer_store_dwordx4 v[{a}:{a+3}], v{V_XO+mb}, s[4:7], 0 offen offset:{go*1024} sc1",("ACT",)))
            elif bb is None:
                a=acc(ba,mb); o.append(VM(f"buffer_store_dwordx2 v[{a}:{a+1}], v{V_XO+mb}, s[4:7], 0 offen offset:{go*1024} sc1",("ACT",)))
            else:
                a=acc(bb,mb); o.append(VM(f"buffer_store_dwordx2 v[{a}:{a+1}], v{V_XO+mb}, s[4:7], 0 offen offset:{go*1024+8} sc1",("ACT",)))
            nst[0]+=1
            if nst[0]<16 and extra: o+=extra.pop(0)
    assert not extra
    return o

from p4 import wslot, xr, WA0
TAIL=[]
for p_ in range(7): TAIL+=[(p_,30),(p_+7,30),(p_,31),(p_+7,31)]
def tail_read(k):
    f,st=TAIL[k]; a=WA0+(k%7)*4
    o=(f//7)*14336+(32*(st%2))*224+(f%7)*32
    return [DS(f"ds_read_b64_tr_b16 a[{a}:{a+1}], v{V_DS} offset:{o}",("WT",k)), DS(f"ds_read_b64_tr_b16 a[{a+2}:{a+3}], v{V_DS} offset:{o+16*224}",("WT",k))]
def last_common():
    out=[]
    for n in (28,29):
        t=n//2; s_=n%2; mf=[]; gaps={}
        def put(idx,ops): gaps.setdefault(idx,[]).extend(ops)
        for f in range(14):
            base=len(mf); a=wslot(f)
            for mb in (range(4) if f%2==0 else range(3,-1,-1)):
                mf.append(I(f"v_mfma_f32_16x16x32_bf16 {accr(f,mb)}, a[{a}:{a+3}], {xr(n%4,mb)}, {accr(f,mb)}"))
            pre=[WL(("W",n,f),("lwl",n,f))]
            if f==0: pre=[WV(("X",n),("lwx",n))]+pre
            put(base,pre)
            fa=f+D
            if fa<14: rd=w_reads(n,fa)
            elif n==28: rd=w_reads(29,fa-14)
            else: rd=tail_read(fa-14)
            if n==29 and fa==14:
                put(base+1,[WV(("D",15),"lwd"), I("s_barrier"), I(f"v_add_u32 v{V_DS}, s{S_RD}, v{V_DSL}")]); put(base+2,[rd[0]]); put(base+3,[rd[1]])
            else:
                put(base+1,[rd[0]]); put(base+2,[rd[1]])
        if n==28:
            for mb in range(4): put(4*(1+mb)+3,[x_load(31,mb)])
            put(4*12+3,[I(f"s_add_u32 s{S_RD}, s{S_RD}, {STAGE}")]); put(4*13+0,[I(f"s_cmp_ge_u32 s{S_RD}, {NST*STAGE}")]); put(4*13+3,[I(f"s_cselect_b32 s{S_RD}, 0, s{S_RD}")])
        else:
            ep=epi_prep(); pos=[x for k in range(13) for x in (4*k+3,4*k+4)]
            assert len(ep)<=len(pos)
            for op,g in zip(ep,pos): put(g,[op])
        out+=weave(mf,gaps)
    return out
def tail(parity):
    mf=[]; gaps={}
    ng=28*4
    use={g:[] for g in range(ng+1)}
    def cls(op): return opclass(op)
    def room(g,op):
        c=[cls(o) for o in use[g] if cls(o)!="W"]; k=cls(op)
        if k=="W": return True
        if len(c)>=2: return False
        if k in "DM" and ("D" in c or "M" in c): return False
        return True
    for k,(f,st) in enumerate(TAIL):
        a=WA0+(k%7)*4
        for mb in (range(4) if k%2==0 else range(3,-1,-1)):
            mf.append(I(f"v_mfma_f32_16x16x32_bf16 {accr(f,mb)}, a[{a}:{a+3}], {xr(st%4,mb)}, {accr(f,mb)}"))
        pre=[WL(("WT",k),("twl",parity,k))]
        if k==0: pre=[WV(("X",30),("twx",parity,30))]+pre
        if k==2: pre=[WV(("X",31),("twx",parity,31))]+pre
        use[4*k]+=pre
        if k+D<28:
            rd=tail_read(k+D); use[4*k+1].append(rd[0]); use[4*k+2].append(rd[1])
    pairs=[(0,1,0),(2,3,1),(4,5,2),(6,None,3)] if parity==0 else [(None,0,0),(1,2,1),(3,4,2),(5,6,3)]
    role={}
    for (ba,bb,go) in pairs:
        if ba is not None: role[ba]=(0,ba,bb,go)
        if bb is not None: role[bb]=(1,ba,bb,go)
    rest=[]; g=0
    for p in range(7):
        pos,ba,bb,go=role[p]
        q=[]
        for mb in range(4):
            gq=acc(p,mb); u=acc(p+7,mb)
            for r in range(4): q.append(I(f"v_mul_f32 v{gq+r}, v{gq+r}, v{u+r}"))
            d = gq if (pos==0 or ba is None) else acc(ba,mb)+2
            q.append(I(f"v_cvt_pk_bf16_f32 v{d}, v{gq}, v{gq+1}")); q.append(I(f"v_cvt_pk_bf16_f32 v{d+1}, v{gq+2}, v{gq+3}"))
            if ba is not None and bb is not None:
                if pos==1:
                    a=acc(ba,mb); q.append(VM(f"buffer_store_dwordx4 v[{a}:{a+3}], v{V_XO+mb}, s[4:7], 0 offen offset:{go*1024} sc1",("ACT",)))
            elif bb is None:
                a=acc(ba,mb); q.append(VM(f"buffer_store_dwordx2 v[{a}:{a+1}], v{V_XO+mb}, s[4:7], 0 offen offset:{go*1024} sc1",("ACT",)))
            else:
                a=acc(bb,mb); q.append(VM(f"buffer_store_dwordx2 v[{a}:{a+1}], v{V_XO+mb}, s[4:7], 0 offen offset:{go*1024+8} sc1",("ACT",)))
        start=16*(p+1)+6
        g=max(g,start)
        for op in q:
            while g<ng and not room(g,op): g+=1
            if g>=ng: rest.append(op)
            else: use[g].append(op)
    body_=weave(mf,{k:v for k,v in use.items() if v})
    return body_+[I("s_nop 7")]+rest
```

```python
from common import *
import pw
S_MT5,S_NT5,S_KH,S_N2=68,69,70,71
ACC0=32
def acc(nb,mb): return ACC0+(nb*2+mb)*4
def accr(nb,mb): a=acc(nb,mb); return f"v[{a}:{a+3}]"
XA0=0; WA0=64
def xr(n,mb): a=XA0+(n%8)*8+mb*4; return f"a[{a}:{a+3}]"
def wa(n,nb): return WA0+(n%2)*32+nb*4
STAGE=32768; NST=4
S_XO,S_WO,S_WR,S_CNT,S_XEND=24,25,26,28,29
V_DS=2
V_WO=18
V_XO=26
XD=7
def x_load(n,mb): return VM(f"buffer_load_dwordx4 {xr(n,mb)}, v{V_XO+mb}, s[4:7], s{S_XO} offen sc1",("X",n))
def dma(t,i):
    o=[]
    if i%4==0: o.append(I(f"s_add_u32 m0, s{S_WR}, {(i//4)*4096}"))
    o.append(VM(f"buffer_load_dwordx4 v{V_WO+i}, s[12:15], s{S_WO} offen offset:{(i%4)*1024} lds",("D",t)))
    return o
def w_reads(n,nb):
    a=wa(n,nb); t=n//4
    o=(t%2)*STAGE+(n%4)*8192
    return [DS(f"ds_read_b64_tr_b16 a[{a}:{a+1}], v{V_DS+nb} offset:{o}",("W",n,nb)),
            DS(f"ds_read_b64_tr_b16 a[{a+2}:{a+3}], v{V_DS+nb} offset:{o+4096}",("W",n,nb))]
def step_ops(n):
    t=n//4; s=n%4
    mf=[]; gaps={}
    def put(idx,ops): gaps.setdefault(idx,[]).extend(ops)
    for nb in range(8):
        a=wa(n,nb); base=len(mf)
        for mb in ((0,1) if nb%2==0 else (1,0)):
            mf.append(I(f"v_mfma_f32_16x16x32_bf16 {accr(nb,mb)}, a[{a}:{a+3}], {xr(n,mb)}, {accr(nb,mb)}"))
        w=[WL(("W",n,nb),("wl",n%8,nb))] if nb%2==0 or True else []
        if nb==0: w=[WV(("X",n),("wx",n%8))]+w
        put(base,w)
    na=n+1
    pre=[]
    if na%4==0:
        pre=[WV(("D",na//4),("wd",n%8)), I("s_barrier")]
        if (na//4)%2==0: pre+=[I(f"v_xor_b32 v{V_DS+u}, {2*STAGE}, v{V_DS+u}") for u in range(8)]
    put(1,pre)
    for nb in range(8):
        r=w_reads(na,nb); put(1+2*nb,[r[0]]); put(2+2*nb,[r[1]])
    put(3,[x_load(n+XD,0)]); put(9,[x_load(n+XD,1)])
    put(10,[I(f"s_add_u32 s{S_XO}, s{S_XO}, 1024")]); put(11,[I(f"s_cmp_ge_u32 s{S_XO}, s{S_XEND}")]); put(12,[I(f"s_cselect_b32 s{S_XO}, {BIG}, s{S_XO}")])
    if s==3: td,i0=t+3,0
    else: td,i0=t+2,2*(s+1)
    for k,pos in ((0,6),(1,14)):
        d=dma(td,i0+k)
        if len(d)==2: put(pos-1,[d[0]]); put(pos,[d[1]])
        else: put(pos,[d[0]])
    if s==2:
        put(15,[I(f"s_add_u32 s{S_WO}, s{S_WO}, {128*2048}")]); put(16,[I(f"s_add_u32 s{S_WR}, s{S_WR}, {STAGE}"), I(f"s_and_b32 s{S_WR}, s{S_WR}, {NST*STAGE-1}")])
    return weave(mf,gaps)
def body(it):
    o=[]
    for n in range(8*it,8*it+8): o+=step_ops(n)
    return o
def ids():
    o=[]; A=lambda s:o.append(I(s))
    A("s_and_b32 s3, s2, 7"); A("s_lshr_b32 s16, s2, 3")
    A(f"s_and_b32 s{S_KH}, s3, 1"); A("s_lshr_b32 s17, s3, 1"); A("s_lshl_b32 s17, s17, 1"); A("s_and_b32 s18, s16, 1"); A("s_add_u32 s17, s17, s18"); A("s_lshr_b32 s18, s2, 7"); A("s_lshl_b32 s18, s18, 3"); A(f"s_add_u32 s{S_MT5}, s17, s18")
    A(f"s_bfe_u32 s{S_NT5}, s16, 0x30001"); A(f"s_lshl_b32 s{S_N2}, s{S_NT5}, 1"); A(f"s_add_u32 s{S_N2}, s{S_N2}, s{S_KH}")
    return o
def w_setup():
    o=[]; A=lambda s:o.append(I(s))
    A("v_lshrrev_b32 v4, 4, v1"); A("v_bfe_u32 v5, v1, 1, 3"); A("v_and_b32 v26, 1, v1"); A("v_lshlrev_b32 v26, 4, v26")
    A(f"s_lshl_b32 s16, s{S_W}, 16")
    for i in range(8):
        A(f"v_add_u32 v27, {(4*i)&7}, v4"); A("v_xor_b32 v27, v27, v5"); A("v_lshlrev_b32 v27, 5, v27"); A("v_add_u32 v27, v27, v26")
        A(f"v_add_u32 v28, {4*i}, v4"); A("v_lshlrev_b32 v28, 11, v28"); A("v_add3_u32 v27, v27, v28, s16")
        if i%4: A(f"v_subrev_u32 v{V_WO+i}, {(i%4)*1024}, v27")
        else: A(f"v_mov_b32 v{V_WO+i}, v27")
    A(f"s_mul_i32 s16, s{S_KH}, {1792*2048}"); A(f"s_lshl_b32 s17, s{S_NT5}, 8"); A("s_add_u32 s16, s16, s17")
    A(f"s_add_u32 s12, s{P_WD}, s16"); A(f"s_addc_u32 s13, s{P_WD+1}, 0"); A(f"s_sub_u32 s14, {1792*2048}, s17"); A("s_mov_b32 s15, 0x20000")
    return o
def w_fill():
    o=[]; A=lambda s:o.append(I(s))
    for t in range(3):
        for i in range(8 if t<2 else 2):
            d=dma(t,i)
            if len(d)==2: o.extend([d[0],I("s_nop 0"),d[1]])
            else: o.extend(d)
        if t<2: A(f"s_add_u32 s{S_WO}, s{S_WO}, {128*2048}"); A(f"s_add_u32 s{S_WR}, s{S_WR}, {STAGE}")
    return o
def w_fill_groups():
    g=[]
    for t,n in ((0,8),(1,8),(2,2)):
        for i in range(n):
            o=[]
            if t==0 and i==0: o+=[I(f"s_lshl_b32 s{S_WR}, s{S_W}, 13"), I(f"s_mov_b32 s{S_WO}, 0")]
            if t>0 and i==0: o+=[I(f"s_add_u32 s{S_WO}, s{S_WO}, {128*2048}"), I(f"s_add_u32 s{S_WR}, s{S_WR}, {STAGE}")]
            d=dma(t,i)
            o+= [d[0],I("s_nop 0"),d[1]] if len(d)==2 else d
            g.append(o)
    return g
def w_fill_all():
    o=[]; A=lambda s:o.append(I(s))
    L0=lbl("Lf5")
    def pieces(so,wr,reg):
        r=[]
        for t,n in ((0,8),(1,8),(2,2)):
            r.append(I(f"s_add_u32 s18, s{so}, {t*128*2048}"))
            for i in range(n):
                if i%4==0: r.append(I(f"s_add_u32 m0, s{wr}, {t*STAGE+(i//4)*4096}")); r.append(I("s_nop 0"))
                if reg: r.append(VM(f"buffer_load_dwordx4 v{V_WO+i}, s[12:15], s18 offen offset:{(i%4)*1024} lds",("D",t)))
                else:   r.append(I(f"buffer_load_dwordx4 v{96+20+i}, s[12:15], s18 offen offset:{(i%4)*1024} lds"))
        return r
    own=pieces(S_WO,S_WR,True)
    LW=lbl("Lf5w")
    A(f"s_cmp_lg_u32 s{S_W}, 0"); A(f"s_cbranch_scc1 {LW}")
    A("s_waitcnt vmcnt(0)")
    A(f"s_branch {L0}")
    o.append(RAW(f"{LW}:"))
    o+=own
    A(f"s_cmp_eq_u32 s{S_W}, 1"); A(f"s_cbranch_scc0 {L0}")
    for i in range(8): A(f"v_subrev_u32 v{96+20+i}, {32*2048}, v{V_WO+i}")
    A(f"s_sub_u32 s17, s{S_WR}, 8192")
    o+=pieces(S_WO,17,False)
    o.append(RAW(f"{L0}:"))
    A(f"s_add_u32 s{S_WO}, s{S_WO}, {2*128*2048}"); A(f"s_add_u32 s{S_WR}, s{S_WR}, {2*STAGE}"); A(f"s_mov_b32 m0, s{S_WR}")
    return o
def rest_setup():
    o=[]; A=lambda s:o.append(I(s))
    A("v_lshrrev_b32 v28, 2, v1"); A("v_lshlrev_b32 v29, 8, v28"); A("v_and_b32 v31, 7, v28"); A("v_lshlrev_b32 v31, 5, v31"); A("v_add_u32 v29, v29, v31")
    A("v_and_b32 v31, 3, v1"); A("v_lshlrev_b32 v31, 3, v31"); A("v_add_u32 v29, v29, v31")
    A(f"s_lshl_b32 s16, s{S_KH}, 7")
    for nb in range(8):
        A(f"s_xor_b32 s17, s16, {nb*32}"); A(f"v_xor_b32 v{V_DS+nb}, s17, v29")
    A(f"s_lshl_b32 s16, s{S_MT5}, 2"); A(f"s_add_u32 s16, s16, s{S_W}"); A(f"s_mul_i32 s16, s16, {2*112*1024}"); A(f"s_mul_i32 s17, s{S_KH}, {56*1024}"); A("s_add_u32 s16, s16, s17")
    A(f"s_add_u32 s16, s16, {ACT_FO}"); A("v_lshlrev_b32 v28, 4, v1"); A(f"v_add_u32 v{V_XO}, s16, v28"); A(f"v_add_u32 v{V_XO+1}, {112*1024}, v{V_XO}")
    A(f"s_mov_b32 s{S_XO}, 0"); A(f"s_mov_b32 s{S_XEND}, {56*1024}")
    return o
V_RES=160
V_R2=144
def resid():
    r=[]; A=lambda s:r.append(I(s))
    A(f"s_lshl_b32 s16, s{S_MT5}, 2"); A(f"s_add_u32 s16, s16, s{S_W}"); A("s_lshl_b32 s16, s16, 16")
    A(f"s_lshl_b32 s17, s{S_N2}, 11"); A("s_add_u32 s16, s16, s17"); A(f"s_add_u32 s16, s16, {H_FO}")
    A("v_lshlrev_b32 v28, 4, v1"); A("v_add_u32 v28, s16, v28"); A("v_add_u32 v29, 32768, v28")
    for mb in range(2):
        for j in range(2):
            q=96+(mb*2+j)*4
            r.append(VM(f"buffer_load_dwordx4 v[{q}:{q+3}], v{28+mb}, s[4:7], 0 offen offset:{j*1024} sc1",("R",)))
    A(f"s_lshl_b32 s16, s{S_MT5}, 9"); A(f"s_lshl_b32 s17, s{S_W}, 7"); A("s_add_u32 s16, s16, s17"); A(f"s_add_u32 s16, s16, {MU2}")
    A("v_and_b32 v28, 15, v1"); A("v_lshlrev_b32 v28, 2, v28")
    r.append(VM("buffer_load_dword v112, v28, s[4:7], s16 offen sc1",("R",))); r.append(VM("buffer_load_dword v114, v28, s[4:7], s16 offen offset:64 sc1",("R",)))
    A(f"s_lshl_b32 s16, s{S_MT5}, 2"); A(f"s_add_u32 s16, s16, s{S_W}"); A("s_lshl_b32 s16, s16, 12"); A(f"s_add_u32 s16, s16, {STATS2}")
    A("v_lshlrev_b32 v28, 1, v28"); A("v_lshrrev_b32 v29, 4, v1"); A("v_lshlrev_b32 v29, 9, v29"); A("v_add_u32 v28, v28, v29")
    for mb in range(2):
        if mb: A("s_add_u32 s16, s16, 2048")
        for i in range(4):
            q=128+(mb*4+i)*2
            r.append(VM(f"buffer_load_dwordx2 v[{q}:{q+1}], v28, s[4:7], s16 offen offset:{i*128} sc1",("R",)))
    u=[WV(("R",),"pr")]; A=lambda s:u.append(I(s))
    for mb in range(2):
        for j in range(2):
            q=96+(mb*2+j)*4
            for h in range(2):
                a=V_RES+((2*j+h)*2+mb)*4
                A(f"v_lshlrev_b32 v{a}, 16, v{q+2*h}"); A(f"v_and_b32 v{a+1}, 0xffff0000, v{q+2*h}")
                A(f"v_lshlrev_b32 v{a+2}, 16, v{q+2*h+1}"); A(f"v_and_b32 v{a+3}, 0xffff0000, v{q+2*h+1}")
    for mb in range(2):
        for nb in range(4):
            a=V_RES+(nb*2+mb)*4
            for h in range(2): A(f"v_pk_add_f32 v[{a+2*h}:{a+2*h+1}], v[{a+2*h}:{a+2*h+1}], v[{112+2*mb}:{113+2*mb}] op_sel:[0,0] op_sel_hi:[1,0]")
    for mb in range(2):
        q=128+mb*8
        A(f"v_pk_add_f32 v[{q}:{q+1}], v[{q}:{q+1}], v[{q+2}:{q+3}]"); A(f"v_pk_add_f32 v[{q+4}:{q+5}], v[{q+4}:{q+5}], v[{q+6}:{q+7}]")
        A(f"v_pk_add_f32 v[{q}:{q+1}], v[{q}:{q+1}], v[{q+4}:{q+5}]")
    regs=[128,129,136,137]
    swap_sum(A,regs,148,"v_permlane16_swap_b32"); swap_sum(A,regs,148,"v_permlane32_swap_b32")
    A("s_mov_b32 s16, 0x3a800000"); A("s_mov_b32 s17, 0x3727c5ac")
    for mb in range(2):
        q=128+mb*8
        A(f"v_mul_f32 v{q}, s16, v{q}"); A(f"v_mul_f32 v{q+1}, s16, v{q+1}")
        A(f"v_fma_f32 v{q+1}, -v{q}, v{q}, v{q+1}"); A(f"v_add_f32 v{q+1}, s17, v{q+1}")
        A(f"v_rcp_f32 v{V_R2+2*mb}, v{q+1}")
    for i in range(64): A(f"v_mov_b32 v{ACC0+i}, 0")
    return r,u
def x_fill():
    o=[]
    for n in range(XD): o+=[x_load(n,0),x_load(n,1),I(f"s_add_u32 s{S_XO}, s{S_XO}, 1024")]
    return o
def start():
    o=[WV(("D",0),"pd0"), I("s_barrier")]
    for nb in range(8): o+=w_reads(0,nb)
    return o
def xchg_addr():
    o=[]; A=lambda s:o.append(I(s))
    A(f"s_lshl_b32 s16, s{S_MT5}, 3"); A(f"s_add_u32 s16, s16, s{S_NT5}"); A("s_lshl_b32 s16, s16, 1"); A(f"s_add_u32 s30, s16, s{S_KH}")
    A(f"s_xor_b32 s27, s30, 1")
    for r in (30,27):
        A(f"s_lshl_b32 s{r}, s{r}, 2"); A(f"s_add_u32 s{r}, s{r}, s{S_W}"); A(f"s_lshl_b32 s{r}, s{r}, 13"); A(f"s_add_u32 s{r}, s{r}, {XCH}")
    A("v_lshlrev_b32 v30, 4, v1") if False else None
    A("v_lshlrev_b32 v28, 4, v1"); A("v_add_u32 v29, 4096, v28")
    return o
def xchg_stores():
    return [VM(f"buffer_store_dwordx4 v[{acc(4+i//2,i%2)}:{acc(4+i//2,i%2)+3}], v{28 if i<4 else 29}, s[4:7], s30 offen offset:{(i%4)*1024} sc1",("XS",)) for i in range(8)]
def last_iteration():
    out=[]
    TA=[(nb,st) for nb in (4,5,6,7,0,1,2,3) for st in range(52,56)]
    def tslot(k): return WA0+(k%16)*4
    def tread(k):
        nb,st=TA[k]; a=tslot(k); o_=(13%2)*STAGE+(st%4)*8192
        return [DS(f"ds_read_b64_tr_b16 a[{a}:{a+1}], v{V_DS+nb} offset:{o_}",("WT",k)), DS(f"ds_read_b64_tr_b16 a[{a+2}:{a+3}], v{V_DS+nb} offset:{o_+4096}",("WT",k))]
    ad=xchg_addr()
    for n in range(48,52):
        mf=[]; gaps={}
        def put(idx,ops): gaps.setdefault(idx,[]).extend(ops)
        for nb in range(8):
            a=wa(n,nb); base=len(mf)
            for mb in ((0,1) if nb%2==0 else (1,0)):
                mf.append(I(f"v_mfma_f32_16x16x32_bf16 {accr(nb,mb)}, a[{a}:{a+3}], {xr(n,mb)}, {accr(nb,mb)}"))
            w=[WL(("W",n,nb),("lwl",n,nb))]
            if nb==0: w=[WV(("X",n),("lwx",n))]+w
            put(base,w)
        if n==51: put(1,[WV(("D",13),"lwd"), I("s_barrier")])
        for nb in range(8):
            r=w_reads(n+1,nb) if n<51 else tread(nb)
            put(1+2*nb,[r[0]]); put(2+2*nb,[r[1]])
        if n==48: put(3,[x_load(55,0)]); put(9,[x_load(55,1)])
        if n in (49,50):
            for g in range(1,16):
                if ad: put(g,[ad.pop(0)])
        out+=weave(mf,gaps)
    assert not ad
    mf=[]; gaps={}
    def put(idx,ops): gaps.setdefault(idx,[]).extend(ops)
    seen=set()
    for k,(nb,st) in enumerate(TA):
        a=tslot(k); base=len(mf)
        for mb in ((0,1) if k%2==0 else (1,0)):
            mf.append(I(f"v_mfma_f32_16x16x32_bf16 {accr(nb,mb)}, a[{a}:{a+3}], {xr(st,mb)}, {accr(nb,mb)}"))
        w=[WL(("WT",k),("twl",k))]
        if st not in seen: w=[WV(("X",st),("twx",st))]+w; seen.add(st)
        put(base,w)
        if k+8<32:
            r=tread(k+8); put(base+1,[r[0]]); put(base+2,[r[1]])
    for i,st_ in enumerate(xchg_stores()): put(32+6+3*i,[st_])
    out+=weave(mf,gaps)
    return out
def exchange():
    o=[]; A=lambda s:o.append(I(s))
    o.append(WV(("XS",),"xs")); A("s_barrier")
    L0=lbl("Lx"); L=lbl("Lx"); Pl=lbl("Lxp")
    A("s_lshl_b32 s16, s2, 8"); A(f"s_add_u32 s16, s16, {S_XF}")
    A(f"s_cmp_eq_u32 s{S_W}, 1"); A(f"s_cbranch_scc0 {L0}")
    A("s_xor_b32 s17, s16, 256"); A("v_mov_b32 v24, 1"); A(f"buffer_atomic_add v24, v{V_L0}, s[4:7], s17 offen sc1")
    o.append(RAW(f"{L0}:"))
    A(f"s_cmp_eq_u32 s{S_W}, 0"); A(f"s_cbranch_scc0 {L}")
    A("s_mov_b32 s19, 0"); o.append(RAW(f"{Pl}:")); A("s_add_u32 s19, s19, 1"); A("s_cmp_gt_u32 s19, 300000"); A(f"s_cbranch_scc1 {L}")
    A(f"buffer_load_dword v24, v{V_L0}, s[4:7], s16 offen sc1"); A("s_waitcnt vmcnt(0)")
    A("v_readfirstlane_b32 s17, v24"); A("s_cmp_ge_u32 s17, 1"); A(f"s_cbranch_scc0 {Pl}")
    o.append(RAW(f"{L}:")); A("s_barrier")
    for i in range(8):
        o.append(VM(f"buffer_load_dwordx4 v[{192+4*i}:{195+4*i}], v{28 if i<4 else 29}, s[4:7], s27 offen offset:{(i%4)*1024} sc1",("XR",i)))
    for i in range(8):
        o.append(WV(("XR",i),("xr",i)))
        a=acc(i//2,i%2); mb=i%2; rs=V_RES+4*i
        for h in range(2): A(f"v_pk_add_f32 v[{a+2*h}:{a+2*h+1}], v[{a+2*h}:{a+2*h+1}], v[{192+4*i+2*h}:{193+4*i+2*h}]")
        for h in range(2): A(f"v_pk_fma_f32 v[{a+2*h}:{a+2*h+1}], v[{a+2*h}:{a+2*h+1}], v[{V_R2+2*mb}:{V_R2+2*mb+1}], v[{rs+2*h}:{rs+2*h+1}] op_sel:[0,0,0] op_sel_hi:[1,0,1]")
    return o
def final():
    pw.S_MT=S_MT5; pw.S_NT=S_N2
    o=[I(f"s_mov_b32 s12, s{P_OUT}"), I(f"s_mov_b32 s13, s{P_OUT+1}"), I("s_mov_b32 s14, 0x400000"), I("s_mov_b32 s15, 0x20000")]
    return o+pw.epi_p5()
```

```python
import sys
from common import *
import common
import m1,m2,m2a,m3,m4,m5,pw,p4,p1
NAME="sequential_preLN__sliding_block__glu_gated_bilinear__prompt_kernel"
HDR=open("sequential_preLN__sliding_block__glu_gated_bilinear__prompt.s.ref").read().split("; Override launch geometry")[0]
def T(ops): return text(ops)
R4=[1,2,2,2]
assert sum(R4)==8
def build(stamps=False):
    common.STAMPS[0]=stamps; common.NSTAMP[0]=0; common.NAMES.clear(); common._lbl[0]=0
    out=[khead(NAME)]
    pw.S_MT=S_MT; pw.S_NT=S_J
    m1.WOSET[:]=m2.wo_voffsets()
    out.append(m1.gen())
    sh,rest=m2.split_sprinkle()
    e1=m1.epilogue(m2.wo_srd(),[]); rest=sh+rest; s2=m2.setup(); kw=m2.kv_publish_and_wait(); kl=m2.kv_loads()
    od=cnt_addr([I(f"s_lshl_b32 s16, s{S_MT}, 3")],C_OD)
    odw=cnt_addr([I(f"s_lshl_b32 s16, s{S_MT}, 3"), I(f"s_and_b32 s17, s{S_J}, 7"), I("s_add_u32 s16, s16, s17")],C_OD)
    cg=m2.wbar_to_lds()+m3.wb_setup()
    ru=[WV(("D",3),"wo_landed")]+m3.resid_unpack()
    hO=handoff(("O",),"pubO",od,odw,16,cg+ru,[I(f"v_mov_b32 v{r}, 0") for r in range(128,256) if r not in (144,145)]+m4.ids()+m4.w_setup())
    xf=m3.x_fill2(); fr=m3.first_reads()
    tch=m4.touch_setup()+m4.touch_w(0,9)
    at=m2a.attention(rest+[tch])
    g4=[]
    for t in range(2):
        for i in range(7):
            d=p4.dma(t,i); d[1].tag=("D4",t)
            pre=[I(f"s_add_u32 s{p4.S_WO}, s{p4.S_WO}, {64*7168}"), I(f"s_add_u32 s{p4.S_WR}, s{p4.S_WR}, {p4.STAGE}")] if (t==1 and i==0) else []
            g4.append(pre+[d[0],I("s_nop 0"),d[1]])
    hd=cnt_addr([I(f"s_lshr_b32 s16, s{S_MT}, 1"), I("s_lshl_b32 s16, s16, 3")],C_HD)
    hw=cnt_addr([I(f"s_lshl_b32 s16, s{m4.S_M8}, 3"), I(f"s_and_b32 s17, s{m4.S_NT}, 7"), I("s_add_u32 s16, s16, s17")],C_HD)
    d2a=[I(f"s_add_u32 s{p4.S_WO}, s{p4.S_WO}, {64*7168}"), I(f"s_add_u32 s{p4.S_WR}, s{p4.S_WR}, {p4.STAGE}")]
    for i in range(4):
        d=p4.dma(2,i); d2a+=[d[0],I("s_nop 0"),d[1]]
    seg=e1+stamp("p1epi")+s2+kw+stamp("kvsync")+at+stamp("attn")+hO+stamp("osync")+xf+fr+stamp("p3go")+m3.full(g4)
    seg+=stamp("p3end")+m3.epilogue_stores()+stamp("hst")
    seg+=handoff(("H",),"pubH",hd,hw,32,m4.rest_setup()+m5.ids()+m5.w_setup(),[])
    st4=m4.start(); st4[0]=WV(("D4",1),"pd0")
    seg+=stamp("hsync")+m4.x_fill()+d2a+st4+[I(f"s_mov_b32 s{p4.S_CNT}, {R4[0]}"), I("s_mov_b32 s33, 0")]
    bodies=[m4.body(i) for i in range(3)]
    simulate(seg+bodies[0]+bodies[1]+bodies[2]); b4=resolve(bodies)
    segP4=[]
    out.append(T(seg)); out.append(T(stamp("p4loop"))); out.append(".p2align 6\nL4_loop:"); out.append(T(b4))
    out.append(f"    s_sub_u32 s{p4.S_CNT}, s{p4.S_CNT}, 1\n    s_cmp_lg_u32 s{p4.S_CNT}, 0\n    s_cbranch_scc1 L4_loop")
    mids=[m4.touch_w(9,7), m4.touch_wd(0,2), m4.touch_wd(1,2), m4.mid_loads()]
    for k in range(len(mids)): out.append(f"    s_cmp_eq_u32 s33, {k}\n    s_cbranch_scc1 L4_mid{k}")
    out.append("    s_branch L4_end")
    for k,m in enumerate(mids):
        out.append(f"L4_mid{k}:"); out.append(T(m)); out.append(f"    s_mov_b32 s33, {k+1}\n    s_mov_b32 s{p4.S_CNT}, {R4[k+1]}\n    s_branch L4_loop")
    out.append("L4_end:")
    bsim=[m4.body(i) for i in range(5,7)]
    lc=m4.last_common(); e0=m4.tail(0); e1_=m4.tail(1)
    b0=[m4.body(i) for i in range(4,7)]
    simulate(segP4+b0[0]+b0[1]+b0[2]+lc+e0)
    n_lc={op.site:op.n for op in lc if op.kind in("wv","wl")}
    b1=[m4.body(i) for i in range(4,7)]; lc1=m4.last_common()
    simulate(segP4+b1[0]+b1[1]+b1[2]+lc1+e1_)
    for a_,b_ in zip(lc,lc1):
        if a_.kind in("wv","wl"): assert a_.n==b_.n
    out.append(T(stamp("p4last")+lc))
    out.append(f"    s_and_b32 s17, s{m4.S_NT}, 1\n    s_cmp_eq_u32 s17, 1\n    s_cbranch_scc1 L4_epi1")
    out.append(T(e0)); out.append("    s_branch L4_fin\nL4_epi1:"); out.append(T(e1_)); out.append("L4_fin:")
    out.append(T(stamp("p4end")))
    r,u=m5.resid()
    ad=cnt_addr([I(f"s_lshr_b32 s16, s{m4.S_NT}, 4"), I(f"s_lshl_b32 s17, s{m4.S_M8}, 1"), I("s_add_u32 s16, s16, s17"), I("s_lshl_b32 s16, s16, 3")],C_AD)
    aw=cnt_addr([I(f"s_lshr_b32 s16, s{m5.S_MT5}, 1"), I("s_lshl_b32 s16, s16, 1"), I(f"s_add_u32 s16, s16, s{m5.S_KH}"), I("s_lshl_b32 s16, s16, 3"), I(f"s_add_u32 s16, s16, s{m5.S_NT5}")],C_AD)
    seg=stamp("p4epi")
    seg+=handoff(("ACT",),"pubA",ad,aw,16,m5.rest_setup()+[I(f"s_lshl_b32 s{m5.S_WR}, s{S_W}, 13"), I(f"s_mov_b32 s{m5.S_WO}, 0")],r+m5.w_fill_all()+u)
    seg+=stamp("async")+m5.x_fill()+m5.start()+[I(f"s_mov_b32 s{m5.S_CNT}, 6")]+stamp("p5loop")
    acts=list(e0)
    bodies=[m5.body(i) for i in range(3)]
    simulate(acts+seg+bodies[0]+bodies[1]+bodies[2]); b5=resolve(bodies)
    out.append(T(seg)); out.append(".p2align 6\nL5_loop:"); out.append(T(b5))
    out.append(f"    s_sub_u32 s{m5.S_CNT}, s{m5.S_CNT}, 1\n    s_cmp_lg_u32 s{m5.S_CNT}, 0\n    s_cbranch_scc1 L5_loop")
    bb=[m5.body(i) for i in range(3,6)]; li=m5.last_iteration()
    seg=li+stamp("p5end")+m5.exchange()+stamp("xchg")+m5.final()
    simulate(bb[0]+bb[1]+bb[2]+seg); out.append(T(seg))
    if stamps:
        out.append("    s_waitcnt vmcnt(0)"); out.append(T(stamp("end"))); out.append(T(stamp_flush()))
    out.append("L_done:\n    s_endpgm\nL_codeend:")
    s=HDR+"; @launch grid=(256,1,1) block=(256,1,1) lds=163840\n"+'.amdgcn_target "amdgcn-amd-amdhsa--gfx950"\n.text\n'+"\n".join(out)+'\n.section .rodata,"a"\n'+kd(NAME)+"\n"
    return s, list(common.NAMES)
if __name__=="__main__":
    sel=sys.argv[1].split(",") if len(sys.argv)>1 else "start,p1loop,p1end,kvsync,attn,osync,p3end,hsync,p4end,async,p5end,end".split(",")
    common.ONLY[0]=set(sel); common.CYC[0]=len(sel)<=6
    m1.CODEPF[0]=1
    s,names=build(True); open("mega_st.s","w").write(s); open("mega_st.names","w").write("\n".join(names))
    s,_=build(False); open("mega.s","w").write(s)
```

```python
from common import *
import p1 as P
from p1 import (S_XO,S_WO,S_WR,S_RD,S_CNT,S_LIM,ACC0,acc,STAGE,NST,V_XD,V_WD,V_XL,V_WL,V_XR,V_WR,V_CS,V_SQ,V_SV,dma_x,dma_w,x_read,w_reads)
V_Q=204; V_K=220; V_V=236
CS_SCR=153600

LATE=[]
LASTMID=[]
WOSET=[]
DELAY=[0]
CODEPF=[0]
KNAME="sequential_preLN__sliding_block__glu_gated_bilinear__prompt_kernel"
def entry():
    o=[]; A=lambda s:o.append(I(s))
    A("s_cmp_ge_u32 s2, 256"); A("s_cbranch_scc1 L_done")
    A(f"s_load_dwordx16 s[84:99], s[0:1], 0")
    A(f"s_load_dwordx2 s[{P_DBG}:{P_DBG+1}], s[0:1], {D_DBG}")
    A(f"s_load_dwordx2 s[4:5], s[0:1], {D_WS}")
    A("v_and_b32 v1, 63, v0"); A("v_lshrrev_b32 v23, 6, v0")
    if CODEPF[0]:
        A("s_getpc_b64 s[24:25]"); o.append(RAW("L_pc:")); A(f"s_sub_u32 s24, s24, L_pc-{KNAME}"); A("s_subb_u32 s25, s25, 0")
        A("s_lshr_b32 s16, s2, 3"); A("s_lshl_b32 s16, s16, 11")
        A("v_and_b32 v2, 15, v0"); A("v_lshlrev_b32 v2, 7, v2"); A("v_add_u32 v2, s16, v2"); A(f"s_mov_b32 s17, L_codeend-{KNAME}")
        A("v_cmp_gt_u32 vcc, s17, v2"); A("v_cmp_gt_u32 s[26:27], 16, v0"); A("s_nop 1"); A("s_and_b64 vcc, vcc, s[26:27]")
        A("s_and_saveexec_b64 s[26:27], vcc"); A("s_cbranch_execz L_nopf")
        A("global_load_dword v29, v2, s[24:25]")
        o.append(RAW("L_nopf:")); A("s_mov_b64 exec, s[26:27]")
    A("s_and_b32 s3, s2, 7"); A("s_lshr_b32 s16, s2, 3")
    A("s_and_b32 s17, s3, 1"); A("s_lshl_b32 s17, s17, 2"); A("s_and_b32 s18, s16, 3"); A("s_add_u32 s17, s17, s18"); A("s_lshr_b32 s18, s2, 7"); A("s_lshl_b32 s18, s18, 3"); A(f"s_add_u32 s{S_MT}, s17, s18")
    A(f"v_readfirstlane_b32 s{S_W}, v23")
    A("s_lshr_b32 s17, s3, 1"); A("s_lshl_b32 s17, s17, 2"); A("s_bfe_u32 s18, s16, 0x20002"); A(f"s_add_u32 s{S_J}, s17, s18")
    A("s_lshr_b32 s17, s16, 4"); A("s_lshl_b32 s18, s3, 1"); A(f"s_add_u32 s{S_M3}, s17, s18"); A(f"s_and_b32 s{S_N3}, s16, 15")
    if DELAY[0]:
        A("s_cmp_ge_u32 s2, 128"); A("s_cbranch_scc0 L_nodelay"); A("s_memrealtime s[24:25]"); A("s_waitcnt lgkmcnt(0)")
        o.append(RAW("L_dl:")); A("s_memrealtime s[26:27]"); A("s_waitcnt lgkmcnt(0)"); A("s_sub_u32 s26, s26, s24"); A(f"s_cmp_lt_u32 s26, {DELAY[0]}"); A("s_cbranch_scc1 L_dl")
        o.append(RAW("L_nodelay:"))
    A(f"v_mov_b32 v{V_L0}, {BIG}"); A("v_cmp_eq_u32 vcc, 0, v1"); A("s_nop 1"); A(f"v_cndmask_b32 v{V_L0}, v{V_L0}, 0, vcc")
    st=P.setup()
    i0=[k for k,op in enumerate(st) if op.text.startswith("v_lshrrev_b32 v23, 3, v1")][0]
    i1=[k for k,op in enumerate(st) if op.text=="s_waitcnt lgkmcnt(0)"][0]
    o+=touch_voff()
    body_=st[i0:i1]
    k=[i for i,op in enumerate(body_) if op.text.startswith(f"s_lshr_b32 s16, s{S_W}, 1")][0]
    o+=body_[:k]
    LATE[:]=body_[k:]
    o+=stamp("prek")
    A("s_waitcnt lgkmcnt(0)")
    o+=stamp("kern")
    A(f"s_mov_b32 s6, {BIG}"); A("s_mov_b32 s7, 0x20000")
    A(f"s_mov_b32 s40, s{P_DBG}"); A(f"s_mov_b32 s41, s{P_DBG+1}"); A("s_mov_b32 s42, 256"); A("s_mov_b32 s43, 0x20000")
    A(f"s_lshl_b32 s16, s{S_MT}, 18"); A(f"s_add_u32 s12, s{P_X}, s16"); A(f"s_addc_u32 s13, s{P_X+1}, 0"); A("s_sub_u32 s14, 0x400000, s16"); A("s_mov_b32 s15, 0x20000")
    A(f"s_lshl_b32 s16, s{S_J}, 7"); A(f"s_add_u32 s8, s{P_WQKV}, s16"); A(f"s_addc_u32 s9, s{P_WQKV+1}, 0"); A(f"s_sub_u32 s10, {1024*6144}, s16"); A("s_mov_b32 s11, 0x20000")
    o+=touch_setup()+touch()
    return o

def zero_sync():
    o=[]; A=lambda s:o.append(I(s))
    A(f"s_lshl_b32 s16, s{S_MT}, 4"); A(f"s_add_u32 s16, s16, s{S_J}"); A("s_lshl_b32 s16, s16, 8"); A(f"s_add_u32 s16, s16, {S_KV}")
    A("s_lshl_b32 s17, s2, 8"); A(f"s_add_u32 s18, s17, {S_CNT0}"); A(f"s_add_u32 s17, s17, {S_XF}")
    A(f"s_add_u32 s19, s18, {256*256}"); A("s_cmp_lt_u32 s2, 64"); A(f"s_cselect_b32 s19, s19, {BIG}")
    A(f"v_mov_b32 v24, {BIG}")
    for lane,sr in ((0,16),(1,17),(2,18),(3,19)):
        A(f"v_mov_b32 v25, s{sr}"); A(f"v_cmp_eq_u32 vcc, {lane}, v0"); A("s_nop 1"); A("v_cndmask_b32 v24, v24, v25, vcc")
    A("v_mov_b32 v25, 0")
    o.append(VM("buffer_store_dword v25, v24, s[4:7], 0 offen sc1",("z",)))
    return o

R0=128
V_CSA=168
V_ONE=192
S_WM=23
def early_loads():
    o=[]; A=lambda s:o.append(I(s))
    A(f"s_lshl_b32 s16, s{S_J}, 14"); A(f"s_lshl_b32 s17, s{S_W}, 12"); A("s_add_u32 s16, s16, s17")
    A("v_lshlrev_b32 v23, 4, v1")
    for q in range(2):
        for h in range(2):
            r=R0+8*q+4*h
            A(f"buffer_load_dwordx4 v[{r}:{r+3}], v23, s[12:15], s16 offen offset:{q*2048+h*1024}")
    A(f"s_mov_b32 s36, s{P_WO}"); A(f"s_mov_b32 s37, s{P_WO+1}"); A(f"s_mov_b32 s38, {1024*2048}"); A("s_mov_b32 s39, 0x20000")
    A("s_lshl_b32 s16, s2, 2"); A(f"s_add_u32 s16, s16, s{S_W}"); A("s_lshl_b32 s16, s16, 11")
    for h in range(2):
        r=R0+24+4*h
        A(f"buffer_load_dwordx4 v[{r}:{r+3}], v23, s[36:39], s16 offen offset:{h*1024}")
    return o
def early_proc():
    o=[]; A=lambda s:o.append(I(s))
    T=R0+16
    A("v_mov_b32 v24, 0x3f803f80")
    for q in range(2):
        for d in range(8):
            r=R0+8*q+d
            if d==0:
                A(f"v_dot2_f32_bf16 v{T+2*q}, v{r}, v24, 0"); A(f"v_dot2_f32_bf16 v{T+2*q+1}, v{r}, v{r}, 0")
            else:
                A(f"v_dot2_f32_bf16 v{T+2*q}, v{r}, v24, v{T+2*q}"); A(f"v_dot2_f32_bf16 v{T+2*q+1}, v{r}, v{r}, v{T+2*q+1}")
    for d in range(8):
        r=R0+24+d
        A(f"v_dot2_f32_bf16 v{T+4}, v{r}, v24, {0 if d==0 else 'v%d'%(T+4)}")
    regs=list(range(T,T+5))
    A("s_nop 2")
    for sh in (8,4,2,1):
        A("s_nop 1")
        for r in regs: A(f"v_add_f32_dpp v{r}, v{r}, v{r} row_ror:{sh} row_mask:0xf bank_mask:0xf")
    swap_sum(A,regs,R0,"v_permlane16_swap_b32"); swap_sum(A,regs,R0,"v_permlane32_swap_b32")
    A("s_mov_b32 s16, 0x3a800000"); A(f"v_mul_f32 v25, s16, v{T+4}")
    A("v_cvt_pk_bf16_f32 v26, v25, v25"); A("v_lshlrev_b32 v27, 16, v26"); A("v_sub_f32 v27, v25, v27"); A("v_cvt_pk_bf16_f32 v27, v27, v27")
    A("v_cmp_eq_u32 vcc, 1, v1"); A("s_nop 1"); A("v_cndmask_b32 v26, v26, v27, vcc")
    A("s_lshl_b32 s16, s2, 2"); A(f"s_add_u32 s16, s16, s{S_W}")
    A("s_lshr_b32 s17, s16, 5"); A("s_lshl_b32 s17, s17, 7")
    A("s_bfe_u32 s18, s16, 0x20002"); A("s_lshl_b32 s18, s18, 5"); A("s_add_u32 s17, s17, s18")
    A("s_bfe_u32 s18, s16, 0x10004"); A("s_lshl_b32 s18, s18, 3"); A("s_add_u32 s17, s17, s18")
    A("s_and_b32 s18, s16, 3"); A("s_lshl_b32 s18, s18, 1"); A("s_add_u32 s17, s17, s18"); A(f"s_add_u32 s17, s17, {WBAR}")
    A("v_lshlrev_b32 v23, 4, v1"); A(f"v_mov_b32 v25, {BIG}"); A("v_cmp_gt_u32 vcc, 2, v1"); A("s_nop 1"); A("v_cndmask_b32 v23, v25, v23, vcc")
    A("buffer_store_short v26, v23, s[4:7], s17 offen sc1")
    A("v_cmp_eq_u32 vcc, 1, v1"); A("s_nop 1")
    A(f"v_cndmask_b32 v26, v{T}, v{T+2}, vcc"); A(f"v_cndmask_b32 v27, v{T+1}, v{T+3}, vcc")
    A("s_mov_b32 s16, 0x3a800000"); A("s_mov_b32 s17, 0x3727c5ac")
    A("v_mul_f32 v26, s16, v26"); A("v_mul_f32 v27, s16, v27"); A("v_fma_f32 v27, -v26, v26, v27"); A("v_add_f32 v27, s17, v27")
    A("v_rsq_f32 v27, v27")
    A(f"s_lshl_b32 s16, s{S_MT}, 10"); A(f"s_lshl_b32 s17, s{S_J}, 6"); A("s_add_u32 s16, s16, s17"); A(f"s_lshl_b32 s17, s{S_W}, 4"); A("s_add_u32 s16, s16, s17"); A(f"s_add_u32 s16, s16, {STATS1}")
    A("v_lshlrev_b32 v23, 3, v1"); A(f"v_mov_b32 v24, {BIG}"); A("v_cmp_gt_u32 vcc, 2, v1"); A("s_nop 1"); A("v_cndmask_b32 v23, v24, v23, vcc")
    A(f"buffer_store_dwordx2 v[26:27], v23, s[4:7], s16 offen sc1")
    return o

def prefetch(which, part=0, parts=1):
    o=[]; A=lambda s:o.append(I(s))
    ptr,nbytes={"wo":(P_WO,1024*2048),"wg":(P_WG,1024*7168),"wu":(P_WU,1024*7168),"wd":(P_WD,3584*2048)}[which]
    lines=nbytes//128//256
    per=lines//4//parts
    assert per*4*parts==lines
    A(f"s_mov_b32 s36, s{ptr}"); A(f"s_mov_b32 s37, s{ptr+1}"); A(f"s_mov_b32 s38, {nbytes}"); A("s_mov_b32 s39, 0x20000")
    A(f"s_mul_i32 s16, s2, {lines*128}"); A(f"s_mul_i32 s17, s{S_W}, {per*parts*128}"); A("s_add_u32 s16, s16, s17"); A(f"s_add_u32 s16, s16, {part*per*128}")
    A("v_lshlrev_b32 v28, 7, v1"); A(f"v_mov_b32 v29, {BIG}"); A(f"v_cmp_gt_u32 vcc, {per}, v1"); A("s_nop 1"); A("v_cndmask_b32 v28, v29, v28, vcc")
    A("buffer_load_dword v29, v28, s[36:39], s16 offen")
    return o

def stats_loads():
    st=P.load_stats()
    k=[i for i,op in enumerate(st) if op.text.startswith("v_lshrrev_b32 v23, 6, v0")][0]
    st=st[:k]
    for op in st:
        if op.kind=="vm": op.text+=" sc1"
    return st

def early_query():
    return [I(f"buffer_load_dword v31, v{V_L0}, {DBG}, 0 offen sc1")]
def mid_section():
    o=[]; A=lambda s:o.append(I(s))
    L=lbl("Lm"); Pl=lbl("Lmp")
    A("v_readfirstlane_b32 s17, v31"); A("s_cmp_ge_u32 s17, 256"); A(f"s_cbranch_scc1 {L}")
    A("s_mov_b32 s19, 0"); o.append(RAW(f"{Pl}:")); A("s_add_u32 s19, s19, 1"); A("s_cmp_gt_u32 s19, 300000"); A(f"s_cbranch_scc1 {L}")
    A(f"buffer_load_dword v31, v{V_L0}, {DBG}, 0 offen sc1"); A("s_waitcnt vmcnt(0)")
    A("v_readfirstlane_b32 s17, v31"); A("s_cmp_ge_u32 s17, 256"); A(f"s_cbranch_scc0 {Pl}")
    o.append(RAW(f"{L}:"))
    for op in stats_loads():
        o.append(I(op.text) if op.kind=="vm" else op)
    return o

V_T=21; S_TO=77
V_T2=22
def touch_setup():
    o=[]; A=lambda s:o.append(I(s))
    A(f"s_mov_b32 s80, s{P_X}"); A(f"s_mov_b32 s81, s{P_X+1}"); A("s_mov_b32 s82, 0x400000"); A("s_mov_b32 s83, 0x20000")
    A(f"s_mov_b32 s{S_TO}, 0"); A("s_mov_b32 s76, 0")
    return o
def touch_voff():
    o=[]; A=lambda s:o.append(I(s))
    A("s_lshl_b32 s16, s2, 3"); A(f"s_lshl_b32 s17, s{S_W}, 2"); A("s_add_u32 s16, s16, s17"); A("s_lshl_b32 s16, s16, 11")
    A("v_lshrrev_b32 v24, 3, v1"); A("v_lshlrev_b32 v24, 11, v24"); A("v_and_b32 v25, 7, v1"); A("v_lshlrev_b32 v25, 7, v25"); A("v_add3_u32 v24, v24, v25, s16")
    A(f"s_cmp_ge_u32 s{S_W}, 2"); A("s_cselect_b32 s18, 0, 32")
    A(f"v_mov_b32 v25, {BIG}"); A("v_cmp_gt_u32 vcc, s18, v1"); A("s_nop 1"); A(f"v_cndmask_b32 v{V_T}, v25, v24, vcc")
    A("s_lshr_b32 s16, s2, 7"); A("s_lshl_b32 s16, s16, 2"); A("s_bfe_u32 s17, s2, 0x20003"); A("s_add_u32 s16, s16, s17"); A("s_mul_i32 s16, s16, 192")
    A(f"s_mul_i32 s17, s{S_W}, 48"); A("s_add_u32 s16, s16, s17"); A("v_add_u32 v24, s16, v1"); A("v_lshlrev_b32 v24, 11, v24")
    A("v_cmp_gt_u32 vcc, 48, v1"); A("s_nop 1"); A(f"v_cndmask_b32 v{V_T2}, v25, v24, vcc")
    return o
def touch():
    return [I(f"buffer_load_dword v29, v{V_T2}, s[8:11], s76 offen"), I(f"buffer_load_dword v29, v{V_T}, s[80:83], s{S_TO} offen"),
            I(f"s_add_u32 s{S_TO}, s{S_TO}, 1024"), I(f"s_add_u32 s76, s76, {1536*2048}")]
def touch4_voff():
    o=[]; A=lambda s:o.append(I(s))
    A("s_lshl_b32 s16, s2, 3"); A(f"s_lshl_b32 s17, s{S_W}, 2"); A("s_add_u32 s16, s16, s17"); A("s_lshl_b32 s16, s16, 11")
    A("v_lshrrev_b32 v24, 2, v1"); A("v_lshlrev_b32 v24, 11, v24"); A("v_and_b32 v25, 3, v1"); A("v_lshlrev_b32 v25, 7, v25"); A("v_add3_u32 v24, v24, v25, s16")
    A("s_lshl_b32 s17, s2, 1"); A(f"s_add_u32 s17, s17, s{S_W}"); A("s_sub_u32 s17, s17, 2"); A("s_mul_i32 s17, s17, 3072")
    A("v_lshlrev_b32 v25, 7, v1"); A("v_add_u32 v25, s17, v25")
    A(f"s_cmp_ge_u32 s{S_W}, 2"); A("s_cselect_b32 s18, 24, 16"); A("s_cselect_b64 vcc, -1, 0"); A("s_nop 1"); A("v_cndmask_b32 v24, v24, v25, vcc")
    A(f"v_mov_b32 v25, {BIG}"); A("v_cmp_gt_u32 vcc, s18, v1"); A("s_nop 1"); A(f"v_cndmask_b32 v{V_T}, v25, v24, vcc")
    A("s_lshr_b32 s76, s76, 1")
    return o
def cs_block(n):
    o=[]
    for nb in range(6):
        a=P.wa(n,nb); c=V_CSA+4*nb
        if nb<4: o.append(I(f"v_mfma_f32_16x16x32_bf16 v[{c}:{c+3}], a[{a}:{a+3}], v[{V_ONE}:{V_ONE+3}], v[{c}:{c+3}]"))
        else:    o.append(I(f"v_mfma_f32_16x16x32_bf16 v[{c}:{c+3}], v[{V_ONE}:{V_ONE+3}], a[{a}:{a+3}], v[{c}:{c+3}]"))
    return o
def step_ops(n, wm):
    t=n//2; s_=n%2
    mf=[]
    for nb in range(6):
        a=P.wa(n,nb)
        for mb in (range(4) if nb%2==0 else range(3,-1,-1)):
            if nb<4: mf.append(I(f"v_mfma_f32_16x16x32_bf16 {P.accr(nb,mb)}, a[{a}:{a+3}], {P.xr(n,mb)}, {P.accr(nb,mb)}"))
            else:    mf.append(I(f"v_mfma_f32_16x16x32_bf16 {P.accr(nb,mb)}, {P.xr(n,mb)}, a[{a}:{a+3}], {P.accr(nb,mb)}"))
    if wm==s_: mf+=cs_block(n)
    gaps={}
    def put(g,ops): gaps.setdefault(g,[]).extend(ops if isinstance(ops,list) else [ops])
    put(0,[WL([("X",n,m) for m in range(4)]+[("W",n,0),("W",n,1)],("w0",s_))])
    put(8,[WL([("W",n,2),("W",n,3)],("w1",s_))]); put(16,[WL([("W",n,4),("W",n,5)],("w2",s_))])
    na=n+1
    rds=[x_read(na,m) for m in range(4)]
    for nb in range(6): rds+=w_reads(na,nb)
    if s_==0:
        td=t+2
        dpos=[1,2,3,5,6,7,9,10,11,13,14,15,17,18,19,21]
        for g,r in zip(dpos,rds): put(g,r)
        for i,g in zip(range(1,6),(4,8,12,16,20)):
            d=dma_w(td,i)
            if len(d)==2: put(g-1,d[0]); put(g,d[1])
            else: put(g,d[0])
        put(1,I(f"s_add_u32 s{S_RD}, s{S_RD}, {STAGE}")); put(2,I(f"s_cmp_ge_u32 s{S_RD}, {NST*STAGE}")); put(3,I(f"s_cselect_b32 s{S_RD}, 0, s{S_RD}"))
        put(21,I(f"s_add_u32 s{S_XO}, s{S_XO}, 128")); put(22,I(f"s_add_u32 s{S_WO}, s{S_WO}, {64*6144}"))
        put(23,[I(f"s_add_u32 s3, s{S_WR}, {STAGE}"), I(f"s_cmp_eq_u32 s3, s{S_LIM}")])
        put(24,[I(f"s_cselect_b32 s{S_WR}, s78, s3"), I(f"s_add_u32 s{S_LIM+1}, s{S_WR}, s{S_LIM+2}")])
    else:
        td=t+3
        put(1,[WV(("D",t+1),("wd",)), I("s_barrier"), I(f"s_cmp_eq_u32 s{S_CNT}, s{S_LIM+3}"), I(f"s_cbranch_scc1 L1_pub{wm}"), RAW(f"L1_pubr{wm}:")])
        put(2,[I(f"v_add_u32 v{V_XR}, s{S_RD}, v{V_XL}"), I(f"v_add_u32 v{V_WR}, s{S_RD}, v{V_WL}")])
        put(3,[I(f"v_add_u32 v{V_WR+1}, s{S_RD}, v{V_WL+1}"), I(f"v_add_u32 v{V_XR+1}, s{S_RD}, v{V_XL+1}")])
        dpos=[4,5,6,8,9,10,12,13,14,16,17,18,20,21,22,24]
        for g,r in zip(dpos,rds): put(g,r)
        for (k,i),g in zip([("x",0),("x",1),("x",2),("x",3),("w",0)],(7,11,15,19,23)):
            d=dma_x(td,i) if k=="x" else dma_w(td,i)
            if len(d)==2: put(g-1,d[0]); put(g,d[1])
            else: put(g,d[0])
    return weave(mf,gaps)
def body(it, wm):
    return step_ops(2*it,wm)+step_ops(2*it+1,wm)

def epilogue(pre=(), groups=()):
    o=_epilogue(pre)
    groups=list(groups); out=[]; cnt=0; started=False
    for op in o:
        out.append(op)
        t=op.text or ""
        if t.startswith("v_pk_fma_f32"): started=True
        if started and t.startswith("v_") and groups:
            cnt+=1
            if cnt%9==0: out+=groups.pop(0)
    assert not groups, len(groups)
    return out
def _epilogue(pre):
    o=[]; A=lambda s:o.append(I(s))
    A("s_waitcnt vmcnt(0) lgkmcnt(0)")
    A("s_barrier")
    o+=list(pre)
    A(f"v_mov_b32 v{V_CSA+17}, v{V_CSA+20}")
    A(f"s_mul_i32 s16, s{S_W}, 5120"); A(f"s_add_u32 s16, s16, {CS_SCR-20480}"); A(f"s_xor_b32 s17, s{S_W}, 2"); A("s_mul_i32 s17, s17, 5120"); A(f"s_add_u32 s17, s17, {CS_SCR-20480}")
    A("v_lshlrev_b32 v23, 4, v1"); A("v_add_u32 v24, s17, v23"); A("v_add_u32 v23, s16, v23")
    for q in range(5): o.append(DS(f"ds_write_b128 v23, v[{V_CSA+4*q}:{V_CSA+4*q+3}] offset:{q*1024}",("cw",)))
    o.append(WL(("cw",),"cw")); A("s_barrier")
    for q in range(5): o.append(DS(f"ds_read_b128 v[{2+4*q}:{5+4*q}], v24 offset:{q*1024}",("cr",)))
    o.append(WL(("cr",),"cr"))
    for q in range(18): A(f"v_add_f32 v{V_CSA+q}, v{V_CSA+q}, v{2+q}")
    A(f"s_and_b32 s16, s{S_W}, 1"); A(f"s_lshl_b32 s17, s{S_J}, 1"); A("s_add_u32 s16, s16, s17")
    A(f"s_lshr_b32 s17, s{S_W}, 1"); A("s_lshl_b32 s17, s17, 2"); A(f"s_lshl_b32 s18, s{S_MT}, 3"); A("s_add_u32 s17, s17, s18")
    A("s_lshl_b32 s16, s16, 7"); A("s_add_u32 s16, s16, s17"); A("s_lshl_b32 s16, s16, 10")
    A("v_lshlrev_b32 v23, 4, v1"); A("v_add_u32 v23, s16, v23")
    A(f"s_mov_b32 s17, {K_FO}"); A(f"s_mov_b32 s18, {VT_FO}"); A("s_mov_b32 s19, 0x3e8293ee")
    def qk(sec):
        for mb in range(4):
            mu=V_SQ+2*mb; rs=mu+1
            if sec==0: A(f"v_mul_f32 v25, s19, v{rs}")
            tq=(V_Q if sec==0 else V_K)+4*mb
            for h in range(2):
                nb=2*sec+h; a=acc(nb,mb); c=168+4*nb
                for e in range(2):
                    A(f"v_pk_fma_f32 v[{a+2*e}:{a+2*e+1}], v[{c+2*e}:{c+2*e+1}], v[{mu}:{mu+1}], v[{a+2*e}:{a+2*e+1}] op_sel:[0,0,0] op_sel_hi:[1,0,1] neg_lo:[0,1,0] neg_hi:[0,1,0]")
                if sec==0:
                    for e in range(2): A(f"v_pk_mul_f32 v[{a+2*e}:{a+2*e+1}], v[{a+2*e}:{a+2*e+1}], v[24:25] op_sel:[0,1] op_sel_hi:[1,1]")
                else:
                    for e in range(2): A(f"v_pk_mul_f32 v[{a+2*e}:{a+2*e+1}], v[{a+2*e}:{a+2*e+1}], v[{mu}:{mu+1}] op_sel:[0,1] op_sel_hi:[1,1]")
                A(f"v_cvt_pk_bf16_f32 v{tq+2*h}, v{a}, v{a+1}"); A(f"v_cvt_pk_bf16_f32 v{tq+2*h+1}, v{a+2}, v{a+3}")
            if sec==1: o.append(VM(f"buffer_store_dwordx4 v[{tq}:{tq+3}], v23, s[4:7], s17 offen offset:{mb*1024} sc1",("KV",)))
    qk(1)
    for gam in range(2):
        for db in range(2):
            tq=V_V+4*(2*gam+db)
            for h in range(2):
                mb=2*gam+h; a=acc(4+db,mb); sv=V_SV+8*mb
                for r in range(4):
                    A(f"v_fma_f32 v{a+r}, -v{sv+2*r}, v{184+db}, v{a+r}"); A(f"v_mul_f32 v{a+r}, v{a+r}, v{sv+2*r+1}")
                A(f"v_cvt_pk_bf16_f32 v{tq+2*h}, v{a}, v{a+1}"); A(f"v_cvt_pk_bf16_f32 v{tq+2*h+1}, v{a+2}, v{a+3}")
            o.append(VM(f"buffer_store_dwordx4 v[{tq}:{tq+3}], v23, s[4:7], s18 offen offset:{(gam*2+db)*1024} sc1",("KV",)))
    qk(0)
    return o

def gen():
    out=[]
    out.append(text(stamp("start")))
    e=entry()
    z=zero_sync()
    for op in z:
        if op.kind=="vm": op.kind="x"
    fill=P.fill()
    init=[I(f"s_lshr_b32 s{S_WM}, s{S_W}, 1"), I(f"s_lshl_b32 s78, s{S_W}, 12")]
    k1=[i for i,op in enumerate(fill) if op.text.startswith(f"s_add_u32 s{S_XO}, s{S_XO}, 128")][0]
    zi=[I(f"v_mov_b32 v{ACC0+i}, 0") for i in range(96)]+[I(f"v_mov_b32 v{V_CSA+i}, 0") for i in range(24)]+[I(f"v_mov_b32 v{V_ONE+i}, 0x3f803f80") for i in range(4)]
    rest=fill[k1:]
    vm=[i for i,op in enumerate(rest) if op.kind=="vm"]
    mix=[]; zq=list(LATE)+zi+list(WOSET)
    per=(len(zq)+len(vm)-1)//len(vm)
    for i,op in enumerate(rest):
        mix.append(op)
        if op.kind=="vm":
            mix+=zq[:per]; zq=zq[per:]
    mix+=zq
    out.append(text(e))
    out.append(text(touch_setup()+touch()+early_loads()))
    out.append(text(fill[:k1])); out.append(text(touch())); out.append(text(stamp("d0iss"))); out.append(text(mix)); out.append(text(stamp("fiss")))
    ts=touch4_voff()+touch()
    out.append(text(init)); out.append(text(stamp("init")))
    pro=[WV(("D",0),"pd0")]+stamp("d0land")+[I("s_barrier")]+[x_read(0,m) for m in range(4)]
    for nb in range(6): pro+=w_reads(0,nb)
    pro+=[I(f"s_mov_b32 s{S_CNT}, {RUNS[0]}"), I(f"s_mov_b32 s{S_LIM+3}, 99"), I("s_mov_b32 s33, 0")]
    bs=[]
    for wm in range(2):
        bodies=[body(i,wm) for i in range(3)]
        simulate(fill+pro+bodies[0]+bodies[1]+bodies[2])
        bs.append(resolve(bodies))
    out.append(text(pro)); out.append(text(stamp("p1loop")))
    out.append(f"L1_disp:\n    s_cmp_eq_u32 s{S_WM}, 1\n    s_cbranch_scc1 L1_loop1")
    for wm in range(2):
        out.append(f".p2align 6\nL1_loop{wm}:"); out.append(text(bs[wm]))
        out.append(f"    s_sub_u32 s{S_CNT}, s{S_CNT}, 1\n    s_cmp_lg_u32 s{S_CNT}, 0\n    s_cbranch_scc1 L1_loop{wm}")
        out.append("    s_branch L1_after")
    for wm in range(2):
        out.append(f"L1_pub{wm}:\n    v_mov_b32 v24, 1\n    buffer_atomic_add v24, v{V_L0}, {DBG}, 0 offen sc1\n    s_branch L1_pubr{wm}")
    out.append("L1_after:")
    mids=[]
    m0=z+early_proc()+stamp("early")
    m0+=[I(f"s_cmp_eq_u32 s{S_W}, 0"), I(f"s_cselect_b32 s{S_LIM+3}, {RUNS[1]-1}, 99")]
    mids.append(m0)
    mids.append([I(f"s_mov_b32 s{S_LIM+3}, 99")]+touch())
    mids.append(early_query())
    mids.append(mid_section())
    for k in range(len(mids)):
        out.append(f"    s_cmp_eq_u32 s33, {k}\n    s_cbranch_scc1 L1_mid{k}")
    out.append("    s_branch L1_end")
    for k,m in enumerate(mids):
        out.append(f"L1_mid{k}:"); out.append(text(m)); out.append(f"    s_mov_b32 s33, {k+1}\n    s_mov_b32 s{S_CNT}, {RUNS[k+1]}\n    s_branch L1_disp")
    out.append("L1_end:")
    out.append(text(stamp("p1end")))
    return "\n".join(out)
RUNS=[1,3,5,3,4]
assert sum(RUNS)==16
```

```python
from common import *
import p2 as P
import pw
import m1
from p2 import (V_SR,V_P,V_O,V_CG,V_MF,V_ML,V_CM,V_NM,V_MFM,V_MLM,V_ONE,V_M,NEG,q4)
KA=0; VA=80
def kfr(b):
    if b>=16: a=m1.V_K+4*(b-16); return f"v[{a}:{a+3}]"
    a=KA+4*b; return f"a[{a}:{a+3}]"
def vfr(gam,db):
    if gam>=8: a=m1.V_V+4*(2*(gam-8)+db); return f"v[{a}:{a+3}]"
    a=VA+4*(2*gam+db); return f"a[{a}:{a+3}]"
def qfr(i): a=m1.V_Q+4*i; return f"v[{a}:{a+3}]"
P.kfr=kfr; P.vfr=vfr; P.qfr=qfr
pw.S_MT=S_M3; pw.S_NT=S_N3
pw.V_WO=196
V_A=16
S_R,S_HEAD,S_OA=23,34,35
CSG=140
GSRD="s[36:39]"
TBUF=pw.TBUF
CSG_LDS=TBUF+16384

def kv_publish_and_wait():
    o=[]; A=lambda s:o.append(I(s))
    o.append(WV(("KV",),"kvd")); A("s_barrier")
    L0=lbl("Lkv"); L=lbl("Lkv"); Pl=lbl("Lkvp")
    A(f"s_lshl_b32 s16, s{S_MT}, 4"); A(f"s_add_u32 s16, s16, s{S_J}"); A("s_lshl_b32 s16, s16, 8"); A(f"s_add_u32 s16, s16, {S_KV}")
    A(f"s_cmp_eq_u32 s{S_W}, 1"); A(f"s_cbranch_scc0 {L0}")
    A("v_add_u32 v24, 1, v1"); A("v_lshlrev_b32 v24, 12, v24"); A(f"s_sub_u32 s17, 15, s{S_MT}"); A("s_min_u32 s17, s17, 2")
    A(f"v_mov_b32 v25, {BIG}"); A("v_cmp_gt_u32 vcc, s17, v1"); A("s_nop 1"); A("v_cndmask_b32 v24, v25, v24, vcc")
    A("v_mov_b32 v25, 1"); A("buffer_atomic_add v25, v24, s[4:7], s16 offen sc1")
    o.append(RAW(f"{L0}:"))
    A(f"s_cmp_eq_u32 s{S_W}, 0"); A(f"s_cbranch_scc0 {L}")
    A(f"s_min_u32 s18, s{S_MT}, 2")
    A("s_mov_b32 s19, 0"); o.append(RAW(f"{Pl}:")); A("s_add_u32 s19, s19, 1"); A("s_cmp_gt_u32 s19, 300000"); A(f"s_cbranch_scc1 {L}")
    A(f"buffer_load_dword v24, v{V_L0}, s[4:7], s16 offen sc1"); A("s_waitcnt vmcnt(0)")
    A("v_readfirstlane_b32 s17, v24"); A("s_cmp_ge_u32 s17, s18"); A(f"s_cbranch_scc0 {Pl}")
    o.append(RAW(f"{L}:")); A("s_barrier")
    return o

P3ADDR=[]
def setup():
    o=[]; A=lambda s:o.append(I(s))
    A(f"s_and_b32 s16, s{S_W}, 1"); A(f"s_lshl_b32 s17, s{S_J}, 1"); A(f"s_add_u32 s{S_HEAD}, s16, s17")
    A(f"s_lshr_b32 s17, s{S_W}, 1"); A("s_lshl_b32 s17, s17, 2"); A(f"s_lshl_b32 s18, s{S_MT}, 3"); A(f"s_add_u32 s{S_R}, s17, s18")
    A(f"s_lshl_b32 s{S_OA}, s{S_R}, 5"); A(f"s_add_u32 s{S_OA}, s{S_OA}, s{S_HEAD}"); A(f"s_lshl_b32 s{S_OA}, s{S_OA}, 10"); A(f"s_add_u32 s{S_OA}, s{S_OA}, {O_FO}")
    A(f"v_lshlrev_b32 v{V_A}, 4, v1")
    for q in range(4):
        A(f"s_cmp_ge_i32 s{S_R}, {16-4*q}"); A(f"s_cselect_b32 s17, 0, {NEG}")
        for r in range(4): A(f"v_mov_b32 v{V_CG+4*q+r}, s17")
    A("v_and_b32 v17, 15, v1"); A("v_lshrrev_b32 v18, 4, v1"); A("v_lshlrev_b32 v18, 2, v18"); A(f"v_mov_b32 v19, {NEG}")
    for r in range(4):
        A(f"v_add_u32 v20, {r}, v18"); A("v_cmp_gt_u32 vcc, v20, v17"); A("s_nop 1")
        A(f"v_cndmask_b32 v{V_MF+r}, v19, v{V_CG+r}, vcc"); A(f"v_cndmask_b32 v{V_ML+r}, 0, v19, vcc")
    for r in range(4): A(f"v_mov_b32 v{V_ONE+r}, 0x3f803f80")
    st=pw.setup("L3",A_WO,O_FO,32*1024)
    i0=[k for k,op in enumerate(st) if op.text.startswith("v_lshrrev_b32 v23, 3, v1")][0]
    i1=[k for k,op in enumerate(st) if op.text=="s_waitcnt lgkmcnt(0)"][0]
    body_=st[i0:i1]
    k=[i for i,op in enumerate(body_) if op.text.startswith("v_lshrrev_b32 v23, 2, v1")][0]
    P3ADDR[:]=body_[k:]
    return o

def wo_voffsets():
    st=pw.setup("L3",A_WO,O_FO,32*1024)
    i0=[k for k,op in enumerate(st) if op.text.startswith("v_lshrrev_b32 v23, 3, v1")][0]
    k=[i for i,op in enumerate(st) if op.text.startswith("v_lshrrev_b32 v23, 2, v1")][0]
    return st[i0:k]
def wo_srd():
    return [I(f"s_lshl_b32 s16, s{S_N3}, 7"), I(f"s_add_u32 s8, s{P_WO}, s16"), I(f"s_addc_u32 s9, s{P_WO+1}, 0"), I(f"s_sub_u32 s10, {1024*2048}, s16"), I("s_mov_b32 s11, 0x20000"),
            I(f"s_lshl_b32 s16, s{S_M3}, 18"), I(f"s_add_u32 s12, s{P_X}, s16"), I(f"s_addc_u32 s13, s{P_X+1}, 0"), I("s_sub_u32 s14, 0x400000, s16"), I("s_mov_b32 s15, 0x20000")]
def kv_group(kind,q):
    base=K_FO if kind=="K" else VT_FO
    o=[I(f"s_add_u32 s31, s30, {base}"), I(f"s_add_i32 s31, s31, {(4*q-16)*1024}"), I(f"s_cmp_ge_i32 s{S_R}, {16-4*q}"), I(f"s_cselect_b32 s31, s31, {BIG}")]
    ld=[]
    for e in range(4):
        reg=kfr(4*q+e) if kind=="K" else vfr(2*q+e//2,e%2)
        ld.append(VM(f"buffer_load_dwordx4 {reg}, v{V_A}, s[4:7], s31 offen offset:{e*1024} sc1",(kind,q)))
    return [o+[ld[0]]]+[[x] for x in ld[1:]]
def kv_loads():
    o=[I(f"s_lshl_b32 s30, s{S_HEAD}, 7"), I(f"s_add_u32 s30, s30, s{S_R}"), I("s_lshl_b32 s30, s30, 10")]
    for q in range(3):
        for g in kv_group("K",q): o+=g
    return o

def sprinkle():
    g=[]
    g.append([I(f"s_lshl_b32 s{pw.S_WR}, s{S_W}, 13"), I(f"s_mov_b32 s{pw.S_WO}, 0")])
    for t in range(4):
        for i in range(8):
            d=pw.dma(t,i)
            if len(d)==2: g.append([d[0],I("s_nop 0"),d[1]])
            else: g.append(d)
        g.append([I(f"s_add_u32 s{pw.S_WO}, s{pw.S_WO}, {256*2048}"), I(f"s_add_u32 s{pw.S_WR}, s{pw.S_WR}, {pw.STAGE}")])
    g.append([I(f"s_lshl_b32 s27, s{S_W}, 16"), I(f"s_lshl_b32 s17, s{S_N3}, 7"), I("s_add_u32 s27, s27, s17"),
              I("v_lshrrev_b32 v23, 3, v1"), I("v_mul_u32_u24 v23, 1920, v23"), I("v_lshlrev_b32 v24, 4, v1"), I("v_add_u32 v23, v23, v24"),
              I(f"s_lshl_b32 s28, s{S_W}, 12"), I(f"s_add_u32 s28, s28, {TBUF}")])
    for jj in range(4):
        g.append([I(f"s_add_u32 m0, s28, {jj*1024}"), I(f"s_add_u32 s18, s27, {jj*16384}"), VM(f"buffer_load_dwordx4 v23, s[12:15], s18 offen lds",("R",))])
    g.append([I(f"s_mov_b32 s29, {WBAR}"), I("v_lshlrev_b32 v21, 4, v0"), VM(f"buffer_load_dwordx4 v[140:143], v21, s[4:7], s29 offen sc1",("wb",))])
    g.append([I(f"s_lshl_b32 s29, s{S_M3}, 10"), I(f"s_lshl_b32 s17, s{S_W}, 8"), I("s_add_u32 s29, s29, s17"), I(f"s_add_u32 s29, s29, {STATS1}"),
              I("v_and_b32 v22, 15, v1"), I("v_lshlrev_b32 v22, 3, v22"),
              VM(f"buffer_load_dword v144, v22, s[4:7], s29 offen sc1",("mx",)), VM(f"buffer_load_dword v145, v22, s[4:7], s29 offen offset:128 sc1",("mx",))])
    return g

def split_sprinkle():
    g=sprinkle()
    return g[:1+2*9], g[1+2*9:]
def attention(extra=(), rest=None):
    early=kv_group("K",3)+kv_group("V",0)+kv_group("V",1)+kv_group("V",2)+kv_group("V",3)
    g=list(extra)+(rest if rest is not None else sprinkle()); out=[]
    slot=[0]; rem=[51]
    for i in range(4):
        ops=P.qblock(i)
        res=[]; npass1=0
        for n,op in enumerate(ops):
            t=op.text or ""
            if op.kind in("wv",) and op.tag[0]=="Q": continue
            if op.kind=="wv" and op.tag[0]=="K" and op.tag[1]==4: continue
            if op.kind=="wv" and op.tag[0]=="V" and op.tag[1]==4: continue
            if op.kind=="vm" and "buffer_store_dwordx4" in t:
                op.text=f"buffer_store_dwordx4 {q4(76)}, v{V_A}, s[4:7], s{S_OA} offen sc1"; op.tag=("O",)
            if t=="s_add_u32 s25, s25, 32768": op.text=f"s_add_u32 s{S_OA}, s{S_OA}, 32768"
            res.append(op)
            if i==0 and early:
                if t.startswith("v_mfma") and npass1<17:
                    npass1+=1; res+=early.pop(0); continue
            if t.startswith("v_cvt_pk_bf16_f32") and (ops[n-1].text or "").startswith("v_cvt_pk_bf16_f32") and all(f"v{r}," not in t for r in (76,77,78,79)):
                if i==0 and early: res+=early.pop(0)
                elif g and i>0 and (slot[0]%2==0 or len(g)>rem[0]//2): res+=g.pop(0)
                if i>0: slot[0]+=1; rem[0]-=1
        out+=res+stamp(f"q{i}")
    assert not g and not early, (len(g),len(early))
    return out

WB_LDS=TBUF+16384
def wbar_to_lds():
    o=[]; A=lambda s:o.append(I(s))
    o.append(WV(("wb",),"wb"))
    A("v_lshlrev_b32 v21, 4, v0"); A(f"v_add_u32 v21, {WB_LDS}, v21")
    o.append(DS("ds_write_b128 v21, v[140:143]",("wbw",)))
    for r in range(4): A(f"v_mov_b32 v{148+r}, 0")
    o.append(DS("ds_write_b128 v21, v[148:151] offset:4096",("wbw",)))
    o.append(WL(("wbw",),"wbw"))
    return o
```

```python
from common import *
import pw, m2
from pw import (acc,accr,xr,wr_,V_DS,V_XO,S_XO,S_XEND,S_CNT,w_reads,TBUF)
XD=6
def x_load(n,mb): return VM(f"buffer_load_dwordx4 {xr(n,mb)}, v{V_XO+mb}, s[4:7], s{S_XO} offen sc1", ("X",n))
V_WB=20
V_MUX=144
V_MUA=64
WBA=192
def wb_read(n):
    a=WBA+(n%4)*4
    return DS(f"ds_read_b128 a[{a}:{a+3}], v{V_WB} offset:{(n%16)*128}",("W",n))
def step_ops(n):
    mf=[]; gaps={}
    def put(idx,ops): gaps.setdefault(idx,[]).extend(ops)
    for nb in range(4):
        a=wr_(n,nb)
        for mb in ((0,1) if nb%2==0 else (1,0)):
            mf.append(I(f"v_mfma_f32_16x16x32_bf16 {accr(nb,mb)}, a[{a}:{a+3}], {xr(n,mb)}, {accr(nb,mb)}"))
    a=WBA+(n%4)*4
    for mb in range(2):
        mf.append(I(f"v_mfma_f32_16x16x32_bf16 v[{V_MUA+4*mb}:{V_MUA+4*mb+3}], a[{a}:{a+3}], {xr(n,mb)}, v[{V_MUA+4*mb}:{V_MUA+4*mb+3}]"))
    put(9,[wb_read(n+2)])
    put(0,[WV(("X",n),("wx",n%16)), WL(("W",n),("wl",n%16))])
    na=n+2
    if na%16==0: put(1,[I(f"v_xor_b32 v{V_DS+u}, {2*pw.STAGE}, v{V_DS+u}") for u in range(4)]+[I(f"v_xor_b32 v{V_WB}, 2048, v{V_WB}")])
    for nb in range(4):
        r=w_reads(na,nb); put(1+2*nb,[r[0]]); put(2+2*nb,[r[1]])
    put(2,[x_load(n+XD,0)]); put(5,[x_load(n+XD,1)])
    put(6,[I(f"s_add_u32 s{S_XO}, s{S_XO}, 1024")]); put(7,[I(f"s_cmp_ge_u32 s{S_XO}, s{S_XEND}")]); put(8,[I(f"s_cselect_b32 s{S_XO}, {BIG}, s{S_XO}")])
    return weave(mf,gaps)
def body(it):
    o=[]
    for n in range(16*it,16*it+16): o+=step_ops(n)
    return o
def resid_unpack(): return pw.resid_p3_unpack()
def x_fill():
    o=[I(f"s_mov_b32 s{S_XO}, 0"), I(f"s_mov_b32 s{S_XEND}, {32*1024}")]
    for n in range(XD):
        o+= [x_load(n,0), x_load(n,1), I(f"s_add_u32 s{S_XO}, s{S_XO}, 1024")]
    return o
def first_reads():
    o=[]
    for n in range(2):
        for nb in range(4): o+=w_reads(n,nb)
        o.append(wb_read(n))
    return o
def wb_setup():
    o=[]; A=lambda s:o.append(I(s))
    A("v_and_b32 v23, 3, v1"); A("v_lshrrev_b32 v24, 4, v1"); A("v_lshlrev_b32 v24, 1, v24"); A("v_add_u32 v24, v24, v23"); A("v_lshlrev_b32 v24, 4, v24")
    A(f"v_add_u32 v24, {m2.WB_LDS}, v24"); A(f"v_mov_b32 v25, {m2.WB_LDS+4096}"); A("v_cmp_gt_u32 vcc, 2, v23"); A("s_nop 1"); A(f"v_cndmask_b32 v{V_WB}, v25, v24, vcc")
    for r in range(8): A(f"v_mov_b32 v{V_MUA+r}, 0")
    return o
def epilogue_stores():
    o=[]; A=lambda s:o.append(I(s))
    A("s_nop 7")
    for mb in range(2):
        A(f"v_add_f32 v{V_MUA+4*mb}, v{V_MUA+4*mb}, v{V_MUA+4*mb+1}"); A(f"v_add_f32 v{V_MUA+4*mb}, v{V_MUA+4*mb}, v{V_MUX+mb}")
    A(f"s_lshl_b32 s16, s{S_M3}, 2"); A(f"s_add_u32 s16, s16, s{S_W}"); A("s_lshl_b32 s16, s16, 16")
    A(f"s_lshl_b32 s17, s{S_N3}, 11"); A("s_add_u32 s16, s16, s17"); A(f"s_add_u32 s16, s16, {H_FO}")
    A("v_lshlrev_b32 v23, 4, v1"); A("v_add_u32 v23, s16, v23"); A("v_add_u32 v24, 32768, v23")
    for mb in range(2):
        m=V_MUA+4*mb
        for j in range(2):
            r=96+(mb*2+j)*4
            for h in range(2):
                a=acc(2*j+h,mb)
                for q in range(2): A(f"v_pk_add_f32 v[{a+2*q}:{a+2*q+1}], v[{a+2*q}:{a+2*q+1}], v[{m}:{m+1}] op_sel:[0,0] op_sel_hi:[1,0] neg_lo:[0,1] neg_hi:[0,1]")
                A(f"v_cvt_pk_bf16_f32 v{r+2*h}, v{a}, v{a+1}"); A(f"v_cvt_pk_bf16_f32 v{r+2*h+1}, v{a+2}, v{a+3}")
            o.append(VM(f"buffer_store_dwordx4 v[{r}:{r+3}], v{23+mb}, s[4:7], 0 offen offset:{j*1024} sc1",("H",)))
    A(f"s_lshl_b32 s16, s{S_M3}, 9"); A(f"s_lshl_b32 s17, s{S_W}, 7"); A("s_add_u32 s16, s16, s17"); A(f"s_add_u32 s16, s16, {MU2}")
    A(f"s_cmp_eq_u32 s{S_N3}, 0"); A(f"s_cselect_b32 s16, s16, {BIG}")
    A("v_lshrrev_b32 v26, 4, v1"); A("v_cmp_eq_u32 vcc, 1, v26"); A("v_lshlrev_b32 v25, 2, v1"); A("s_nop 0")
    A(f"v_cndmask_b32 v27, v{V_MUA}, v{V_MUA+4}, vcc"); A("v_cmp_gt_u32 vcc, 32, v1"); A(f"v_mov_b32 v28, {BIG}"); A("s_nop 0"); A("v_cndmask_b32 v25, v28, v25, vcc")
    o.append(VM("buffer_store_dword v27, v25, s[4:7], s16 offen sc1",("H",)))
    for mb in range(2):
        S=112+4*mb; Q=S+2
        a=acc(0,mb)
        A(f"v_pk_add_f32 v[{S}:{S+1}], v[{a}:{a+1}], v[{a+2}:{a+3}]"); A(f"v_pk_mul_f32 v[{Q}:{Q+1}], v[{a}:{a+1}], v[{a}:{a+1}]")
        A(f"v_pk_fma_f32 v[{Q}:{Q+1}], v[{a+2}:{a+3}], v[{a+2}:{a+3}], v[{Q}:{Q+1}]")
        for nb in range(1,4):
            a=acc(nb,mb)
            for q in range(2):
                A(f"v_pk_add_f32 v[{S}:{S+1}], v[{S}:{S+1}], v[{a+2*q}:{a+2*q+1}]")
                A(f"v_pk_fma_f32 v[{Q}:{Q+1}], v[{a+2*q}:{a+2*q+1}], v[{a+2*q}:{a+2*q+1}], v[{Q}:{Q+1}]")
        A(f"v_add_f32 v{120+2*mb}, v{S}, v{S+1}"); A(f"v_add_f32 v{121+2*mb}, v{Q}, v{Q+1}")
    swap_sum(A,[120,121,122,123],124,"v_permlane16_swap_b32"); swap_sum(A,[120,121,122,123],124,"v_permlane32_swap_b32")
    A(f"s_lshl_b32 s16, s{S_M3}, 2"); A(f"s_add_u32 s16, s16, s{S_W}"); A("s_lshl_b32 s16, s16, 12")
    A(f"s_lshl_b32 s17, s{S_N3}, 7"); A("s_add_u32 s16, s16, s17"); A(f"s_add_u32 s16, s16, {STATS2}")
    A("v_and_b32 v23, 15, v1"); A("v_lshlrev_b32 v23, 3, v23"); A("v_lshrrev_b32 v24, 4, v1")
    A("v_lshlrev_b32 v25, 11, v24"); A("v_add3_u32 v23, v23, v25, s16")
    A("v_cmp_eq_u32 vcc, 1, v24"); A("s_nop 1")
    A("v_cndmask_b32 v120, v120, v122, vcc"); A("v_cndmask_b32 v121, v121, v123, vcc")
    A("v_cmp_gt_u32 vcc, 2, v24"); A(f"v_mov_b32 v25, {BIG}"); A("s_nop 0")
    A("v_cndmask_b32 v23, v25, v23, vcc")
    o.append(VM("buffer_store_dwordx2 v[120:121], v23, s[4:7], 0 offen sc1",("H",)))
    return o

def x_load_abs(n,mb):
    return VM(f"buffer_load_dwordx4 {xr(n,mb)}, v{V_XO+mb}, s[4:7], s{S_XO} offen offset:{(n%4)*1024} sc1", ("X",n))
def x_group(n):
    o=[]
    if n%4==0: o.append(I(f"s_mov_b32 s{S_XO}, {n*1024}"))
    return o
XD0=6; XDMAX=13
def x_fill2():
    o=[]
    for n in range(XD0): o+=x_group(n)+[x_load_abs(n,0),x_load_abs(n,1)]
    return o
def full(extra):
    o=[]; extra=list(extra); nxt=XD0
    for n in range(32):
        mf=[]; gaps={}
        def put(idx,ops): gaps.setdefault(idx,[]).extend(ops)
        for nb in range(4):
            a=wr_(n,nb)
            for mb in ((0,1) if nb%2==0 else (1,0)):
                mf.append(I(f"v_mfma_f32_16x16x32_bf16 {accr(nb,mb)}, a[{a}:{a+3}], {xr(n,mb)}, {accr(nb,mb)}"))
        a=WBA+(n%4)*4
        for mb in range(2):
            mf.append(I(f"v_mfma_f32_16x16x32_bf16 v[{V_MUA+4*mb}:{V_MUA+4*mb+3}], a[{a}:{a+3}], {xr(n,mb)}, v[{V_MUA+4*mb}:{V_MUA+4*mb+3}]"))
        put(0,[WV(("X",n),("wx3",n)), WL(("W",n),("wl3",n))])
        if n==16: put(0,[I("s_barrier")])
        na=n+2
        rd=[]
        if na<32:
            if na%16==0: put(1,[I(f"v_xor_b32 v{V_DS+u}, {2*pw.STAGE}, v{V_DS+u}") for u in range(4)]+[I(f"v_xor_b32 v{V_WB}, 2048, v{V_WB}")])
            for nb in range(4): rd+=w_reads(na,nb)
            rd.append(wb_read(na))
        for k,r in enumerate(rd): put(1+k,[r])
        mem=[]
        want=min(32, n+1+min(XDMAX, XD0+2*(n+1)//1))
        cnt=0
        while nxt<32 and nxt<=n+XDMAX and cnt<(2 if nxt<n+XDMAX else 1) and nxt<want+XDMAX:
            mem.append(x_group(nxt)+[x_load_abs(nxt,0)]); mem.append([x_load_abs(nxt,1)]); nxt+=1; cnt+=1
        if n>=17 and extra: mem.append(extra.pop(0))
        pos=[2,5,8,10,4]
        for k,g in enumerate(mem): put(pos[k],g)
        o+=weave(mf,gaps)
    assert not extra and nxt==32
    return o
```

```python
import sys
from common import *
import common
import m1,m2,m2a,m3,m4,m5,pw,p4,p1
NAME="sequential_preLN__sliding_block__glu_gated_bilinear__prompt_kernel"
HDR=open("sequential_preLN__sliding_block__glu_gated_bilinear__prompt.s.ref").read().split("; Override launch geometry")[0]
def T(ops): return text(ops)
R4=[7]
assert sum(R4)==8
def build(stamps=False):
    common.STAMPS[0]=stamps; common.NSTAMP[0]=0; common.NAMES.clear(); common._lbl[0]=0
    out=[khead(NAME)]
    pw.S_MT=S_M3; pw.S_NT=S_N3
    m1.WOSET[:]=m2.wo_voffsets()
    out.append(m1.gen())
    sh,rest=m2.split_sprinkle()
    e1=m1.epilogue(m2.wo_srd(),[]); rest=sh+rest; s2=m2.setup(); kw=m2.kv_publish_and_wait(); kl=m2.kv_loads()
    od=cnt_addr([I(f"s_lshl_b32 s16, s{S_MT}, 3")],C_OD)
    odw=cnt_addr([I(f"s_lshl_b32 s16, s{S_M3}, 3"), I(f"s_and_b32 s17, s{S_N3}, 7"), I("s_add_u32 s16, s16, s17")],C_OD)
    cg=m2.wbar_to_lds()+m3.wb_setup()
    ru=[WV(("D",3),"wo_landed")]+m3.resid_unpack()
    hO=handoff(("O",),"pubO",od,odw,16,cg+ru,list(m2.P3ADDR)+[I(f"v_mov_b32 v{r}, 0") for r in range(128,256) if r not in (144,145)]+m4.ids()+m4.w_setup())
    xf=m3.x_fill2(); fr=m3.first_reads()
    tch=m4.touch_setup()+m4.touch_w(0,9)
    at=m2a.attention(rest+[tch])
    g4=[]
    for t in range(2):
        for i in range(7):
            d=p4.dma(t,i); d[1].tag=("D4",t)
            pre=[I(f"s_add_u32 s{p4.S_WO}, s{p4.S_WO}, {64*7168}"), I(f"s_add_u32 s{p4.S_WR}, s{p4.S_WR}, {p4.STAGE}")] if (t==1 and i==0) else []
            g4.append(pre+[d[0],I("s_nop 0"),d[1]])
    hd=cnt_addr([I(f"s_lshr_b32 s16, s{S_M3}, 1"), I("s_lshl_b32 s16, s16, 3")],C_HD)
    hw=cnt_addr([I(f"s_lshl_b32 s16, s{m4.S_M8}, 3"), I(f"s_and_b32 s17, s{m4.S_NT}, 7"), I("s_add_u32 s16, s16, s17")],C_HD)
    d2a=[I(f"s_add_u32 s{p4.S_WO}, s{p4.S_WO}, {64*7168}"), I(f"s_add_u32 s{p4.S_WR}, s{p4.S_WR}, {p4.STAGE}")]
    for i in range(4):
        d=p4.dma(2,i); d2a+=[d[0],I("s_nop 0"),d[1]]
    seg=e1+stamp("p1epi")+s2+kw+stamp("kvsync")+at+stamp("attn")+hO+stamp("osync")+xf+fr+stamp("p3go")+m3.full(g4)
    seg+=stamp("p3end")+m3.epilogue_stores()+stamp("hst")
    seg+=handoff(("H",),"pubH",hd,hw,32,m4.rest_setup(),m5.ids()+m5.w_setup())
    st4=m4.start(); st4[0]=WV(("D4",1),"pd0")
    seg+=stamp("hsync")+m4.x_fill()+d2a+st4+[I(f"s_mov_b32 s{p4.S_CNT}, {R4[0]}"), I("s_mov_b32 s33, 0")]
    bodies=[m4.body(i) for i in range(3)]
    simulate(seg+bodies[0]+bodies[1]+bodies[2]); b4=resolve(bodies)
    segP4=[]
    out.append(T(seg)); out.append(T(stamp("p4loop"))); out.append(".p2align 6\nL4_loop:"); out.append(T(b4))
    out.append(f"    s_sub_u32 s{p4.S_CNT}, s{p4.S_CNT}, 1\n    s_cmp_lg_u32 s{p4.S_CNT}, 0\n    s_cbranch_scc1 L4_loop")
    mids=[m4.touch_w(9,7), m4.touch_wd(0,2), m4.touch_wd(1,2), m4.mid_loads()]
    for k in range(len(mids)): out.append(f"    s_cmp_eq_u32 s33, {k}\n    s_cbranch_scc1 L4_mid{k}")
    out.append("    s_branch L4_end")
    for k,m in enumerate(mids):
        out.append(f"L4_mid{k}:"); out.append(T(m)); out.append(f"    s_mov_b32 s33, {k+1}\n    s_mov_b32 s{p4.S_CNT}, {R4[k+1]}\n    s_branch L4_loop")
    out.append("L4_end:")
    bsim=[m4.body(i) for i in range(5,7)]
    lc=m4.last_common(); e0=m4.tail(0); e1_=m4.tail(1)
    b0=[m4.body(i) for i in range(4,7)]
    simulate(segP4+b0[0]+b0[1]+b0[2]+lc+e0)
    n_lc={op.site:op.n for op in lc if op.kind in("wv","wl")}
    b1=[m4.body(i) for i in range(4,7)]; lc1=m4.last_common()
    simulate(segP4+b1[0]+b1[1]+b1[2]+lc1+e1_)
    for a_,b_ in zip(lc,lc1):
        if a_.kind in("wv","wl"): assert a_.n==b_.n
    out.append(T(stamp("p4last")+lc))
    out.append(f"    s_and_b32 s17, s{m4.S_NT}, 1\n    s_cmp_eq_u32 s17, 1\n    s_cbranch_scc1 L4_epi1")
    out.append(T(e0)); out.append("    s_branch L4_fin\nL4_epi1:"); out.append(T(e1_)); out.append("L4_fin:")
    out.append(T(stamp("p4end")))
    r,u=m5.resid()
    ad=cnt_addr([I(f"s_lshr_b32 s16, s{m4.S_NT}, 4"), I(f"s_lshl_b32 s17, s{m4.S_M8}, 1"), I("s_add_u32 s16, s16, s17"), I("s_lshl_b32 s16, s16, 3")],C_AD)
    aw=cnt_addr([I(f"s_lshr_b32 s16, s{m5.S_MT5}, 1"), I("s_lshl_b32 s16, s16, 1"), I(f"s_add_u32 s16, s16, s{m5.S_KH}"), I("s_lshl_b32 s16, s16, 3"), I(f"s_add_u32 s16, s16, s{m5.S_NT5}")],C_AD)
    seg=stamp("p4epi")
    seg+=handoff(("ACT",),"pubA",ad,aw,16,m5.rest_setup()+[I(f"s_lshl_b32 s{m5.S_WR}, s{S_W}, 13"), I(f"s_mov_b32 s{m5.S_WO}, 0")],r+m5.w_fill_all()+u)
    seg+=stamp("async")+m5.x_fill()+m5.start()+[I(f"s_mov_b32 s{m5.S_CNT}, 6")]+stamp("p5loop")
    acts=list(e0)
    bodies=[m5.body(i) for i in range(3)]
    simulate(acts+seg+bodies[0]+bodies[1]+bodies[2]); b5=resolve(bodies)
    out.append(T(seg)); out.append(".p2align 6\nL5_loop:"); out.append(T(b5))
    out.append(f"    s_sub_u32 s{m5.S_CNT}, s{m5.S_CNT}, 1\n    s_cmp_lg_u32 s{m5.S_CNT}, 0\n    s_cbranch_scc1 L5_loop")
    bb=[m5.body(i) for i in range(3,6)]; li=m5.last_iteration()
    seg=li+stamp("p5end")+m5.exchange()+stamp("xchg")+m5.final()
    simulate(bb[0]+bb[1]+bb[2]+seg); out.append(T(seg))
    if stamps:
        out.append("    s_waitcnt vmcnt(0)"); out.append(T(stamp("end"))); out.append(T(stamp_flush()))
    out.append("L_done:\n    s_endpgm\nL_codeend:")
    s=HDR+"; @launch grid=(256,1,1) block=(256,1,1) lds=163840\n"+'.amdgcn_target "amdgcn-amd-amdhsa--gfx950"\n.text\n'+"\n".join(out)+'\n.section .rodata,"a"\n'+kd(NAME)+"\n"
    return s, list(common.NAMES)
if __name__=="__main__":
    sel=sys.argv[1].split(",") if len(sys.argv)>1 else "start,p1loop,p1end,kvsync,attn,osync,p3end,hsync,p4end,async,p5end,end".split(",")
    common.ONLY[0]=set(sel); common.CYC[0]=len(sel)<=6
    m1.CODEPF[0]=1
    s,names=build(True); open("mega_st.s","w").write(s); open("mega_st.names","w").write("\n".join(names))
    s,_=build(False); open("mega.s","w").write(s)
```

```python
from common import *
import p1 as P
from p1 import (S_XO,S_WO,S_WR,S_RD,S_CNT,S_LIM,ACC0,acc,STAGE,NST,V_XD,V_WD,V_XL,V_WL,V_XR,V_WR,V_CS,V_SQ,V_SV,dma_x,dma_w,x_read,w_reads)
V_Q=204; V_K=220; V_V=236
CS_SCR=153600

LATE=[]
POST=[]
LASTMID=[]
WOSET=[]
DELAY=[0]
CODEPF=[0]
KNAME="sequential_preLN__sliding_block__glu_gated_bilinear__prompt_kernel"
def entry():
    o=[]; A=lambda s:o.append(I(s))
    A("s_cmp_ge_u32 s2, 256"); A("s_cbranch_scc1 L_done")
    A(f"s_load_dwordx16 s[84:99], s[0:1], 0")
    A(f"s_load_dwordx2 s[{P_DBG}:{P_DBG+1}], s[0:1], {D_DBG}")
    A(f"s_load_dwordx2 s[4:5], s[0:1], {D_WS}")
    A("v_and_b32 v1, 63, v0"); A("v_lshrrev_b32 v23, 6, v0")
    if CODEPF[0]:
        A("s_getpc_b64 s[24:25]"); o.append(RAW("L_pc:")); A(f"s_sub_u32 s24, s24, L_pc-{KNAME}"); A("s_subb_u32 s25, s25, 0")
        A("s_lshr_b32 s16, s2, 3"); A("s_lshl_b32 s16, s16, 11")
        A("v_and_b32 v2, 15, v0"); A("v_lshlrev_b32 v2, 7, v2"); A("v_add_u32 v2, s16, v2"); A(f"s_mov_b32 s17, L_codeend-{KNAME}")
        A("v_cmp_gt_u32 vcc, s17, v2"); A("v_cmp_gt_u32 s[26:27], 16, v0"); A("s_nop 1"); A("s_and_b64 vcc, vcc, s[26:27]")
        A("s_and_saveexec_b64 s[26:27], vcc"); A("s_cbranch_execz L_nopf")
        A("global_load_dword v29, v2, s[24:25]")
        o.append(RAW("L_nopf:")); A("s_mov_b64 exec, s[26:27]")
    A("s_and_b32 s3, s2, 7"); A("s_lshr_b32 s16, s2, 3")
    A("s_and_b32 s17, s3, 1"); A("s_lshl_b32 s17, s17, 2"); A("s_and_b32 s18, s16, 3"); A("s_add_u32 s17, s17, s18"); A("s_lshr_b32 s18, s2, 7"); A("s_lshl_b32 s18, s18, 3"); A(f"s_add_u32 s{S_MT}, s17, s18")
    A(f"v_readfirstlane_b32 s{S_W}, v23")
    A("s_lshr_b32 s17, s3, 1"); A("s_lshl_b32 s17, s17, 2"); A("s_bfe_u32 s18, s16, 0x20002"); A(f"s_add_u32 s{S_J}, s17, s18")
    POST[:]=[I("s_and_b32 s3, s2, 7"), I("s_lshr_b32 s16, s2, 3"), I("s_lshr_b32 s17, s16, 4"), I("s_lshl_b32 s18, s3, 1"), I(f"s_add_u32 s{S_M3}, s17, s18"), I(f"s_and_b32 s{S_N3}, s16, 15")]
    if DELAY[0]:
        A("s_cmp_ge_u32 s2, 128"); A("s_cbranch_scc0 L_nodelay"); A("s_memrealtime s[24:25]"); A("s_waitcnt lgkmcnt(0)")
        o.append(RAW("L_dl:")); A("s_memrealtime s[26:27]"); A("s_waitcnt lgkmcnt(0)"); A("s_sub_u32 s26, s26, s24"); A(f"s_cmp_lt_u32 s26, {DELAY[0]}"); A("s_cbranch_scc1 L_dl")
        o.append(RAW("L_nodelay:"))
    POST.extend([I(f"v_mov_b32 v{V_L0}, {BIG}"), I("v_cmp_eq_u32 vcc, 0, v1"), I("s_nop 1"), I(f"v_cndmask_b32 v{V_L0}, v{V_L0}, 0, vcc")])
    st=P.setup()
    i0=[k for k,op in enumerate(st) if op.text.startswith("v_lshrrev_b32 v23, 3, v1")][0]
    i1=[k for k,op in enumerate(st) if op.text=="s_waitcnt lgkmcnt(0)"][0]
    POST.extend(touch_voff())
    body_=st[i0:i1]
    k=[i for i,op in enumerate(body_) if op.text.startswith(f"s_lshr_b32 s16, s{S_W}, 1")][0]
    o+=body_[:k]
    LATE[:]=body_[k:]
    o+=stamp("prek")
    A("s_waitcnt lgkmcnt(0)")
    o+=stamp("kern")
    A(f"s_mov_b32 s6, {BIG}"); A("s_mov_b32 s7, 0x20000")
    A(f"s_mov_b32 s40, s{P_DBG}"); A(f"s_mov_b32 s41, s{P_DBG+1}"); A("s_mov_b32 s42, 256"); A("s_mov_b32 s43, 0x20000")
    A(f"s_lshl_b32 s16, s{S_MT}, 18"); A(f"s_add_u32 s12, s{P_X}, s16"); A(f"s_addc_u32 s13, s{P_X+1}, 0"); A("s_sub_u32 s14, 0x400000, s16"); A("s_mov_b32 s15, 0x20000")
    A(f"s_lshl_b32 s16, s{S_J}, 7"); A(f"s_add_u32 s8, s{P_WQKV}, s16"); A(f"s_addc_u32 s9, s{P_WQKV+1}, 0"); A(f"s_sub_u32 s10, {1024*6144}, s16"); A("s_mov_b32 s11, 0x20000")
    o+=touch_setup()+touch()
    return o

def zero_sync():
    o=[]; A=lambda s:o.append(I(s))
    A(f"s_lshl_b32 s16, s{S_MT}, 4"); A(f"s_add_u32 s16, s16, s{S_J}"); A("s_lshl_b32 s16, s16, 8"); A(f"s_add_u32 s16, s16, {S_KV}")
    A("s_lshl_b32 s17, s2, 8"); A(f"s_add_u32 s18, s17, {S_CNT0}"); A(f"s_add_u32 s17, s17, {S_XF}")
    A(f"s_add_u32 s19, s18, {256*256}"); A("s_cmp_lt_u32 s2, 64"); A(f"s_cselect_b32 s19, s19, {BIG}")
    A(f"v_mov_b32 v24, {BIG}")
    for lane,sr in ((0,16),(1,17),(2,18),(3,19)):
        A(f"v_mov_b32 v25, s{sr}"); A(f"v_cmp_eq_u32 vcc, {lane}, v0"); A("s_nop 1"); A("v_cndmask_b32 v24, v24, v25, vcc")
    A("v_mov_b32 v20, v24")
    return o
def zero_store():
    return [I("v_mov_b32 v25, 0"), I("buffer_store_dword v25, v20, s[4:7], 0 offen sc1")]

R0=128
V_CSA=168
V_ONE=192
S_WM=23
def early_loads():
    o=[]; A=lambda s:o.append(I(s))
    A(f"s_lshl_b32 s16, s{S_J}, 14"); A(f"s_lshl_b32 s17, s{S_W}, 12"); A("s_add_u32 s16, s16, s17")
    A("v_lshlrev_b32 v23, 4, v1")
    for q in range(2):
        for h in range(2):
            r=R0+8*q+4*h
            A(f"buffer_load_dwordx4 v[{r}:{r+3}], v23, s[12:15], s16 offen offset:{q*2048+h*1024}")
    A(f"s_mov_b32 s36, s{P_WO}"); A(f"s_mov_b32 s37, s{P_WO+1}"); A(f"s_mov_b32 s38, {1024*2048}"); A("s_mov_b32 s39, 0x20000")
    A("s_lshl_b32 s16, s2, 2"); A(f"s_add_u32 s16, s16, s{S_W}"); A("s_lshl_b32 s16, s16, 11")
    for h in range(2):
        r=R0+24+4*h
        A(f"buffer_load_dwordx4 v[{r}:{r+3}], v23, s[36:39], s16 offen offset:{h*1024}")
    return o
def early_proc():
    o=[]; A=lambda s:o.append(I(s))
    T=R0+16
    A("v_mov_b32 v24, 0x3f803f80")
    for q in range(2):
        for d in range(8):
            r=R0+8*q+d
            if d==0:
                A(f"v_dot2_f32_bf16 v{T+2*q}, v{r}, v24, 0"); A(f"v_dot2_f32_bf16 v{T+2*q+1}, v{r}, v{r}, 0")
            else:
                A(f"v_dot2_f32_bf16 v{T+2*q}, v{r}, v24, v{T+2*q}"); A(f"v_dot2_f32_bf16 v{T+2*q+1}, v{r}, v{r}, v{T+2*q+1}")
    for d in range(8):
        r=R0+24+d
        A(f"v_dot2_f32_bf16 v{T+4}, v{r}, v24, {0 if d==0 else 'v%d'%(T+4)}")
    regs=list(range(T,T+5))
    A("s_nop 2")
    for sh in (8,4,2,1):
        A("s_nop 1")
        for r in regs: A(f"v_add_f32_dpp v{r}, v{r}, v{r} row_ror:{sh} row_mask:0xf bank_mask:0xf")
    swap_sum(A,regs,R0,"v_permlane16_swap_b32"); swap_sum(A,regs,R0,"v_permlane32_swap_b32")
    A("s_mov_b32 s16, 0x3a800000"); A(f"v_mul_f32 v25, s16, v{T+4}")
    A("v_cvt_pk_bf16_f32 v26, v25, v25"); A("v_lshlrev_b32 v27, 16, v26"); A("v_sub_f32 v27, v25, v27"); A("v_cvt_pk_bf16_f32 v27, v27, v27")
    A("v_cmp_eq_u32 vcc, 1, v1"); A("s_nop 1"); A("v_cndmask_b32 v26, v26, v27, vcc")
    A("s_lshl_b32 s16, s2, 2"); A(f"s_add_u32 s16, s16, s{S_W}")
    A("s_lshr_b32 s17, s16, 5"); A("s_lshl_b32 s17, s17, 7")
    A("s_bfe_u32 s18, s16, 0x20002"); A("s_lshl_b32 s18, s18, 5"); A("s_add_u32 s17, s17, s18")
    A("s_bfe_u32 s18, s16, 0x10004"); A("s_lshl_b32 s18, s18, 3"); A("s_add_u32 s17, s17, s18")
    A("s_and_b32 s18, s16, 3"); A("s_lshl_b32 s18, s18, 1"); A("s_add_u32 s17, s17, s18"); A(f"s_add_u32 s17, s17, {WBAR}")
    A("v_lshlrev_b32 v23, 4, v1"); A(f"v_mov_b32 v25, {BIG}"); A("v_cmp_gt_u32 vcc, 2, v1"); A("s_nop 1"); A("v_cndmask_b32 v23, v25, v23, vcc")
    A("buffer_store_short v26, v23, s[4:7], s17 offen sc1")
    A("v_cmp_eq_u32 vcc, 1, v1"); A("s_nop 1")
    A(f"v_cndmask_b32 v26, v{T}, v{T+2}, vcc"); A(f"v_cndmask_b32 v27, v{T+1}, v{T+3}, vcc")
    A("s_mov_b32 s16, 0x3a800000"); A("s_mov_b32 s17, 0x3727c5ac")
    A("v_mul_f32 v26, s16, v26"); A("v_mul_f32 v27, s16, v27"); A("v_fma_f32 v27, -v26, v26, v27"); A("v_add_f32 v27, s17, v27")
    A("v_rsq_f32 v27, v27")
    A(f"s_lshl_b32 s16, s{S_MT}, 10"); A(f"s_lshl_b32 s17, s{S_J}, 6"); A("s_add_u32 s16, s16, s17"); A(f"s_lshl_b32 s17, s{S_W}, 4"); A("s_add_u32 s16, s16, s17"); A(f"s_add_u32 s16, s16, {STATS1}")
    A("v_lshlrev_b32 v23, 3, v1"); A(f"v_mov_b32 v24, {BIG}"); A("v_cmp_gt_u32 vcc, 2, v1"); A("s_nop 1"); A("v_cndmask_b32 v23, v24, v23, vcc")
    A(f"buffer_store_dwordx2 v[26:27], v23, s[4:7], s16 offen sc1")
    return o

def prefetch(which, part=0, parts=1):
    o=[]; A=lambda s:o.append(I(s))
    ptr,nbytes={"wo":(P_WO,1024*2048),"wg":(P_WG,1024*7168),"wu":(P_WU,1024*7168),"wd":(P_WD,3584*2048)}[which]
    lines=nbytes//128//256
    per=lines//4//parts
    assert per*4*parts==lines
    A(f"s_mov_b32 s36, s{ptr}"); A(f"s_mov_b32 s37, s{ptr+1}"); A(f"s_mov_b32 s38, {nbytes}"); A("s_mov_b32 s39, 0x20000")
    A(f"s_mul_i32 s16, s2, {lines*128}"); A(f"s_mul_i32 s17, s{S_W}, {per*parts*128}"); A("s_add_u32 s16, s16, s17"); A(f"s_add_u32 s16, s16, {part*per*128}")
    A("v_lshlrev_b32 v28, 7, v1"); A(f"v_mov_b32 v29, {BIG}"); A(f"v_cmp_gt_u32 vcc, {per}, v1"); A("s_nop 1"); A("v_cndmask_b32 v28, v29, v28, vcc")
    A("buffer_load_dword v29, v28, s[36:39], s16 offen")
    return o

def stats_loads():
    st=P.load_stats()
    k=[i for i,op in enumerate(st) if op.text.startswith("v_lshrrev_b32 v23, 6, v0")][0]
    st=st[:k]
    for op in st:
        if op.kind=="vm": op.text+=" sc1"
    return st

def early_query():
    return [I(f"buffer_load_dword v31, v{V_L0}, {DBG}, 0 offen sc1")]
def mid_section():
    o=[]; A=lambda s:o.append(I(s))
    L=lbl("Lm"); Pl=lbl("Lmp")
    A("v_readfirstlane_b32 s17, v31"); A("s_cmp_ge_u32 s17, 256"); A(f"s_cbranch_scc1 {L}")
    A("s_mov_b32 s19, 0"); o.append(RAW(f"{Pl}:")); A("s_add_u32 s19, s19, 1"); A("s_cmp_gt_u32 s19, 300000"); A(f"s_cbranch_scc1 {L}")
    A(f"buffer_load_dword v31, v{V_L0}, {DBG}, 0 offen sc1"); A("s_waitcnt vmcnt(0)")
    A("v_readfirstlane_b32 s17, v31"); A("s_cmp_ge_u32 s17, 256"); A(f"s_cbranch_scc0 {Pl}")
    o.append(RAW(f"{L}:"))
    for op in stats_loads():
        o.append(I(op.text) if op.kind=="vm" else op)
    return o

V_T=21; S_TO=77
V_T2=22
def touch_setup():
    o=[]; A=lambda s:o.append(I(s))
    A(f"s_mov_b32 s80, s{P_X}"); A(f"s_mov_b32 s81, s{P_X+1}"); A("s_mov_b32 s82, 0x400000"); A("s_mov_b32 s83, 0x20000")
    A(f"s_mov_b32 s{S_TO}, 0"); A("s_mov_b32 s76, 0")
    return o
def touch_voff():
    o=[]; A=lambda s:o.append(I(s))
    A("s_lshl_b32 s16, s2, 3"); A(f"s_lshl_b32 s17, s{S_W}, 2"); A("s_add_u32 s16, s16, s17"); A("s_lshl_b32 s16, s16, 11")
    A("v_lshrrev_b32 v24, 3, v1"); A("v_lshlrev_b32 v24, 11, v24"); A("v_and_b32 v25, 7, v1"); A("v_lshlrev_b32 v25, 7, v25"); A("v_add3_u32 v24, v24, v25, s16")
    A(f"s_cmp_ge_u32 s{S_W}, 2"); A("s_cselect_b32 s18, 0, 32")
    A(f"v_mov_b32 v25, {BIG}"); A("v_cmp_gt_u32 vcc, s18, v1"); A("s_nop 1"); A(f"v_cndmask_b32 v{V_T}, v25, v24, vcc")
    A("s_lshr_b32 s16, s2, 7"); A("s_lshl_b32 s16, s16, 2"); A("s_bfe_u32 s17, s2, 0x20003"); A("s_add_u32 s16, s16, s17"); A("s_mul_i32 s16, s16, 192")
    A(f"s_mul_i32 s17, s{S_W}, 48"); A("s_add_u32 s16, s16, s17"); A("v_add_u32 v24, s16, v1"); A("v_lshlrev_b32 v24, 11, v24")
    A("v_cmp_gt_u32 vcc, 48, v1"); A("s_nop 1"); A(f"v_cndmask_b32 v{V_T2}, v25, v24, vcc")
    return o
def touch():
    return [I(f"buffer_load_dword v29, v{V_T2}, s[8:11], s76 offen"), I(f"buffer_load_dword v29, v{V_T}, s[80:83], s{S_TO} offen"),
            I(f"s_add_u32 s{S_TO}, s{S_TO}, 1024"), I(f"s_add_u32 s76, s76, {1536*2048}")]
V_T3=22; S_T3=79
def slab_voff():
    o=[]; A=lambda s:o.append(I(s))
    A("s_lshr_b32 s16, s2, 3"); A("s_mul_i32 s16, s16, 24"); A(f"s_mul_i32 s17, s{S_W}, 6"); A("s_add_u32 s16, s16, s17")
    A(f"v_add_u32 v24, s16, v1"); A("v_lshlrev_b32 v24, 11, v24")
    A(f"s_or_b32 s17, s{S_J}, 3"); A(f"s_sub_u32 s17, s17, s{S_J}"); A("s_lshl_b32 s17, s17, 7"); A("v_add_u32 v24, s17, v24")
    A(f"s_and_b32 s18, s{S_J}, 4"); A("s_cmp_eq_u32 s18, 0"); A("s_cselect_b32 s18, 6, 0")
    A(f"v_mov_b32 v25, {BIG}"); A("v_cmp_gt_u32 vcc, s18, v1"); A("s_nop 1"); A(f"v_cndmask_b32 v{V_T3}, v25, v24, vcc")
    A(f"s_mov_b32 s{S_T3}, 0")
    return o
def slab_touch():
    return [I(f"buffer_load_dword v29, v{V_T3}, s[8:11], s{S_T3} offen"), I(f"s_add_u32 s{S_T3}, s{S_T3}, {768*2048}")]
V_T4=22
def touch4_voff():
    o=[]; A=lambda s:o.append(I(s))
    A("s_lshl_b32 s17, s2, 2"); A(f"s_add_u32 s17, s17, s{S_W}"); A("s_mul_i32 s17, s17, 1536")
    A("v_lshlrev_b32 v24, 7, v1"); A("v_add_u32 v24, s17, v24")
    A(f"v_mov_b32 v25, {BIG}"); A("v_cmp_gt_u32 vcc, 12, v1"); A("s_nop 1"); A(f"v_cndmask_b32 v{V_T4}, v25, v24, vcc")
    return o
def touch4(e):
    return [I(f"s_mov_b32 s80, s{P_WQKV}"), I(f"s_mov_b32 s81, s{P_WQKV+1}"), I(f"s_mov_b32 s82, {1024*6144}"), I(f"s_mov_b32 s{S_TO}, {(8+4*e)*64*6144}"),
            I(f"buffer_load_dword v29, v{V_T4}, s[80:83], s{S_TO} offen")]
def cs_block(n):
    o=[]
    for nb in range(6):
        a=P.wa(n,nb); c=V_CSA+4*nb
        if nb<4: o.append(I(f"v_mfma_f32_16x16x32_bf16 v[{c}:{c+3}], a[{a}:{a+3}], v[{V_ONE}:{V_ONE+3}], v[{c}:{c+3}]"))
        else:    o.append(I(f"v_mfma_f32_16x16x32_bf16 v[{c}:{c+3}], v[{V_ONE}:{V_ONE+3}], a[{a}:{a+3}], v[{c}:{c+3}]"))
    return o
def step_ops(n, wm):
    t=n//2; s_=n%2
    mf=[]
    for nb in range(6):
        a=P.wa(n,nb)
        for mb in (range(4) if nb%2==0 else range(3,-1,-1)):
            if nb<4: mf.append(I(f"v_mfma_f32_16x16x32_bf16 {P.accr(nb,mb)}, a[{a}:{a+3}], {P.xr(n,mb)}, {P.accr(nb,mb)}"))
            else:    mf.append(I(f"v_mfma_f32_16x16x32_bf16 {P.accr(nb,mb)}, {P.xr(n,mb)}, a[{a}:{a+3}], {P.accr(nb,mb)}"))
    if wm==s_: mf+=cs_block(n)
    gaps={}
    def put(g,ops): gaps.setdefault(g,[]).extend(ops if isinstance(ops,list) else [ops])
    put(0,[WL([("X",n,m) for m in range(4)]+[("W",n,0),("W",n,1)],("w0",s_))])
    put(8,[WL([("W",n,2),("W",n,3)],("w1",s_))]); put(16,[WL([("W",n,4),("W",n,5)],("w2",s_))])
    na=n+1
    rds=[x_read(na,m) for m in range(4)]
    for nb in range(6): rds+=w_reads(na,nb)
    if s_==0:
        td=t+2
        dpos=[1,2,3,5,6,7,9,10,11,13,14,15,17,18,19,21]
        for g,r in zip(dpos,rds): put(g,r)
        for i,g in zip(range(1,6),(4,8,12,16,20)):
            d=dma_w(td,i)
            if len(d)==2: put(g-1,d[0]); put(g,d[1])
            else: put(g,d[0])
        put(1,I(f"s_add_u32 s{S_RD}, s{S_RD}, {STAGE}")); put(2,I(f"s_cmp_ge_u32 s{S_RD}, {NST*STAGE}")); put(3,I(f"s_cselect_b32 s{S_RD}, 0, s{S_RD}"))
        put(21,I(f"s_add_u32 s{S_XO}, s{S_XO}, 128")); put(22,I(f"s_add_u32 s{S_WO}, s{S_WO}, {64*6144}"))
        put(23,[I(f"s_add_u32 s3, s{S_WR}, {STAGE}"), I(f"s_cmp_eq_u32 s3, s{S_LIM}")])
        put(24,[I(f"s_cselect_b32 s{S_WR}, s78, s3"), I(f"s_add_u32 s{S_LIM+1}, s{S_WR}, s{S_LIM+2}")])
    else:
        td=t+3
        put(1,[WV(("D",t+1),("wd",)), I("s_barrier"), I(f"s_cmp_eq_u32 s{S_CNT}, s{S_LIM+3}"), I(f"s_cbranch_scc1 L1_pub{wm}"), RAW(f"L1_pubr{wm}:")])
        put(2,[I(f"v_add_u32 v{V_XR}, s{S_RD}, v{V_XL}"), I(f"v_add_u32 v{V_WR}, s{S_RD}, v{V_WL}")])
        put(3,[I(f"v_add_u32 v{V_WR+1}, s{S_RD}, v{V_WL+1}"), I(f"v_add_u32 v{V_XR+1}, s{S_RD}, v{V_XL+1}")])
        dpos=[4,5,6,8,9,10,12,13,14,16,17,18,20,21,22,24]
        for g,r in zip(dpos,rds): put(g,r)
        for (k,i),g in zip([("x",0),("x",1),("x",2),("x",3),("w",0)],(7,11,15,19,23)):
            d=dma_x(td,i) if k=="x" else dma_w(td,i)
            if len(d)==2: put(g-1,d[0]); put(g,d[1])
            else: put(g,d[0])
    return weave(mf,gaps)
def body(it, wm):
    return step_ops(2*it,wm)+step_ops(2*it+1,wm)

def epilogue(pre=(), groups=()):
    o=_epilogue(pre)
    groups=list(groups); out=[]; cnt=0; started=False
    for op in o:
        out.append(op)
        t=op.text or ""
        if t.startswith("v_pk_fma_f32"): started=True
        if started and t.startswith("v_") and groups:
            cnt+=1
            if cnt%9==0: out+=groups.pop(0)
    assert not groups, len(groups)
    return out
def _epilogue(pre):
    o=[]; A=lambda s:o.append(I(s))
    A("s_waitcnt vmcnt(0) lgkmcnt(0)")
    A("s_barrier")
    o+=list(pre)
    A(f"v_mov_b32 v{V_CSA+17}, v{V_CSA+20}")
    A(f"s_mul_i32 s16, s{S_W}, 5120"); A(f"s_add_u32 s16, s16, {CS_SCR-20480}"); A(f"s_xor_b32 s17, s{S_W}, 2"); A("s_mul_i32 s17, s17, 5120"); A(f"s_add_u32 s17, s17, {CS_SCR-20480}")
    A("v_lshlrev_b32 v23, 4, v1"); A("v_add_u32 v24, s17, v23"); A("v_add_u32 v23, s16, v23")
    for q in range(5): o.append(DS(f"ds_write_b128 v23, v[{V_CSA+4*q}:{V_CSA+4*q+3}] offset:{q*1024}",("cw",)))
    o.append(WL(("cw",),"cw")); A("s_barrier")
    for q in range(5): o.append(DS(f"ds_read_b128 v[{2+4*q}:{5+4*q}], v24 offset:{q*1024}",("cr",)))
    o.append(WL(("cr",),"cr"))
    for q in range(18): A(f"v_add_f32 v{V_CSA+q}, v{V_CSA+q}, v{2+q}")
    A(f"s_and_b32 s16, s{S_W}, 1"); A(f"s_lshl_b32 s17, s{S_J}, 1"); A("s_add_u32 s16, s16, s17")
    A(f"s_lshr_b32 s17, s{S_W}, 1"); A("s_lshl_b32 s17, s17, 2"); A(f"s_lshl_b32 s18, s{S_MT}, 3"); A("s_add_u32 s17, s17, s18")
    A("s_lshl_b32 s16, s16, 7"); A("s_add_u32 s16, s16, s17"); A("s_lshl_b32 s16, s16, 10")
    A("v_lshlrev_b32 v23, 4, v1"); A("v_add_u32 v23, s16, v23")
    A(f"s_mov_b32 s17, {K_FO}"); A(f"s_mov_b32 s18, {VT_FO}"); A("s_mov_b32 s19, 0x3e8293ee")
    def qk(sec):
        for mb in range(4):
            mu=V_SQ+2*mb; rs=mu+1
            if sec==0: A(f"v_mul_f32 v25, s19, v{rs}")
            tq=(V_Q if sec==0 else V_K)+4*mb
            for h in range(2):
                nb=2*sec+h; a=acc(nb,mb); c=168+4*nb
                for e in range(2):
                    A(f"v_pk_fma_f32 v[{a+2*e}:{a+2*e+1}], v[{c+2*e}:{c+2*e+1}], v[{mu}:{mu+1}], v[{a+2*e}:{a+2*e+1}] op_sel:[0,0,0] op_sel_hi:[1,0,1] neg_lo:[0,1,0] neg_hi:[0,1,0]")
                if sec==0:
                    for e in range(2): A(f"v_pk_mul_f32 v[{a+2*e}:{a+2*e+1}], v[{a+2*e}:{a+2*e+1}], v[24:25] op_sel:[0,1] op_sel_hi:[1,1]")
                else:
                    for e in range(2): A(f"v_pk_mul_f32 v[{a+2*e}:{a+2*e+1}], v[{a+2*e}:{a+2*e+1}], v[{mu}:{mu+1}] op_sel:[0,1] op_sel_hi:[1,1]")
                A(f"v_cvt_pk_bf16_f32 v{tq+2*h}, v{a}, v{a+1}"); A(f"v_cvt_pk_bf16_f32 v{tq+2*h+1}, v{a+2}, v{a+3}")
            if sec==1: o.append(VM(f"buffer_store_dwordx4 v[{tq}:{tq+3}], v23, s[4:7], s17 offen offset:{mb*1024} sc1",("KV",)))
    qk(1)
    for gam in range(2):
        for db in range(2):
            tq=V_V+4*(2*gam+db)
            for h in range(2):
                mb=2*gam+h; a=acc(4+db,mb); sv=V_SV+8*mb
                for r in range(4):
                    A(f"v_fma_f32 v{a+r}, -v{sv+2*r}, v{184+db}, v{a+r}"); A(f"v_mul_f32 v{a+r}, v{a+r}, v{sv+2*r+1}")
                A(f"v_cvt_pk_bf16_f32 v{tq+2*h}, v{a}, v{a+1}"); A(f"v_cvt_pk_bf16_f32 v{tq+2*h+1}, v{a+2}, v{a+3}")
            o.append(VM(f"buffer_store_dwordx4 v[{tq}:{tq+3}], v23, s[4:7], s18 offen offset:{(gam*2+db)*1024} sc1",("KV",)))
    qk(0)
    return o

def gen():
    out=[]
    out.append(text(stamp("start")))
    e=entry()
    z=zero_sync()
    fill=P.fill()
    init=[I(f"s_lshr_b32 s{S_WM}, s{S_W}, 1"), I(f"s_lshl_b32 s78, s{S_W}, 12")]
    k1=[i for i,op in enumerate(fill) if op.text.startswith(f"s_add_u32 s{S_XO}, s{S_XO}, 128")][0]
    zi=[I(f"v_mov_b32 v{ACC0+i}, 0") for i in range(96)]+[I(f"v_mov_b32 v{V_CSA+i}, 0") for i in range(24)]+[I(f"v_mov_b32 v{V_ONE+i}, 0x3f803f80") for i in range(4)]
    rest=fill[k1:]
    vm=[i for i,op in enumerate(rest) if op.kind=="vm"]
    mix=[]; zq=list(LATE)+zi+list(WOSET)+touch4_voff()+z
    per=(len(zq)+len(vm)-1)//len(vm)
    for i,op in enumerate(rest):
        mix.append(op)
        if op.kind=="vm":
            mix+=zq[:per]; zq=zq[per:]
    mix+=zq
    out.append(text(e))
    out.append(text(touch_setup()+touch()+early_loads()))
    out.append(text(fill[:k1])); out.append(text(POST+slab_voff())); out.append(text(slab_touch()+slab_touch()+touch())); out.append(text(stamp("d0iss"))); out.append(text(mix)); out.append(text(stamp("fiss")))
    ts=touch4_voff()+slab_touch()+touch()
    out.append(text(init)); out.append(text(stamp("init")))
    pro=[WV(("D",0),"pd0")]+stamp("d0land")+[I("s_barrier")]+[x_read(0,m) for m in range(4)]
    for nb in range(6): pro+=w_reads(0,nb)
    pro+=[I(f"s_mov_b32 s{S_CNT}, {RUNS[0]}"), I(f"s_mov_b32 s{S_LIM+3}, 99"), I("s_mov_b32 s33, 0")]
    bs=[]
    for wm in range(2):
        bodies=[body(i,wm) for i in range(3)]
        simulate(fill+pro+bodies[0]+bodies[1]+bodies[2])
        bs.append(resolve(bodies))
    out.append(text(pro)); out.append(text(stamp("p1loop")))
    out.append(f"L1_disp:\n    s_cmp_eq_u32 s{S_WM}, 1\n    s_cbranch_scc1 L1_loop1")
    for wm in range(2):
        out.append(f".p2align 6\nL1_loop{wm}:"); out.append(text(bs[wm]))
        out.append(f"    s_sub_u32 s{S_CNT}, s{S_CNT}, 1\n    s_cmp_lg_u32 s{S_CNT}, 0\n    s_cbranch_scc1 L1_loop{wm}")
        out.append("    s_branch L1_after")
    for wm in range(2):
        out.append(f"L1_pub{wm}:\n    v_mov_b32 v24, 1\n    buffer_atomic_add v24, v{V_L0}, {DBG}, 0 offen sc1\n    s_branch L1_pubr{wm}")
    out.append("L1_after:")
    mids=[]
    m0=z+early_proc()+stamp("early")
    m0+=[I(f"s_cmp_eq_u32 s{S_W}, 0"), I(f"s_cselect_b32 s{S_LIM+3}, {RUNS[1]-1}, 99")]
    mids.append(m0)
    mids.append([I(f"s_mov_b32 s{S_LIM+3}, 99")]+slab_touch()+touch())
    mids.append(early_query())
    mids.append(mid_section())
    for k in range(len(mids)):
        out.append(f"    s_cmp_eq_u32 s33, {k}\n    s_cbranch_scc1 L1_mid{k}")
    out.append("    s_branch L1_end")
    for k,m in enumerate(mids):
        out.append(f"L1_mid{k}:"); out.append(text(stamp(f"in{k}"))); out.append(text(m)); out.append(text(stamp(f"out{k}"))); out.append(f"    s_mov_b32 s33, {k+1}\n    s_mov_b32 s{S_CNT}, {RUNS[k+1]}\n    s_branch L1_disp")
    out.append("L1_end:")
    out.append(text(stamp("p1end")))
    return "\n".join(out)
RUNS=[1,3,5,3,4]
assert sum(RUNS)==16
```

```python
from asmlib import *
from layout import *
import p0
S_W,S_MT,S_J=20,21,22
S_XO,S_WO,S_WR,S_RD,S_CNT,S_LIM=24,25,26,27,28,29
ACC0=32
def acc(nb,mb): return ACC0+(nb*4+mb)*4
def accr(nb,mb): a=acc(nb,mb); return f"v[{a}:{a+3}]"
XA0=0
WA0=32
def xr(n,mb): a=XA0+(n%2)*16+mb*4; return f"a[{a}:{a+3}]"
def wa(n,nb): return WA0+(n%2)*24+nb*4
STAGE=40960; NST=4; WOFF=16384
V_XD=2
V_WD=6
V_XL=12
V_WL=14
V_XR=16
V_WR=18
V_CS=20
V_SQ=128; V_SV=136

def dma_x(t,i):
    o=[]
    if i==0: o.append(I(f"s_mov_b32 m0, s{S_WR}"))
    o.append(VM(f"buffer_load_dwordx4 v{V_XD+i}, s[12:15], s{S_XO} offen offset:{i*1024} lds",("D",t)))
    return o
def dma_w(t,i):
    o=[]
    if i%4==0: o.append(I(f"s_add_u32 m0, s{S_LIM+1}, {WOFF+(i//4)*4096}"))
    o.append(VM(f"buffer_load_dwordx4 v{V_WD+i}, s[8:11], s{S_WO} offen offset:{(i%4)*1024} lds",("D",t)))
    return o
def x_read(n,mb):
    s=n%2
    return DS(f"ds_read_b128 {xr(n,mb)}, v{V_XR+s} offset:{mb*2048}",("X",n,mb))
def w_reads(n,nb):
    s=n%2; sec=nb//2; h=nb%2; a=wa(n,nb)
    o=WOFF+sec*128+s*32*384
    return [DS(f"ds_read_b64_tr_b16 a[{a}:{a+1}], v{V_WR+h} offset:{o}",("W",n,nb)),
            DS(f"ds_read_b64_tr_b16 a[{a+2}:{a+3}], v{V_WR+h} offset:{o+4*384}",("W",n,nb))]

def step_ops(n):
    t=n//2; s=n%2
    mf=[]; gaps={}
    def put(idx,ops): gaps.setdefault(idx,[]).extend(ops)
    for nb in range(6):
        a=wa(n,nb); base=len(mf)
        for mb in (range(4) if nb%2==0 else range(3,-1,-1)):
            if nb<4: mf.append(I(f"v_mfma_f32_16x16x32_bf16 {accr(nb,mb)}, a[{a}:{a+3}], {xr(n,mb)}, {accr(nb,mb)}"))
            else:    mf.append(I(f"v_mfma_f32_16x16x32_bf16 {accr(nb,mb)}, {xr(n,mb)}, a[{a}:{a+3}], {accr(nb,mb)}"))
        w=[WL(("W",n,nb),("wl",s,nb))]
        if nb==0: w=[WL([("X",n,m) for m in range(4)],("wx",s))]+w
        put(base,w)
    na=n+1
    pre=[]
    if s==1:
        pre=[WV(("D",t+1),("wd",)), I("s_barrier")]
        pre+=[I(f"v_add_u32 v{V_XR}, s{S_RD}, v{V_XL}"), I(f"v_add_u32 v{V_XR+1}, s{S_RD}, v{V_XL+1}"),
              I(f"v_add_u32 v{V_WR}, s{S_RD}, v{V_WL}"), I(f"v_add_u32 v{V_WR+1}, s{S_RD}, v{V_WL+1}")]
    rds=[x_read(na,m) for m in range(4)]
    for nb in range(6): rds+=w_reads(na,nb)
    put(1,pre)
    pos=1
    for r in rds:
        put(pos,[r]); pos+=1
    pieces=[("x",0),("x",1),("x",2),("x",3),("w",0),("w",1),("w",2),("w",3),("w",4),("w",5)]
    if s==1: td,ps=t+3,pieces[:5]
    else: td,ps=t+2,pieces[5:]
    slots=[3,7,11,15,19]
    for (k,i),sl in zip(ps,slots):
        d=dma_x(td,i) if k=="x" else dma_w(td,i)
        if len(d)==2: put(sl-1,[d[0]]); put(sl,[d[1]])
        else: put(sl,[d[0]])
    if s==0:
        put(20,[I(f"s_add_u32 s{S_XO}, s{S_XO}, 128")]); put(20,[I(f"s_add_u32 s{S_WO}, s{S_WO}, {64*6144}")])
        put(21,[I(f"s_add_u32 s{S_WR}, s{S_WR}, {STAGE}")])
        put(21,[I(f"s_cmp_ge_u32 s{S_WR}, s{S_LIM}")])
        put(22,[I(f"s_cselect_b32 s3, {NST*STAGE}, 0")]); put(22,[I(f"s_sub_u32 s{S_WR}, s{S_WR}, s3")])
        put(23,[I(f"s_add_u32 s{S_LIM+1}, s{S_WR}, s{S_LIM+2}")])
        put(17,[I(f"s_add_u32 s{S_RD}, s{S_RD}, {STAGE}")]); put(18,[I(f"s_cmp_ge_u32 s{S_RD}, {NST*STAGE}")]); put(18,[I(f"s_cselect_b32 s{S_RD}, 0, s{S_RD}")])
        put(23,[I(f"s_cmp_ge_u32 s{S_WO}, {1024*6144}")]); put(24,[I(f"s_cselect_b32 s{S_XO}, 0x10000000, s{S_XO}")])
    return weave(mf,gaps)

def body(it):
    return step_ops(2*it)+step_ops(2*it+1)

def setup():
    o=[]; A=lambda s:o.append(I(s))
    A("s_cmp_ge_u32 s2, 256"); A("s_cbranch_scc1 L1_done")
    A(f"s_load_dwordx2 s[4:5], s[0:1], {D_WS}")
    A(f"s_load_dwordx2 s[12:13], s[0:1], {A_X}")
    A(f"s_load_dwordx2 s[8:9], s[0:1], {A_WQKV}")
    o+=p0.ids_p1()
    A("v_lshrrev_b32 v23, 3, v1"); A("v_lshrrev_b32 v24, 4, v1"); A("v_and_b32 v25, 7, v1")
    A(f"s_lshl_b32 s16, s{S_W}, 16")
    for i in range(4):
        A(f"v_add_u32 v26, {4*i}, v24"); A("v_and_b32 v26, 7, v26"); A("v_xor_b32 v26, v26, v25"); A("v_lshlrev_b32 v26, 4, v26")
        A(f"v_add_u32 v27, {8*i}, v23"); A("v_lshlrev_b32 v27, 11, v27"); A("v_add3_u32 v26, v26, v27, s16")
        if i: A(f"v_subrev_u32 v{V_XD+i}, {i*1024}, v26")
        else: A(f"v_mov_b32 v{V_XD}, v26")
    A("v_bfe_u32 v25, v1, 1, 2"); A("v_and_b32 v26, 1, v1"); A("v_lshlrev_b32 v26, 4, v26")
    A(f"s_mul_i32 s16, s{S_W}, {48*2048}")
    for q in range(3):
        A(f"v_add_u32 v27, {8*q}, v23"); A("v_mul_u32_u24 v28, 43, v27"); A("v_lshrrev_b32 v28, 7, v28")
        A("v_bfe_u32 v24, v28, 1, 1"); A("v_bfe_u32 v28, v28, 3, 1"); A("v_lshl_or_b32 v24, v28, 1, v24"); A("v_xor_b32 v24, v24, v25")
        A("v_lshl_add_u32 v24, v24, 5, v26"); A("v_lshl_add_u32 v24, v27, 11, v24"); A("v_add_u32 v24, s16, v24")
        A("v_xor_b32 v28, 64, v24")
        c3={0:24*2048-3*1024, 1:24*2048-0, 2:24*2048-1*1024}[q]
        A(f"v_add_u32 v{V_WD+q+3}, {c3}, v28")
        if q: A(f"v_subrev_u32 v{V_WD+q}, {q*1024}, v24")
        else: A(f"v_mov_b32 v{V_WD}, v24")
    A(f"s_lshr_b32 s16, s{S_W}, 1"); A("s_lshl_b32 s16, s16, 13")
    A("v_and_b32 v23, 15, v1"); A("v_lshrrev_b32 v24, 4, v1"); A("v_lshrrev_b32 v25, 1, v23"); A("v_lshlrev_b32 v26, 7, v23")
    for s in range(2):
        A(f"v_or_b32 v27, {4*s}, v24"); A("v_xor_b32 v27, v27, v25"); A("v_lshlrev_b32 v27, 4, v27"); A(f"v_add3_u32 v{V_XL+s}, v27, v26, s16")
    A("v_bfe_u32 v23, v1, 2, 2"); A("v_lshlrev_b32 v25, 3, v24"); A("v_add_u32 v25, v25, v23"); A("v_mul_u32_u24 v25, 384, v25")
    A("v_and_b32 v26, 3, v1"); A("v_lshlrev_b32 v26, 3, v26"); A("v_add_u32 v25, v25, v26")
    A("v_lshrrev_b32 v23, 1, v23"); A("v_and_b32 v26, 1, v24"); A("v_lshlrev_b32 v26, 1, v26"); A("v_or_b32 v23, v23, v26")
    A(f"s_and_b32 s16, s{S_W}, 1"); A("s_lshl_b32 s16, s16, 1")
    for h in range(2):
        A(f"s_or_b32 s17, s16, {h}"); A("v_xor_b32 v26, s17, v23"); A("v_lshlrev_b32 v26, 5, v26"); A(f"v_add_u32 v{V_WL+h}, v25, v26")
    for r in range(2):
        A(f"v_mov_b32 v{V_XR+r}, v{V_XL+r}"); A(f"v_mov_b32 v{V_WR+r}, v{V_WL+r}")
    A("s_waitcnt lgkmcnt(0)")
    A("s_mov_b32 s6, 0x10000000"); A("s_mov_b32 s7, 0x20000")
    A(f"s_lshl_b32 s16, s{S_MT}, 18"); A("s_add_u32 s12, s12, s16"); A("s_addc_u32 s13, s13, 0"); A("s_sub_u32 s14, 0x400000, s16"); A("s_mov_b32 s15, 0x20000")
    A(f"s_lshl_b32 s16, s{S_J}, 7"); A("s_add_u32 s8, s8, s16"); A("s_addc_u32 s9, s9, 0"); A(f"s_sub_u32 s10, {1024*6144}, s16"); A("s_mov_b32 s11, 0x20000")
    return o

def fill():
    o=[]; A=lambda s:o.append(I(s))
    A(f"s_lshl_b32 s{S_WR}, s{S_W}, 12"); A(f"s_add_u32 s{S_LIM}, s{S_WR}, {NST*STAGE}")
    A(f"s_lshl_b32 s{S_LIM+2}, s{S_W}, 11")
    A(f"s_add_u32 s{S_LIM+1}, s{S_WR}, s{S_LIM+2}")
    A(f"s_mov_b32 s{S_XO}, 0"); A(f"s_mov_b32 s{S_WO}, 0"); A(f"s_mov_b32 s{S_RD}, 0")
    pieces=[("x",0),("x",1),("x",2),("x",3),("w",0),("w",1),("w",2),("w",3),("w",4),("w",5)]
    for t in range(4):
        for (k,i) in (pieces if t<3 else pieces[:5]):
            d=dma_x(t,i) if k=="x" else dma_w(t,i)
            if len(d)==2: o.extend([d[0],I("s_nop 0"),d[1]])
            else: o.extend(d)
        if t<3:
            A(f"s_add_u32 s{S_XO}, s{S_XO}, 128"); A(f"s_add_u32 s{S_WO}, s{S_WO}, {64*6144}")
            A(f"s_add_u32 s{S_WR}, s{S_WR}, {STAGE}"); A(f"s_add_u32 s{S_LIM+1}, s{S_WR}, s{S_LIM+2}")
    return o

def load_stats():
    o=[]; A=lambda s:o.append(I(s))
    A(f"s_lshl_b32 s16, s{S_MT}, 10"); A(f"s_lshr_b32 s17, s{S_W}, 1"); A("s_lshl_b32 s17, s17, 9"); A("s_add_u32 s16, s16, s17"); A(f"s_add_u32 s16, s16, {STATS1}")
    A("v_and_b32 v23, 15, v1"); A("v_lshlrev_b32 v23, 3, v23")
    for mb in range(4): o.append(VM(f"buffer_load_dwordx2 v[{V_SQ+2*mb}:{V_SQ+2*mb+1}], v23, s[4:7], s16 offen offset:{mb*128}",("S",)))
    A("v_lshrrev_b32 v23, 4, v1"); A("v_lshlrev_b32 v23, 5, v23")
    for mb in range(4):
        for h in range(2):
            r=V_SV+8*mb+4*h
            o.append(VM(f"buffer_load_dwordx4 v[{r}:{r+3}], v23, s[4:7], s16 offen offset:{mb*128+h*16}",("S",)))
    A("v_lshrrev_b32 v23, 6, v0"); A("v_lshlrev_b32 v23, 12, v23"); A("v_lshlrev_b32 v24, 2, v1"); A("v_add_u32 v23, v23, v24")
    A("v_mov_b32 v24, 0x10000000"); A("v_cmp_gt_u32 vcc, 192, v0"); A("s_nop 1"); A("v_cndmask_b32 v23, v24, v23, vcc")
    A(f"s_lshl_b32 s16, s{S_J}, 8"); A(f"s_add_u32 s16, s16, {CS_QKV}")
    for ks in range(16):
        o.append(VM(f"buffer_load_dword v{168+ks}, v23, s[4:7], s16 offen",("C",))); A(f"s_add_u32 s16, s16, {3072*4}")
    return o
def reduce_cs():
    o=[WV(("C",),"pc")]; A=lambda s:o.append(I(s))
    A(f"v_add_f32 v{V_CS}, v168, v169")
    for ks in range(2,16): A(f"v_add_f32 v{V_CS}, v{V_CS}, v{168+ks}")
    return o

def epilogue():
    o=[]; A=lambda s:o.append(I(s))
    A("s_barrier")
    A("v_lshlrev_b32 v23, 2, v0"); o.append(DS(f"ds_write_b32 v23, v{V_CS}",("cw",))); o.append(WL(("cw",),"cw")); A("s_barrier")
    A(f"s_and_b32 s16, s{S_W}, 1"); A("s_lshl_b32 s16, s16, 7")
    A("v_lshrrev_b32 v23, 4, v1"); A("v_lshlrev_b32 v23, 4, v23"); A("v_add_u32 v23, s16, v23")
    for nb in range(4): o.append(DS(f"ds_read_b128 v[{168+4*nb}:{171+4*nb}], v23 offset:{(nb//2)*256+(nb%2)*64}",("cr",)))
    A("v_and_b32 v24, 15, v1"); A("v_lshlrev_b32 v24, 2, v24"); A("v_add_u32 v24, s16, v24")
    for h in range(2): o.append(DS(f"ds_read_b32 v{184+h}, v24 offset:{512+h*64}",("cr",)))
    A(f"s_and_b32 s16, s{S_W}, 1"); A(f"s_lshl_b32 s17, s{S_J}, 1"); A("s_add_u32 s16, s16, s17")
    A(f"s_lshr_b32 s17, s{S_W}, 1"); A("s_lshl_b32 s17, s17, 2"); A(f"s_lshl_b32 s18, s{S_MT}, 3"); A("s_add_u32 s17, s17, s18")
    A("s_lshl_b32 s16, s16, 7"); A("s_add_u32 s16, s16, s17"); A("s_lshl_b32 s16, s16, 10")
    A("v_lshlrev_b32 v23, 4, v1"); A("v_add_u32 v23, s16, v23")
    A(f"s_mov_b32 s17, {K_FO}"); A(f"s_mov_b32 s18, {VT_FO}"); A("s_mov_b32 s19, 0x3e8293ee")
    o.append(WL(("cr",),"cr"))
    k=0
    for sec in range(2):
        for mb in range(4):
            mu=V_SQ+2*mb; rs=mu+1
            if sec==0: A(f"v_mul_f32 v25, s19, v{rs}")
            tq=192+4*(k%2); k+=1
            for h in range(2):
                nb=2*sec+h; a=acc(nb,mb); c=168+4*nb
                for e in range(2):
                    A(f"v_pk_fma_f32 v[{a+2*e}:{a+2*e+1}], v[{c+2*e}:{c+2*e+1}], v[{mu}:{mu+1}], v[{a+2*e}:{a+2*e+1}] op_sel:[0,0,0] op_sel_hi:[1,0,1] neg_lo:[0,1,0] neg_hi:[0,1,0]")
                if sec==0:
                    for e in range(2): A(f"v_pk_mul_f32 v[{a+2*e}:{a+2*e+1}], v[{a+2*e}:{a+2*e+1}], v[24:25] op_sel:[0,1] op_sel_hi:[1,1]")
                else:
                    for e in range(2): A(f"v_pk_mul_f32 v[{a+2*e}:{a+2*e+1}], v[{a+2*e}:{a+2*e+1}], v[{mu}:{mu+1}] op_sel:[0,1] op_sel_hi:[1,1]")
                A(f"v_cvt_pk_bf16_f32 v{tq+2*h}, v{a}, v{a+1}"); A(f"v_cvt_pk_bf16_f32 v{tq+2*h+1}, v{a+2}, v{a+3}")
            so="0" if sec==0 else "s17"
            o.append(VM(f"buffer_store_dwordx4 v[{tq}:{tq+3}], v23, s[4:7], {so} offen offset:{mb*1024}",("ST",)))
    for gam in range(2):
        for db in range(2):
            tq=192+4*(k%2); k+=1
            for h in range(2):
                mb=2*gam+h; a=acc(4+db,mb); sv=V_SV+8*mb
                for r in range(4):
                    A(f"v_fma_f32 v{a+r}, -v{sv+2*r}, v{184+db}, v{a+r}"); A(f"v_mul_f32 v{a+r}, v{a+r}, v{sv+2*r+1}")
                A(f"v_cvt_pk_bf16_f32 v{tq+2*h}, v{a}, v{a+1}"); A(f"v_cvt_pk_bf16_f32 v{tq+2*h+1}, v{a+2}, v{a+3}")
            o.append(VM(f"buffer_store_dwordx4 v[{tq}:{tq+3}], v23, s[4:7], s18 offen offset:{(gam*2+db)*1024}",("ST",)))
    return o

def gen(name="p1_kernel", stamps=None):
    init=[I(f"v_mov_b32 v{ACC0+i}, 0") for i in range(96)]
    pro=setup()+load_stats()+fill()+init+reduce_cs()
    pro+=[WV(("D",0),"pd0"), I("s_barrier")]+[x_read(0,m) for m in range(4)]
    for nb in range(6): pro+=w_reads(0,nb)
    pro+=[I(f"s_mov_b32 s{S_CNT}, 16")]
    bodies=[body(i) for i in range(3)]
    simulate(pro+bodies[0]+bodies[1]+bodies[2])
    b=resolve(bodies)
    out=[khead(name)]
    if stamps: out.append(text(stamps[0](0)))
    out.append(text(pro))
    if stamps: out.append(text(stamps[0](1)))
    out.append(".p2align 6\nL1_loop:")
    out.append(text(b))
    out.append(f"    s_sub_u32 s{S_CNT}, s{S_CNT}, 1\n    s_cmp_lg_u32 s{S_CNT}, 0\n    s_cbranch_scc1 L1_loop")
    if stamps: out.append(text(stamps[0](2)))
    out.append("    s_waitcnt vmcnt(0) lgkmcnt(0)")
    e=epilogue(); simulate(e); out.append(text(e))
    if stamps:
        out.append("    s_waitcnt vmcnt(0)"); out.append(text(stamps[0](3))); out.append(text(stamps[1](4,"L1_st",1)))
    out.append("L1_done:\n    s_endpgm")
    return "\n".join(out), name

if __name__=="__main__":
    import p4
    code,name=gen(stamps=(p4.stamp,p4.stamp_flush))
    h=f"; @launch kernel={name} grid=(256,1,1) block=(256,1,1) lds={NST*STAGE}\n"
    s=h+'.amdgcn_target "amdgcn-amd-amdhsa--gfx950"\n.text\n'+code+'\n.section .rodata,"a"\n'+kd(name)+"\n"
    open("p1.s","w").write(s)
```

```python
from common import *
import p1 as P
from p1 import (S_XO,S_WO,S_WR,S_RD,S_CNT,S_LIM,ACC0,acc,STAGE,NST,V_XD,V_WD,V_XL,V_WL,V_XR,V_WR,V_CS,V_SQ,V_SV,dma_x,dma_w,x_read,w_reads)
V_Q=204; V_K=220; V_V=236
CS_SCR=153600

LATE=[]
POST=[]
LASTMID=[]
WOSET=[]
DELAY=[0]
CODEPF=[0]
KNAME="sequential_preLN__sliding_block__glu_gated_bilinear__prompt_kernel"
def entry():
    o=[]; A=lambda s:o.append(I(s))
    A("s_cmp_ge_u32 s2, 256"); A("s_cbranch_scc1 L_done")
    A(f"s_load_dwordx16 s[84:99], s[0:1], 0")
    A(f"s_load_dwordx2 s[{P_DBG}:{P_DBG+1}], s[0:1], {D_DBG}")
    A(f"s_load_dwordx2 s[4:5], s[0:1], {D_WS}")
    A("v_and_b32 v1, 63, v0"); A("v_lshrrev_b32 v23, 6, v0")
    if CODEPF[0]:
        A("s_getpc_b64 s[24:25]"); o.append(RAW("L_pc:")); A(f"s_sub_u32 s24, s24, L_pc-{KNAME}"); A("s_subb_u32 s25, s25, 0")
        A("s_lshr_b32 s16, s2, 3"); A("s_lshl_b32 s16, s16, 11")
        A("v_and_b32 v2, 15, v0"); A("v_lshlrev_b32 v2, 7, v2"); A("v_add_u32 v2, s16, v2"); A(f"s_mov_b32 s17, L_codeend-{KNAME}")
        A("v_cmp_gt_u32 vcc, s17, v2"); A("v_cmp_gt_u32 s[26:27], 16, v0"); A("s_nop 1"); A("s_and_b64 vcc, vcc, s[26:27]")
        A("s_and_saveexec_b64 s[26:27], vcc"); A("s_cbranch_execz L_nopf")
        A("global_load_dword v29, v2, s[24:25]")
        o.append(RAW("L_nopf:")); A("s_mov_b64 exec, s[26:27]")
    A("s_and_b32 s3, s2, 7"); A("s_lshr_b32 s16, s2, 3")
    A("s_and_b32 s17, s3, 1"); A("s_lshl_b32 s17, s17, 2"); A("s_and_b32 s18, s16, 3"); A("s_add_u32 s17, s17, s18"); A("s_lshr_b32 s18, s2, 7"); A("s_lshl_b32 s18, s18, 3"); A(f"s_add_u32 s{S_MT}, s17, s18")
    A(f"v_readfirstlane_b32 s{S_W}, v23")
    A("s_lshr_b32 s17, s3, 1"); A("s_lshl_b32 s17, s17, 2"); A("s_bfe_u32 s18, s16, 0x20002"); A(f"s_add_u32 s{S_J}, s17, s18")
    POST[:]=[I("s_and_b32 s3, s2, 7"), I("s_lshr_b32 s16, s2, 3"), I("s_lshr_b32 s17, s16, 4"), I("s_lshl_b32 s18, s3, 1"), I(f"s_add_u32 s{S_M3}, s17, s18"), I(f"s_and_b32 s{S_N3}, s16, 15")]
    if DELAY[0]:
        A("s_cmp_ge_u32 s2, 128"); A("s_cbranch_scc0 L_nodelay"); A("s_memrealtime s[24:25]"); A("s_waitcnt lgkmcnt(0)")
        o.append(RAW("L_dl:")); A("s_memrealtime s[26:27]"); A("s_waitcnt lgkmcnt(0)"); A("s_sub_u32 s26, s26, s24"); A(f"s_cmp_lt_u32 s26, {DELAY[0]}"); A("s_cbranch_scc1 L_dl")
        o.append(RAW("L_nodelay:"))
    POST.extend([I(f"v_mov_b32 v{V_L0}, {BIG}"), I("v_cmp_eq_u32 vcc, 0, v1"), I("s_nop 1"), I(f"v_cndmask_b32 v{V_L0}, v{V_L0}, 0, vcc")])
    st=P.setup()
    i0=[k for k,op in enumerate(st) if op.text.startswith("v_lshrrev_b32 v23, 3, v1")][0]
    i1=[k for k,op in enumerate(st) if op.text=="s_waitcnt lgkmcnt(0)"][0]
    POST.extend(touch_voff())
    body_=st[i0:i1]
    k=[i for i,op in enumerate(body_) if op.text.startswith(f"s_lshr_b32 s16, s{S_W}, 1")][0]
    o+=body_[:k]
    LATE[:]=body_[k:]
    o+=stamp("prek")
    A("s_waitcnt lgkmcnt(0)")
    o+=stamp("kern")
    A(f"s_mov_b32 s6, {BIG}"); A("s_mov_b32 s7, 0x20000")
    A(f"s_mov_b32 s40, s{P_DBG}"); A(f"s_mov_b32 s41, s{P_DBG+1}"); A("s_mov_b32 s42, 256"); A("s_mov_b32 s43, 0x20000")
    A(f"s_lshl_b32 s16, s{S_MT}, 18"); A(f"s_add_u32 s12, s{P_X}, s16"); A(f"s_addc_u32 s13, s{P_X+1}, 0"); A("s_sub_u32 s14, 0x400000, s16"); A("s_mov_b32 s15, 0x20000")
    A(f"s_lshl_b32 s16, s{S_J}, 7"); A(f"s_add_u32 s8, s{P_WQKV}, s16"); A(f"s_addc_u32 s9, s{P_WQKV+1}, 0"); A(f"s_sub_u32 s10, {1024*6144}, s16"); A("s_mov_b32 s11, 0x20000")
    o+=touch_setup()+touch()
    return o

def zero_sync():
    o=[]; A=lambda s:o.append(I(s))
    A(f"s_lshl_b32 s16, s{S_MT}, 4"); A(f"s_add_u32 s16, s16, s{S_J}"); A("s_lshl_b32 s16, s16, 8"); A(f"s_add_u32 s16, s16, {S_KV}")
    A("s_lshl_b32 s17, s2, 8"); A(f"s_add_u32 s18, s17, {S_CNT0}"); A(f"s_add_u32 s17, s17, {S_XF}")
    A(f"s_add_u32 s19, s18, {256*256}"); A("s_cmp_lt_u32 s2, 64"); A(f"s_cselect_b32 s19, s19, {BIG}")
    A(f"v_mov_b32 v24, {BIG}")
    for lane,sr in ((0,16),(1,17),(2,18),(3,19)):
        A(f"v_mov_b32 v25, s{sr}"); A(f"v_cmp_eq_u32 vcc, {lane}, v0"); A("s_nop 1"); A("v_cndmask_b32 v24, v24, v25, vcc")
    A("v_mov_b32 v20, v24")
    return o
def zero_store():
    return [I("v_mov_b32 v25, 0"), I("buffer_store_dword v25, v20, s[4:7], 0 offen sc1")]

R0=128
V_CSA=168
V_ONE=192
S_WM=23
def early_loads():
    o=[]; A=lambda s:o.append(I(s))
    A(f"s_lshl_b32 s16, s{S_J}, 14"); A(f"s_lshl_b32 s17, s{S_W}, 12"); A("s_add_u32 s16, s16, s17")
    A("v_lshlrev_b32 v23, 4, v1")
    for q in range(2):
        for h in range(2):
            r=R0+8*q+4*h
            A(f"buffer_load_dwordx4 v[{r}:{r+3}], v23, s[12:15], s16 offen offset:{q*2048+h*1024}")
    A(f"s_mov_b32 s36, s{P_WO}"); A(f"s_mov_b32 s37, s{P_WO+1}"); A(f"s_mov_b32 s38, {1024*2048}"); A("s_mov_b32 s39, 0x20000")
    A("s_lshl_b32 s16, s2, 2"); A(f"s_add_u32 s16, s16, s{S_W}"); A("s_lshl_b32 s16, s16, 11")
    for h in range(2):
        r=R0+24+4*h
        A(f"buffer_load_dwordx4 v[{r}:{r+3}], v23, s[36:39], s16 offen offset:{h*1024}")
    return o
def early_proc():
    o=[]; A=lambda s:o.append(I(s))
    T=R0+16
    A("v_mov_b32 v24, 0x3f803f80")
    for q in range(2):
        for d in range(8):
            r=R0+8*q+d
            if d==0:
                A(f"v_dot2_f32_bf16 v{T+2*q}, v{r}, v24, 0"); A(f"v_dot2_f32_bf16 v{T+2*q+1}, v{r}, v{r}, 0")
            else:
                A(f"v_dot2_f32_bf16 v{T+2*q}, v{r}, v24, v{T+2*q}"); A(f"v_dot2_f32_bf16 v{T+2*q+1}, v{r}, v{r}, v{T+2*q+1}")
    for d in range(8):
        r=R0+24+d
        A(f"v_dot2_f32_bf16 v{T+4}, v{r}, v24, {0 if d==0 else 'v%d'%(T+4)}")
    regs=list(range(T,T+5))
    A("s_nop 2")
    for sh in (8,4,2,1):
        A("s_nop 1")
        for r in regs: A(f"v_add_f32_dpp v{r}, v{r}, v{r} row_ror:{sh} row_mask:0xf bank_mask:0xf")
    swap_sum(A,regs,R0,"v_permlane16_swap_b32"); swap_sum(A,regs,R0,"v_permlane32_swap_b32")
    A("s_mov_b32 s16, 0x3a800000"); A(f"v_mul_f32 v25, s16, v{T+4}")
    A("v_cvt_pk_bf16_f32 v26, v25, v25"); A("v_lshlrev_b32 v27, 16, v26"); A("v_sub_f32 v27, v25, v27"); A("v_cvt_pk_bf16_f32 v27, v27, v27")
    A("v_cmp_eq_u32 vcc, 1, v1"); A("s_nop 1"); A("v_cndmask_b32 v26, v26, v27, vcc")
    A("s_lshl_b32 s16, s2, 2"); A(f"s_add_u32 s16, s16, s{S_W}")
    A("s_lshr_b32 s17, s16, 5"); A("s_lshl_b32 s17, s17, 7")
    A("s_bfe_u32 s18, s16, 0x20002"); A("s_lshl_b32 s18, s18, 5"); A("s_add_u32 s17, s17, s18")
    A("s_bfe_u32 s18, s16, 0x10004"); A("s_lshl_b32 s18, s18, 3"); A("s_add_u32 s17, s17, s18")
    A("s_and_b32 s18, s16, 3"); A("s_lshl_b32 s18, s18, 1"); A("s_add_u32 s17, s17, s18"); A(f"s_add_u32 s17, s17, {WBAR}")
    A("v_lshlrev_b32 v23, 4, v1"); A(f"v_mov_b32 v25, {BIG}"); A("v_cmp_gt_u32 vcc, 2, v1"); A("s_nop 1"); A("v_cndmask_b32 v23, v25, v23, vcc")
    A("buffer_store_short v26, v23, s[4:7], s17 offen sc1")
    A("v_cmp_eq_u32 vcc, 1, v1"); A("s_nop 1")
    A(f"v_cndmask_b32 v26, v{T}, v{T+2}, vcc"); A(f"v_cndmask_b32 v27, v{T+1}, v{T+3}, vcc")
    A("s_mov_b32 s16, 0x3a800000"); A("s_mov_b32 s17, 0x3727c5ac")
    A("v_mul_f32 v26, s16, v26"); A("v_mul_f32 v27, s16, v27"); A("v_fma_f32 v27, -v26, v26, v27"); A("v_add_f32 v27, s17, v27")
    A("v_rsq_f32 v27, v27")
    A(f"s_lshl_b32 s16, s{S_MT}, 10"); A(f"s_lshl_b32 s17, s{S_J}, 6"); A("s_add_u32 s16, s16, s17"); A(f"s_lshl_b32 s17, s{S_W}, 4"); A("s_add_u32 s16, s16, s17"); A(f"s_add_u32 s16, s16, {STATS1}")
    A("v_lshlrev_b32 v23, 3, v1"); A(f"v_mov_b32 v24, {BIG}"); A("v_cmp_gt_u32 vcc, 2, v1"); A("s_nop 1"); A("v_cndmask_b32 v23, v24, v23, vcc")
    A(f"buffer_store_dwordx2 v[26:27], v23, s[4:7], s16 offen sc1")
    return o

def prefetch(which, part=0, parts=1):
    o=[]; A=lambda s:o.append(I(s))
    ptr,nbytes={"wo":(P_WO,1024*2048),"wg":(P_WG,1024*7168),"wu":(P_WU,1024*7168),"wd":(P_WD,3584*2048)}[which]
    lines=nbytes//128//256
    per=lines//4//parts
    assert per*4*parts==lines
    A(f"s_mov_b32 s36, s{ptr}"); A(f"s_mov_b32 s37, s{ptr+1}"); A(f"s_mov_b32 s38, {nbytes}"); A("s_mov_b32 s39, 0x20000")
    A(f"s_mul_i32 s16, s2, {lines*128}"); A(f"s_mul_i32 s17, s{S_W}, {per*parts*128}"); A("s_add_u32 s16, s16, s17"); A(f"s_add_u32 s16, s16, {part*per*128}")
    A("v_lshlrev_b32 v28, 7, v1"); A(f"v_mov_b32 v29, {BIG}"); A(f"v_cmp_gt_u32 vcc, {per}, v1"); A("s_nop 1"); A("v_cndmask_b32 v28, v29, v28, vcc")
    A("buffer_load_dword v29, v28, s[36:39], s16 offen")
    return o

def stats_loads():
    st=P.load_stats()
    k=[i for i,op in enumerate(st) if op.text.startswith("v_lshrrev_b32 v23, 6, v0")][0]
    st=st[:k]
    for op in st:
        if op.kind=="vm": op.text+=" sc1"
    return st

def early_query():
    return [I("v_lshlrev_b32 v28, 7, v1"), I("v_cmp_gt_u32 vcc, 2, v1"), I(f"v_mov_b32 v31, {BIG}"), I("s_nop 0"), I("v_cndmask_b32 v28, v31, v28, vcc"),
            I(f"buffer_load_dword v31, v28, {DBG}, 0 offen sc1")]
def mid_section():
    o=[]; A=lambda s:o.append(I(s))
    L=lbl("Lm"); Pl=lbl("Lmp")
    A("v_readlane_b32 s17, v31, 0"); A("v_readlane_b32 s18, v31, 1"); A("s_min_u32 s17, s17, s18"); A("s_cmp_ge_u32 s17, 128"); A(f"s_cbranch_scc1 {L}")
    A("s_mov_b32 s19, 0"); o.append(RAW(f"{Pl}:")); A("s_add_u32 s19, s19, 1"); A("s_cmp_gt_u32 s19, 300000"); A(f"s_cbranch_scc1 {L}")
    A(f"buffer_load_dword v31, v28, {DBG}, 0 offen sc1"); A("s_waitcnt vmcnt(0)")
    A("v_readlane_b32 s17, v31, 0"); A("v_readlane_b32 s18, v31, 1"); A("s_min_u32 s17, s17, s18"); A("s_cmp_ge_u32 s17, 128"); A(f"s_cbranch_scc0 {Pl}")
    o.append(RAW(f"{L}:"))
    for op in stats_loads():
        o.append(I(op.text) if op.kind=="vm" else op)
    return o

V_T=21; S_TO=77
V_T2=22
def touch_setup():
    o=[]; A=lambda s:o.append(I(s))
    A(f"s_mov_b32 s80, s{P_X}"); A(f"s_mov_b32 s81, s{P_X+1}"); A("s_mov_b32 s82, 0x400000"); A("s_mov_b32 s83, 0x20000")
    A(f"s_mov_b32 s{S_TO}, 0"); A("s_mov_b32 s76, 0")
    return o
def touch_voff():
    o=[]; A=lambda s:o.append(I(s))
    A("s_lshl_b32 s16, s2, 3"); A(f"s_lshl_b32 s17, s{S_W}, 2"); A("s_add_u32 s16, s16, s17"); A("s_lshl_b32 s16, s16, 11")
    A("v_lshrrev_b32 v24, 3, v1"); A("v_lshlrev_b32 v24, 11, v24"); A("v_and_b32 v25, 7, v1"); A("v_lshlrev_b32 v25, 7, v25"); A("v_add3_u32 v24, v24, v25, s16")
    A(f"s_cmp_ge_u32 s{S_W}, 2"); A("s_cselect_b32 s18, 0, 32")
    A(f"v_mov_b32 v25, {BIG}"); A("v_cmp_gt_u32 vcc, s18, v1"); A("s_nop 1"); A(f"v_cndmask_b32 v{V_T}, v25, v24, vcc")
    A("s_lshr_b32 s16, s2, 7"); A("s_lshl_b32 s16, s16, 2"); A("s_bfe_u32 s17, s2, 0x20003"); A("s_add_u32 s16, s16, s17"); A("s_mul_i32 s16, s16, 192")
    A(f"s_mul_i32 s17, s{S_W}, 48"); A("s_add_u32 s16, s16, s17"); A("v_add_u32 v24, s16, v1"); A("v_lshlrev_b32 v24, 11, v24")
    A("v_cmp_gt_u32 vcc, 48, v1"); A("s_nop 1"); A(f"v_cndmask_b32 v{V_T2}, v25, v24, vcc")
    return o
def touch():
    return [I(f"buffer_load_dword v29, v{V_T2}, s[8:11], s76 offen"), I(f"buffer_load_dword v29, v{V_T}, s[80:83], s{S_TO} offen"),
            I(f"s_add_u32 s{S_TO}, s{S_TO}, 1024"), I(f"s_add_u32 s76, s76, {1536*2048}")]
V_T3=22; S_T3=79
def slab_voff():
    o=[]; A=lambda s:o.append(I(s))
    A("s_lshr_b32 s16, s2, 3"); A("s_mul_i32 s16, s16, 24"); A(f"s_mul_i32 s17, s{S_W}, 6"); A("s_add_u32 s16, s16, s17")
    A(f"v_add_u32 v24, s16, v1"); A("v_lshlrev_b32 v24, 11, v24")
    A(f"s_or_b32 s17, s{S_J}, 3"); A(f"s_sub_u32 s17, s17, s{S_J}"); A("s_lshl_b32 s17, s17, 7"); A("v_add_u32 v24, s17, v24")
    A(f"s_and_b32 s18, s{S_J}, 4"); A("s_cmp_eq_u32 s18, 0"); A("s_cselect_b32 s18, 6, 0")
    A(f"v_mov_b32 v25, {BIG}"); A("v_cmp_gt_u32 vcc, s18, v1"); A("s_nop 1"); A(f"v_cndmask_b32 v{V_T3}, v25, v24, vcc")
    A(f"s_mov_b32 s{S_T3}, 0")
    return o
def slab_touch():
    return [I(f"buffer_load_dword v29, v{V_T3}, s[8:11], s{S_T3} offen"), I(f"s_add_u32 s{S_T3}, s{S_T3}, {768*2048}")]
V_T4=22
def touch4_voff():
    o=[]; A=lambda s:o.append(I(s))
    A("s_lshl_b32 s17, s2, 2"); A(f"s_add_u32 s17, s17, s{S_W}"); A("s_mul_i32 s17, s17, 1536")
    A("v_lshlrev_b32 v24, 7, v1"); A("v_add_u32 v24, s17, v24")
    A(f"v_mov_b32 v25, {BIG}"); A("v_cmp_gt_u32 vcc, 12, v1"); A("s_nop 1"); A(f"v_cndmask_b32 v{V_T4}, v25, v24, vcc")
    return o
def touch4(e):
    return [I(f"s_mov_b32 s80, s{P_WQKV}"), I(f"s_mov_b32 s81, s{P_WQKV+1}"), I(f"s_mov_b32 s82, {1024*6144}"), I(f"s_mov_b32 s{S_TO}, {(8+4*e)*64*6144}"),
            I(f"buffer_load_dword v29, v{V_T4}, s[80:83], s{S_TO} offen")]
def cs_block(n):
    o=[]
    for nb in range(6):
        a=P.wa(n,nb); c=V_CSA+4*nb
        if nb<4: o.append(I(f"v_mfma_f32_16x16x32_bf16 v[{c}:{c+3}], a[{a}:{a+3}], v[{V_ONE}:{V_ONE+3}], v[{c}:{c+3}]"))
        else:    o.append(I(f"v_mfma_f32_16x16x32_bf16 v[{c}:{c+3}], v[{V_ONE}:{V_ONE+3}], a[{a}:{a+3}], v[{c}:{c+3}]"))
    return o
def step_ops(n, wm):
    t=n//2; s_=n%2
    mf=[]
    for nb in range(6):
        a=P.wa(n,nb)
        for mb in (range(4) if nb%2==0 else range(3,-1,-1)):
            if nb<4: mf.append(I(f"v_mfma_f32_16x16x32_bf16 {P.accr(nb,mb)}, a[{a}:{a+3}], {P.xr(n,mb)}, {P.accr(nb,mb)}"))
            else:    mf.append(I(f"v_mfma_f32_16x16x32_bf16 {P.accr(nb,mb)}, {P.xr(n,mb)}, a[{a}:{a+3}], {P.accr(nb,mb)}"))
    if wm==s_: mf+=cs_block(n)
    gaps={}
    def put(g,ops): gaps.setdefault(g,[]).extend(ops if isinstance(ops,list) else [ops])
    put(0,[WL([("X",n,m) for m in range(4)]+[("W",n,0),("W",n,1)],("w0",s_))])
    put(8,[WL([("W",n,2),("W",n,3)],("w1",s_))]); put(16,[WL([("W",n,4),("W",n,5)],("w2",s_))])
    na=n+1
    rds=[x_read(na,m) for m in range(4)]
    for nb in range(6): rds+=w_reads(na,nb)
    if s_==0:
        td=t+3
        dpos=[1,2,3,5,6,7,9,10,11,13,14,15,17,18,19,21]
        for g,r in zip(dpos,rds): put(g,r)
        for i,g in zip(range(1,6),(4,8,12,16,20)):
            d=dma_w(td,i)
            if len(d)==2: put(g-1,d[0]); put(g,d[1])
            else: put(g,d[0])
        put(1,I(f"s_add_u32 s{S_RD}, s{S_RD}, {STAGE}")); put(2,I(f"s_cmp_ge_u32 s{S_RD}, {NST*STAGE}")); put(3,I(f"s_cselect_b32 s{S_RD}, 0, s{S_RD}"))
        put(21,I(f"s_add_u32 s{S_XO}, s{S_XO}, 128")); put(22,I(f"s_add_u32 s{S_WO}, s{S_WO}, {64*6144}"))
        put(23,[I(f"s_add_u32 s3, s{S_WR}, {STAGE}"), I(f"s_cmp_eq_u32 s3, s{S_LIM}")])
        put(24,[I(f"s_cselect_b32 s{S_WR}, s78, s3"), I(f"s_add_u32 s{S_LIM+1}, s{S_WR}, s{S_LIM+2}")])
    else:
        td=t+4
        put(1,[WV(("D",t+1),("wd",)), DRAINL(), I("s_barrier"), I(f"s_cmp_eq_u32 s{S_CNT}, s{S_LIM+3}"), I(f"s_cbranch_scc1 L1_pub{wm}"), RAW(f"L1_pubr{wm}:")])
        put(2,[I(f"v_add_u32 v{V_XR}, s{S_RD}, v{V_XL}"), I(f"v_add_u32 v{V_WR}, s{S_RD}, v{V_WL}")])
        put(3,[I(f"v_add_u32 v{V_WR+1}, s{S_RD}, v{V_WL+1}"), I(f"v_add_u32 v{V_XR+1}, s{S_RD}, v{V_XL+1}")])
        dpos=[4,5,6,8,9,10,12,13,14,16,17,18,20,21,22,24]
        for g,r in zip(dpos,rds): put(g,r)
        for (k,i),g in zip([("x",0),("x",1),("x",2),("x",3),("w",0)],(7,11,15,19,23)):
            d=dma_x(td,i) if k=="x" else dma_w(td,i)
            if len(d)==2: put(g-1,d[0]); put(g,d[1])
            else: put(g,d[0])
    return weave(mf,gaps)
def body(it, wm):
    return step_ops(2*it,wm)+step_ops(2*it+1,wm)

def epilogue(pre=(), groups=()):
    o=_epilogue(pre)
    groups=list(groups); out=[]; cnt=0; started=False
    for op in o:
        out.append(op)
        t=op.text or ""
        if t.startswith("v_pk_fma_f32"): started=True
        if started and t.startswith("v_") and groups:
            cnt+=1
            if cnt%9==0: out+=groups.pop(0)
    assert not groups, len(groups)
    return out
def _epilogue(pre):
    o=[]; A=lambda s:o.append(I(s))
    A("s_waitcnt vmcnt(0) lgkmcnt(0)")
    A("s_barrier")
    o+=list(pre)
    A(f"v_mov_b32 v{V_CSA+17}, v{V_CSA+20}")
    A(f"s_mul_i32 s16, s{S_W}, 5120"); A(f"s_add_u32 s16, s16, {CS_SCR-20480}"); A(f"s_xor_b32 s17, s{S_W}, 2"); A("s_mul_i32 s17, s17, 5120"); A(f"s_add_u32 s17, s17, {CS_SCR-20480}")
    A("v_lshlrev_b32 v23, 4, v1"); A("v_add_u32 v24, s17, v23"); A("v_add_u32 v23, s16, v23")
    for q in range(5): o.append(DS(f"ds_write_b128 v23, v[{V_CSA+4*q}:{V_CSA+4*q+3}] offset:{q*1024}",("cw",)))
    o.append(WL(("cw",),"cw")); A("s_barrier")
    for q in range(5): o.append(DS(f"ds_read_b128 v[{2+4*q}:{5+4*q}], v24 offset:{q*1024}",("cr",)))
    o.append(WL(("cr",),"cr"))
    for q in range(18): A(f"v_add_f32 v{V_CSA+q}, v{V_CSA+q}, v{2+q}")
    A(f"s_and_b32 s16, s{S_W}, 1"); A(f"s_lshl_b32 s17, s{S_J}, 1"); A("s_add_u32 s16, s16, s17")
    A(f"s_lshr_b32 s17, s{S_W}, 1"); A("s_lshl_b32 s17, s17, 2"); A(f"s_lshl_b32 s18, s{S_MT}, 3"); A("s_add_u32 s17, s17, s18")
    A("s_lshl_b32 s16, s16, 7"); A("s_add_u32 s16, s16, s17"); A("s_lshl_b32 s16, s16, 10")
    A("v_lshlrev_b32 v23, 4, v1"); A("v_add_u32 v23, s16, v23")
    A(f"s_mov_b32 s17, {K_FO}"); A(f"s_mov_b32 s18, {VT_FO}"); A("s_mov_b32 s19, 0x3e8293ee")
    def qk(sec):
        for mb in range(4):
            mu=V_SQ+2*mb; rs=mu+1
            if sec==0: A(f"v_mul_f32 v25, s19, v{rs}")
            tq=(V_Q if sec==0 else V_K)+4*mb
            for h in range(2):
                nb=2*sec+h; a=acc(nb,mb); c=168+4*nb
                for e in range(2):
                    A(f"v_pk_fma_f32 v[{a+2*e}:{a+2*e+1}], v[{c+2*e}:{c+2*e+1}], v[{mu}:{mu+1}], v[{a+2*e}:{a+2*e+1}] op_sel:[0,0,0] op_sel_hi:[1,0,1] neg_lo:[0,1,0] neg_hi:[0,1,0]")
                if sec==0:
                    for e in range(2): A(f"v_pk_mul_f32 v[{a+2*e}:{a+2*e+1}], v[{a+2*e}:{a+2*e+1}], v[24:25] op_sel:[0,1] op_sel_hi:[1,1]")
                else:
                    for e in range(2): A(f"v_pk_mul_f32 v[{a+2*e}:{a+2*e+1}], v[{a+2*e}:{a+2*e+1}], v[{mu}:{mu+1}] op_sel:[0,1] op_sel_hi:[1,1]")
                A(f"v_cvt_pk_bf16_f32 v{tq+2*h}, v{a}, v{a+1}"); A(f"v_cvt_pk_bf16_f32 v{tq+2*h+1}, v{a+2}, v{a+3}")
            if sec==1: o.append(VM(f"buffer_store_dwordx4 v[{tq}:{tq+3}], v23, s[4:7], s17 offen offset:{mb*1024} sc1",("KV",)))
    qk(1)
    for gam in range(2):
        for db in range(2):
            tq=V_V+4*(2*gam+db)
            for h in range(2):
                mb=2*gam+h; a=acc(4+db,mb); sv=V_SV+8*mb
                for r in range(4):
                    A(f"v_fma_f32 v{a+r}, -v{sv+2*r}, v{184+db}, v{a+r}"); A(f"v_mul_f32 v{a+r}, v{a+r}, v{sv+2*r+1}")
                A(f"v_cvt_pk_bf16_f32 v{tq+2*h}, v{a}, v{a+1}"); A(f"v_cvt_pk_bf16_f32 v{tq+2*h+1}, v{a+2}, v{a+3}")
            o.append(VM(f"buffer_store_dwordx4 v[{tq}:{tq+3}], v23, s[4:7], s18 offen offset:{(gam*2+db)*1024} sc1",("KV",)))
    qk(0)
    return o

def gen():
    out=[]
    out.append(text(stamp("start")))
    e=entry()
    z=zero_sync()
    fill=P.fill()
    init=[I(f"s_lshr_b32 s{S_WM}, s{S_W}, 1"), I(f"s_lshl_b32 s78, s{S_W}, 12")]
    k1=[i for i,op in enumerate(fill) if op.text.startswith(f"s_add_u32 s{S_XO}, s{S_XO}, 128")][0]
    zi=[I(f"v_mov_b32 v{ACC0+i}, 0") for i in range(96)]+[I(f"v_mov_b32 v{V_CSA+i}, 0") for i in range(24)]+[I(f"v_mov_b32 v{V_ONE+i}, 0x3f803f80") for i in range(4)]
    rest=fill[k1:]
    vm=[i for i,op in enumerate(rest) if op.kind=="vm"]
    mix=[]; zq=list(LATE)+zi+list(WOSET)+touch4_voff()+z
    per=(len(zq)+len(vm)-1)//len(vm)
    for i,op in enumerate(rest):
        mix.append(op)
        if op.kind=="vm":
            mix+=zq[:per]; zq=zq[per:]
    mix+=zq
    out.append(text(e))
    out.append(text(touch_setup()+touch()+early_loads()))
    out.append(text(fill[:k1])); out.append(text(POST+slab_voff())); out.append(text(slab_touch()+slab_touch()+touch())); out.append(text(stamp("d0iss"))); out.append(text(mix)); out.append(text(stamp("fiss")))
    ts=touch4_voff()+slab_touch()+touch()
    out.append(text(init)); out.append(text(stamp("init")))
    pro=[WV(("D",0),"pd0")]+stamp("d0land")+[I("s_barrier")]+[x_read(0,m) for m in range(4)]
    for nb in range(6): pro+=w_reads(0,nb)
    pro+=[I(f"s_mov_b32 s{S_CNT}, {RUNS[0]}"), I(f"s_mov_b32 s{S_LIM+3}, 99"), I("s_mov_b32 s33, 0")]
    bs=[]
    for wm in range(2):
        bodies=[body(i,wm) for i in range(3)]
        simulate(fill+pro+bodies[0]+bodies[1]+bodies[2])
        bs.append(resolve(bodies))
    out.append(text(pro)); out.append(text(stamp("p1loop")))
    out.append(f"L1_disp:\n    s_cmp_eq_u32 s{S_WM}, 1\n    s_cbranch_scc1 L1_loop1")
    for wm in range(2):
        out.append(f".p2align 6\nL1_loop{wm}:"); out.append(text(bs[wm]))
        out.append(f"    s_sub_u32 s{S_CNT}, s{S_CNT}, 1\n    s_cmp_lg_u32 s{S_CNT}, 0\n    s_cbranch_scc1 L1_loop{wm}")
        out.append("    s_branch L1_after")
    for wm in range(2):
        out.append(f"L1_pub{wm}:\n    v_mov_b32 v24, 1\n    s_and_b32 s16, s2, 1\n    s_lshl_b32 s16, s16, 7\n    buffer_atomic_add v24, v{V_L0}, {DBG}, s16 offen sc1\n    s_branch L1_pubr{wm}")
    out.append("L1_after:")
    mids=[]
    m0=z+early_proc()+stamp("early")
    m0+=[I(f"s_cmp_eq_u32 s{S_W}, 0"), I(f"s_cselect_b32 s{S_LIM+3}, {RUNS[1]-1}, 99")]
    mids.append(m0)
    mids.append([I(f"s_mov_b32 s{S_LIM+3}, 99")]+slab_touch()+touch())
    mids.append(early_query())
    mids.append(mid_section())
    for k in range(len(mids)):
        out.append(f"    s_cmp_eq_u32 s33, {k}\n    s_cbranch_scc1 L1_mid{k}")
    out.append("    s_branch L1_end")
    for k,m in enumerate(mids):
        out.append(f"L1_mid{k}:"); out.append(text(stamp(f"in{k}"))); out.append(text(m)); out.append(text(stamp(f"out{k}"))); out.append(f"    s_mov_b32 s33, {k+1}\n    s_mov_b32 s{S_CNT}, {RUNS[k+1]}\n    s_branch L1_disp")
    out.append("L1_end:")
    out.append(text(stamp("p1end")))
    return "\n".join(out)
RUNS=[1,3,5,3,4]
assert sum(RUNS)==16
```

```python
from common import *
import p4 as P
from p4 import (acc,accr,STAGE,NST,CSL,S_XO,S_WO,S_WR,S_RD,S_CNT,V_DSL,V_DS,V_WO,V_XO,dma,w_reads,D)
S_NT,S_M8=34,35
P.S_NT=S_NT; P.S_M8=S_M8
V_R2=2
_xl=P.x_load
def x_load(n,mb):
    op=_xl(n,mb); op.text+=" sc1"; return op
P.x_load=x_load

def ids():
    o=[]; A=lambda s:o.append(I(s))
    A("s_and_b32 s3, s2, 7"); A("s_lshl_b32 s3, s3, 2"); A("s_lshr_b32 s16, s2, 3"); A("s_and_b32 s16, s16, 3")
    A(f"s_add_u32 s{S_NT}, s3, s16"); A(f"s_lshr_b32 s{S_M8}, s2, 5")
    return o
def w_setup():
    o=[]; A=lambda s:o.append(I(s))
    A(f"s_and_b32 s16, s{S_W}, 1"); A("s_mul_i32 s16, s16, 448"); A("s_movk_i32 s17, 4682"); A("s_movk_i32 s18, 7168")
    for i in range(7):
        A(f"v_add_u32 v23, s16, v1")
        if i: A(f"v_add_u32 v23, {64*i}, v23")
        A("v_mul_lo_u32 v24, v23, s17"); A("v_lshrrev_b32 v24, 16, v24")
        A("v_mul_u32_u24 v25, 14, v24"); A("v_sub_u32 v25, v23, v25"); A("v_lshlrev_b32 v25, 4, v25")
        A(f"v_mul_lo_u32 v24, v24, s18"); A(f"v_add_u32 v{V_WO+i}, v24, v25")
    A(f"s_cmp_ge_u32 s{S_W}, 2"); A(f"s_cselect_b32 s8, s{P_WU}, s{P_WG}"); A(f"s_cselect_b32 s9, s{P_WU+1}, s{P_WG+1}")
    A(f"s_mul_i32 s16, s{S_NT}, 224"); A("s_add_u32 s8, s8, s16"); A("s_addc_u32 s9, s9, 0")
    A(f"s_sub_u32 s10, {1024*7168}, s16"); A("s_mov_b32 s11, 0x20000")
    A(f"s_mul_i32 s{S_WR}, s{S_W}, 7168"); A(f"s_mov_b32 s{S_WO}, 0")
    return o
def w_fill():
    o=[]; A=lambda s:o.append(I(s))
    for t in range(3):
        for i in range(7 if t<2 else 4):
            d=dma(t,i); o.extend([d[0],I("s_nop 0"),d[1]])
        if t<2: A(f"s_add_u32 s{S_WO}, s{S_WO}, {64*7168}"); A(f"s_add_u32 s{S_WR}, s{S_WR}, {STAGE}")
    return o
def w_fill_rest():
    o=[]; A=lambda s:o.append(I(s))
    L0=lbl("Lf4"); L1=lbl("Lf4")
    def pieces(so,wr,reg):
        r=[]
        for t,n in ((1,7),(2,4)):
            for i in range(n):
                r.append(I(f"s_add_u32 m0, s{wr}, {i*1024+(t-1)*STAGE}")); r.append(I(f"s_add_u32 s18, s{so}, {(t-1)*64*7168}"))
                txt=f"buffer_load_dwordx4 v{V_WO+i}, s[8:11], s18 offen lds"
                r.append(VM(txt,("D",t)) if reg else I(txt))
        return r
    A(f"s_add_u32 s{S_WO}, s{S_WO}, {64*7168}"); A(f"s_add_u32 s{S_WR}, s{S_WR}, {STAGE}")
    own=pieces(S_WO,S_WR,True)
    A(f"s_cmp_eq_u32 s{S_W}, 0"); A(f"s_cbranch_scc1 {L0}")
    o+=own
    A(f"s_cmp_eq_u32 s{S_W}, 1"); A(f"s_cbranch_scc0 {L0}")
    A(f"s_sub_u32 s16, s{S_WO}, {32*7168}"); A(f"s_sub_u32 s17, s{S_WR}, 7168")
    o+=pieces(16,17,False)
    o.append(RAW(f"{L0}:"))
    A(f"s_add_u32 s{S_WO}, s{S_WO}, {64*7168}"); A(f"s_add_u32 s{S_WR}, s{S_WR}, {STAGE}")
    return o
def rest_setup():
    o=[]; A=lambda s:o.append(I(s))
    A("v_lshrrev_b32 v23, 2, v1"); A("v_mul_u32_u24 v23, 224, v23"); A("v_and_b32 v24, 3, v1"); A("v_lshlrev_b32 v24, 3, v24")
    A(f"v_add_u32 v{V_DSL}, v23, v24"); A(f"v_mov_b32 v{V_DS}, v{V_DSL}")
    A(f"s_lshl_b32 s16, s{S_M8}, 2"); A(f"s_add_u32 s16, s16, s{S_W}"); A("s_lshl_b32 s16, s16, 17")
    A(f"s_add_u32 s17, s16, {H_FO}"); A("v_lshlrev_b32 v23, 4, v1")
    for mb in range(4):
        A(f"v_add_u32 v{V_XO+mb}, s17, v23")
        if mb<3: A(f"s_add_u32 s17, s17, 32768")
    A(f"s_mov_b32 s{S_RD}, 0"); A(f"s_mov_b32 s{S_XO}, 0")
    A(f"s_mul_i32 s{S_CNT+1}, s{S_W}, 7168"); A(f"s_add_u32 s{S_CNT+1}, s{S_CNT+1}, {NST*STAGE}")
    for i in list(range(32,128))+[144,145]: A(f"v_mov_b32 v{i}, 0")
    return o
def x_fill():
    o=[]
    for t in range(3):
        for mb in range(4): o.append(x_load(t,mb))
        o.append(I(f"s_add_u32 s{S_XO}, s{S_XO}, 1024"))
    return o
def start():
    o=[WV(("D",0),"pd0"), I("s_barrier")]
    for f in range(D): o.extend(w_reads(0,f))
    return o
V_T=17; V_T2=29
def touch_setup():
    o=[]; A=lambda s:o.append(I(s))
    A(f"s_cmp_ge_u32 s{S_W}, 2"); A(f"s_cselect_b32 s80, s{P_WU}, s{P_WG}"); A(f"s_cselect_b32 s81, s{P_WU+1}, s{P_WG+1}"); A(f"s_mov_b32 s82, {1024*7168}"); A("s_mov_b32 s83, 0x20000")
    A(f"s_mov_b32 s36, s{P_WD}"); A(f"s_mov_b32 s37, s{P_WD+1}"); A(f"s_mov_b32 s38, {3584*2048}"); A("s_mov_b32 s39, 0x20000")
    return o
def touch_w(t0,ns):
    o=[]; A=lambda s:o.append(I(s))
    A("s_lshl_b32 s16, s2, 1"); A(f"s_and_b32 s17, s{S_W}, 1"); A("s_add_u32 s16, s16, s17"); A(f"s_mul_i32 s16, s16, {7*ns*128}"); A(f"s_add_u32 s16, s16, {t0*64*7168}")
    A("v_lshlrev_b32 v28, 7, v1"); A(f"v_mov_b32 v29, {BIG}"); A(f"v_cmp_gt_u32 vcc, {7*ns}, v1"); A("s_nop 1"); A("v_cndmask_b32 v28, v29, v28, vcc")
    A("buffer_load_dword v29, v28, s[80:83], s16 offen")
    return o
def touch_wd(first,per):
    o=[]; A=lambda s:o.append(I(s))
    A(f"s_mul_i32 s16, s2, {224*128}"); A(f"s_mul_i32 s17, s{S_W}, {56*128}"); A("s_add_u32 s16, s16, s17"); A(f"s_add_u32 s16, s16, {first*128}")
    A("v_lshlrev_b32 v28, 7, v1"); A(f"v_mov_b32 v29, {BIG}"); A(f"v_cmp_gt_u32 vcc, {per}, v1"); A("s_nop 1"); A("v_cndmask_b32 v28, v29, v28, vcc")
    A("buffer_load_dword v29, v28, s[36:39], s16 offen")
    return o
V_TW=17; V_TD=29; S_TW=77; S_TD=79
def touch_loop_setup():
    o=[]; A=lambda s:o.append(I(s))
    A("s_lshl_b32 s16, s2, 1"); A(f"s_and_b32 s17, s{S_W}, 1"); A("s_add_u32 s16, s16, s17"); A(f"s_mul_i32 s16, s16, {21*128}")
    A("v_lshlrev_b32 v28, 7, v1"); A(f"v_add_u32 v{V_TW}, s16, v28"); A(f"v_mov_b32 v4, {BIG}"); A("v_cmp_gt_u32 vcc, 21, v1"); A("s_nop 1"); A(f"v_cndmask_b32 v{V_TW}, v4, v{V_TW}, vcc")
    A(f"s_mul_i32 s16, s2, {224*128}"); A(f"s_mul_i32 s17, s{S_W}, {56*128}"); A("s_add_u32 s16, s16, s17")
    A(f"v_add_u32 v{V_TD}, s16, v28"); A(f"v_cndmask_b32 v{V_TD}, v4, v{V_TD}, vcc")
    A(f"s_mov_b32 s{S_TW}, {9*64*7168}"); A(f"s_mov_b32 s{S_TD}, {(-3*21*128)&0xffffffff}")
    return o
def body(it):
    out=[]
    for n in range(4*it,4*it+4):
        st=P.step_ops(n)
        if n%4==0:
            mf=[i for i,op in enumerate(st) if op.text and op.text.startswith("v_mfma")]
            k=mf[3]; st=st[:k]+[VM(f"buffer_load_dword v28, v{V_TW}, s[80:83], s{S_TW} offen",("T",))]+st[k:]
            mf=[i for i,op in enumerate(st) if op.text and op.text.startswith("v_mfma")]
            k=mf[4]; st=st[:k]+[VM(f"buffer_load_dword v28, v{V_TD}, s[36:39], s{S_TD} offen",("T",))]+st[k:]
        if n%4==1:
            mf=[i for i,op in enumerate(st) if op.text and op.text.startswith("v_mfma")]
            k=mf[3]; st=st[:k]+[I(f"s_add_u32 s{S_TW}, s{S_TW}, {3*64*7168}"), I(f"s_add_u32 s{S_TD}, s{S_TD}, {21*128}")]+st[k:]
        out+=st
    return out
AX=96
def mid_loads():
    o=[]; A=lambda s:o.append(I(s))
    A(f"s_lshl_b32 s16, s{S_M8}, 2"); A(f"s_add_u32 s16, s16, s{S_W}"); A("s_lshl_b32 s16, s16, 13"); A(f"s_add_u32 s16, s16, {STATS2}")
    A("v_and_b32 v4, 15, v1"); A("v_lshlrev_b32 v4, 3, v4"); A("v_lshrrev_b32 v5, 4, v1"); A("v_lshlrev_b32 v5, 9, v5")
    A("v_add_u32 v4, v4, v5"); A("v_add_u32 v4, s16, v4")
    for mb in range(4):
        A(f"s_mov_b32 s17, {mb*2048}")
        for i in range(4):
            r=AX+8+(mb*4+i)*2
            A(f"buffer_load_dwordx2 a[{r}:{r+1}], v4, s[4:7], s17 offen offset:{i*128} sc1")
    return o
def epi_prep():
    o=[]; A=lambda s:o.append(I(s))
    A(f"s_lshl_b32 s16, s{S_M8}, 4"); A(f"s_lshl_b32 s17, s{S_W}, 2"); A("s_add_u32 s16, s16, s17")
    A("s_mul_i32 s16, s16, 112"); A(f"s_mul_i32 s17, s{S_NT}, 7"); A("s_lshr_b32 s17, s17, 1"); A("s_add_u32 s16, s16, s17")
    A("s_lshl_b32 s16, s16, 10"); A(f"s_add_u32 s16, s16, {ACT_FO}")
    A("v_lshlrev_b32 v26, 4, v1")
    for mb in range(4):
        A(f"v_add_u32 v{V_XO+mb}, s16, v26"); A(f"s_add_u32 s16, s16, {112*1024}")
    return o
def epilogue(parity, extra):
    o=[]; A=lambda s:o.append(I(s))
    extra=list(extra); nst=[0]
    if extra: o+=extra.pop(0)+extra.pop(0)
    if parity==0: pairs=[(0,1,0),(2,3,1),(4,5,2),(6,None,3)]
    else: pairs=[(None,0,0),(1,2,1),(3,4,2),(5,6,3)]
    def bc(reg): return (reg&~1, reg&1)
    for (ba,bb,go) in pairs:
        for mb in range(4):
            for pos,nb in enumerate((ba,bb)):
                if nb is None: continue
                g=acc(nb,mb); u=acc(nb+7,mb); mp,hi=bc(V_R2+mb)
                for h in range(2): A(f"v_pk_mul_f32 v[{g+2*h}:{g+2*h+1}], v[{g+2*h}:{g+2*h+1}], v[{u+2*h}:{u+2*h+1}]")
                d = g if (pos==0 or ba is None) else acc(ba,mb)+2
                A(f"v_cvt_pk_bf16_f32 v{d}, v{g}, v{g+1}"); A(f"v_cvt_pk_bf16_f32 v{d+1}, v{g+2}, v{g+3}")
            if ba is not None and bb is not None:
                a=acc(ba,mb); o.append(VM(f"buffer_store_dwordx4 v[{a}:{a+3}], v{V_XO+mb}, s[4:7], 0 offen offset:{go*1024} sc1",("ACT",)))
            elif bb is None:
                a=acc(ba,mb); o.append(VM(f"buffer_store_dwordx2 v[{a}:{a+1}], v{V_XO+mb}, s[4:7], 0 offen offset:{go*1024} sc1",("ACT",)))
            else:
                a=acc(bb,mb); o.append(VM(f"buffer_store_dwordx2 v[{a}:{a+1}], v{V_XO+mb}, s[4:7], 0 offen offset:{go*1024+8} sc1",("ACT",)))
            nst[0]+=1
            if nst[0]<16 and extra: o+=extra.pop(0)
    assert not extra
    return o

from p4 import wslot, xr, WA0
TAIL=[]
for p_ in range(7): TAIL+=[(p_,30),(p_+7,30),(p_,31),(p_+7,31)]
def tail_read(k):
    f,st=TAIL[k]; a=WA0+(k%7)*4
    o=(f//7)*14336+(32*(st%2))*224+(f%7)*32
    return [DS(f"ds_read_b64_tr_b16 a[{a}:{a+1}], v{V_DS} offset:{o}",("WT",k)), DS(f"ds_read_b64_tr_b16 a[{a+2}:{a+3}], v{V_DS} offset:{o+16*224}",("WT",k))]
def last_common():
    out=[]
    for n in (28,29):
        t=n//2; s_=n%2; mf=[]; gaps={}
        def put(idx,ops): gaps.setdefault(idx,[]).extend(ops)
        for f in range(14):
            base=len(mf); a=wslot(f)
            for mb in (range(4) if f%2==0 else range(3,-1,-1)):
                mf.append(I(f"v_mfma_f32_16x16x32_bf16 {accr(f,mb)}, a[{a}:{a+3}], {xr(n%4,mb)}, {accr(f,mb)}"))
            pre=[WL(("W",n,f),("lwl",n,f))]
            if f==0: pre=[WV(("X",n),("lwx",n))]+pre
            put(base,pre)
            fa=f+D
            if fa<14: rd=w_reads(n,fa)
            elif n==28: rd=w_reads(29,fa-14)
            else: rd=tail_read(fa-14)
            if n==29 and fa==14:
                put(base+1,[WV(("D",15),"lwd"), I("s_barrier"), I(f"v_add_u32 v{V_DS}, s{S_RD}, v{V_DSL}")]); put(base+2,[rd[0]]); put(base+3,[rd[1]])
            else:
                put(base+1,[rd[0]]); put(base+2,[rd[1]])
        if n==28:
            for mb in range(4): put(4*(1+mb)+3,[x_load(31,mb)])
            put(4*12+3,[I(f"s_add_u32 s{S_RD}, s{S_RD}, {STAGE}")]); put(4*13+0,[I(f"s_cmp_ge_u32 s{S_RD}, {NST*STAGE}")]); put(4*13+3,[I(f"s_cselect_b32 s{S_RD}, 0, s{S_RD}")])
        else:
            ep=epi_prep(); pos=[x for k in range(13) for x in (4*k+3,4*k+4)]
            assert len(ep)<=len(pos)
            for op,g in zip(ep,pos): put(g,[op])
        out+=weave(mf,gaps)
    return out
def tail(parity):
    mf=[]; gaps={}
    ng=28*4
    use={g:[] for g in range(ng+1)}
    def cls(op): return opclass(op)
    def room(g,op):
        c=[cls(o) for o in use[g] if cls(o)!="W"]; k=cls(op)
        if k=="W": return True
        if len(c)>=2: return False
        if k in "DM" and ("D" in c or "M" in c): return False
        return True
    for k,(f,st) in enumerate(TAIL):
        a=WA0+(k%7)*4
        for mb in (range(4) if k%2==0 else range(3,-1,-1)):
            mf.append(I(f"v_mfma_f32_16x16x32_bf16 {accr(f,mb)}, a[{a}:{a+3}], {xr(st%4,mb)}, {accr(f,mb)}"))
        pre=[WL(("WT",k),("twl",parity,k))]
        if k==0: pre=[WV(("X",30),("twx",parity,30))]+pre
        if k==2: pre=[WV(("X",31),("twx",parity,31))]+pre
        use[4*k]+=pre
        if k+D<28:
            rd=tail_read(k+D); use[4*k+1].append(rd[0]); use[4*k+2].append(rd[1])
    pairs=[(0,1,0),(2,3,1),(4,5,2),(6,None,3)] if parity==0 else [(None,0,0),(1,2,1),(3,4,2),(5,6,3)]
    role={}
    for (ba,bb,go) in pairs:
        if ba is not None: role[ba]=(0,ba,bb,go)
        if bb is not None: role[bb]=(1,ba,bb,go)
    rest=[]; g=0
    for p in range(7):
        pos,ba,bb,go=role[p]
        q=[]
        for mb in range(4):
            gq=acc(p,mb); u=acc(p+7,mb)
            for r in range(4): q.append(I(f"v_mul_f32 v{gq+r}, v{gq+r}, v{u+r}"))
            d = gq if (pos==0 or ba is None) else acc(ba,mb)+2
            q.append(I(f"v_cvt_pk_bf16_f32 v{d}, v{gq}, v{gq+1}")); q.append(I(f"v_cvt_pk_bf16_f32 v{d+1}, v{gq+2}, v{gq+3}"))
            if ba is not None and bb is not None:
                if pos==1:
                    a=acc(ba,mb); q.append(VM(f"buffer_store_dwordx4 v[{a}:{a+3}], v{V_XO+mb}, s[4:7], 0 offen offset:{go*1024} sc1",("ACT",)))
            elif bb is None:
                a=acc(ba,mb); q.append(VM(f"buffer_store_dwordx2 v[{a}:{a+1}], v{V_XO+mb}, s[4:7], 0 offen offset:{go*1024} sc1",("ACT",)))
            else:
                a=acc(bb,mb); q.append(VM(f"buffer_store_dwordx2 v[{a}:{a+1}], v{V_XO+mb}, s[4:7], 0 offen offset:{go*1024+8} sc1",("ACT",)))
        start=16*(p+1)+6
        g=max(g,start)
        for op in q:
            while g<ng and not room(g,op): g+=1
            if g>=ng: rest.append(op)
            else: use[g].append(op)
    body_=weave(mf,{k:v for k,v in use.items() if v})
    return body_+[I("s_nop 7")]+rest
```

```python
from common import *
import p1 as P
from p1 import (S_XO,S_WO,S_WR,S_RD,S_CNT,S_LIM,ACC0,acc,STAGE,NST,V_XD,V_WD,V_XL,V_WL,V_XR,V_WR,V_CS,V_SQ,V_SV,dma_x,dma_w,x_read,w_reads)
V_Q=204; V_K=220; V_V=236
CS_SCR=153600

LATE=[]
POST=[]
LASTMID=[]
WOSET=[]
DELAY=[0]
CODEPF=[0]
KNAME="sequential_preLN__sliding_block__glu_gated_bilinear__prompt_kernel"
def entry():
    o=[]; A=lambda s:o.append(I(s))
    A("s_cmp_ge_u32 s2, 256"); A("s_cbranch_scc1 L_done")
    A(f"s_load_dwordx16 s[84:99], s[0:1], 0")
    A(f"s_load_dwordx2 s[{P_DBG}:{P_DBG+1}], s[0:1], {D_DBG}")
    A(f"s_load_dwordx2 s[4:5], s[0:1], {D_WS}")
    A("v_and_b32 v1, 63, v0"); A("v_lshrrev_b32 v23, 6, v0")
    if CODEPF[0]:
        A("s_getpc_b64 s[24:25]"); o.append(RAW("L_pc:")); A(f"s_sub_u32 s24, s24, L_pc-{KNAME}"); A("s_subb_u32 s25, s25, 0")
        A("s_lshr_b32 s16, s2, 3"); A("s_lshl_b32 s16, s16, 11")
        A("v_and_b32 v2, 15, v0"); A("v_lshlrev_b32 v2, 7, v2"); A("v_add_u32 v2, s16, v2"); A(f"s_mov_b32 s17, L_codeend-{KNAME}")
        A("v_cmp_gt_u32 vcc, s17, v2"); A("v_cmp_gt_u32 s[26:27], 16, v0"); A("s_nop 1"); A("s_and_b64 vcc, vcc, s[26:27]")
        A("s_and_saveexec_b64 s[26:27], vcc"); A("s_cbranch_execz L_nopf")
        A("global_load_dword v29, v2, s[24:25]")
        o.append(RAW("L_nopf:")); A("s_mov_b64 exec, s[26:27]")
    A("s_and_b32 s3, s2, 7"); A("s_lshr_b32 s16, s2, 3")
    A("s_and_b32 s17, s3, 1"); A("s_lshl_b32 s17, s17, 2"); A("s_and_b32 s18, s16, 3"); A("s_add_u32 s17, s17, s18"); A("s_lshr_b32 s18, s2, 7"); A("s_lshl_b32 s18, s18, 3"); A(f"s_add_u32 s{S_MT}, s17, s18")
    A(f"v_readfirstlane_b32 s{S_W}, v23")
    A("s_lshr_b32 s17, s3, 1"); A("s_lshl_b32 s17, s17, 2"); A("s_bfe_u32 s18, s16, 0x20002"); A(f"s_add_u32 s{S_J}, s17, s18")
    POST[:]=[I("s_and_b32 s3, s2, 7"), I("s_lshr_b32 s16, s2, 3"), I("s_lshr_b32 s17, s16, 4"), I("s_lshl_b32 s17, s17, 3"), I(f"s_add_u32 s{S_M3}, s17, s3"), I(f"s_and_b32 s{S_N3}, s16, 15")]
    if DELAY[0]:
        A("s_cmp_ge_u32 s2, 128"); A("s_cbranch_scc0 L_nodelay"); A("s_memrealtime s[24:25]"); A("s_waitcnt lgkmcnt(0)")
        o.append(RAW("L_dl:")); A("s_memrealtime s[26:27]"); A("s_waitcnt lgkmcnt(0)"); A("s_sub_u32 s26, s26, s24"); A(f"s_cmp_lt_u32 s26, {DELAY[0]}"); A("s_cbranch_scc1 L_dl")
        o.append(RAW("L_nodelay:"))
    POST.extend([I(f"v_mov_b32 v{V_L0}, {BIG}"), I("v_cmp_eq_u32 vcc, 0, v1"), I("s_nop 1"), I(f"v_cndmask_b32 v{V_L0}, v{V_L0}, 0, vcc")])
    st=P.setup()
    i0=[k for k,op in enumerate(st) if op.text.startswith("v_lshrrev_b32 v23, 3, v1")][0]
    i1=[k for k,op in enumerate(st) if op.text=="s_waitcnt lgkmcnt(0)"][0]
    POST.extend(touch_voff())
    body_=st[i0:i1]
    k=[i for i,op in enumerate(body_) if op.text.startswith(f"s_lshr_b32 s16, s{S_W}, 1")][0]
    o+=body_[:k]
    LATE[:]=body_[k:]
    o+=stamp("prek")
    A("s_waitcnt lgkmcnt(0)")
    o+=stamp("kern")
    A(f"s_mov_b32 s6, {BIG}"); A("s_mov_b32 s7, 0x20000")
    A(f"s_mov_b32 s40, s{P_DBG}"); A(f"s_mov_b32 s41, s{P_DBG+1}"); A("s_mov_b32 s42, 256"); A("s_mov_b32 s43, 0x20000")
    A(f"s_lshl_b32 s16, s{S_MT}, 18"); A(f"s_add_u32 s12, s{P_X}, s16"); A(f"s_addc_u32 s13, s{P_X+1}, 0"); A("s_sub_u32 s14, 0x400000, s16"); A("s_mov_b32 s15, 0x20000")
    A(f"s_lshl_b32 s16, s{S_J}, 7"); A(f"s_add_u32 s8, s{P_WQKV}, s16"); A(f"s_addc_u32 s9, s{P_WQKV+1}, 0"); A(f"s_sub_u32 s10, {1024*6144}, s16"); A("s_mov_b32 s11, 0x20000")
    o+=touch_setup()+touch()
    return o

def zero_sync():
    o=[]; A=lambda s:o.append(I(s))
    A(f"s_lshl_b32 s16, s{S_MT}, 4"); A(f"s_add_u32 s16, s16, s{S_J}"); A("s_lshl_b32 s16, s16, 8"); A(f"s_add_u32 s16, s16, {S_KV}")
    A("s_lshl_b32 s17, s2, 8"); A(f"s_add_u32 s18, s17, {S_CNT0}"); A(f"s_add_u32 s17, s17, {S_XF}")
    A(f"s_add_u32 s19, s18, {256*256}"); A("s_cmp_lt_u32 s2, 64"); A(f"s_cselect_b32 s19, s19, {BIG}")
    A(f"v_mov_b32 v24, {BIG}")
    for lane,sr in ((0,16),(1,17),(2,18),(3,19)):
        A(f"v_mov_b32 v25, s{sr}"); A(f"v_cmp_eq_u32 vcc, {lane}, v0"); A("s_nop 1"); A("v_cndmask_b32 v24, v24, v25, vcc")
    A("v_mov_b32 v20, v24")
    return o
def zero_store():
    return [I("v_mov_b32 v25, 0"), I("buffer_store_dword v25, v20, s[4:7], 0 offen sc1")]

R0=128
V_CSA=168
V_ONE=192
S_WM=23
def early_loads():
    o=[]; A=lambda s:o.append(I(s))
    A(f"s_lshl_b32 s16, s{S_J}, 14"); A(f"s_lshl_b32 s17, s{S_W}, 12"); A("s_add_u32 s16, s16, s17")
    A("v_lshlrev_b32 v23, 4, v1")
    for q in range(2):
        for h in range(2):
            r=R0+8*q+4*h
            A(f"buffer_load_dwordx4 v[{r}:{r+3}], v23, s[12:15], s16 offen offset:{q*2048+h*1024}")
    A(f"s_mov_b32 s36, s{P_WO}"); A(f"s_mov_b32 s37, s{P_WO+1}"); A(f"s_mov_b32 s38, {1024*2048}"); A("s_mov_b32 s39, 0x20000")
    A("s_lshl_b32 s16, s2, 2"); A(f"s_add_u32 s16, s16, s{S_W}"); A("s_lshl_b32 s16, s16, 11")
    for h in range(2):
        r=R0+24+4*h
        A(f"buffer_load_dwordx4 v[{r}:{r+3}], v23, s[36:39], s16 offen offset:{h*1024}")
    return o
def early_proc():
    o=[]; A=lambda s:o.append(I(s))
    T=R0+16
    A("v_mov_b32 v24, 0x3f803f80")
    for q in range(2):
        for d in range(8):
            r=R0+8*q+d
            if d==0:
                A(f"v_dot2_f32_bf16 v{T+2*q}, v{r}, v24, 0"); A(f"v_dot2_f32_bf16 v{T+2*q+1}, v{r}, v{r}, 0")
            else:
                A(f"v_dot2_f32_bf16 v{T+2*q}, v{r}, v24, v{T+2*q}"); A(f"v_dot2_f32_bf16 v{T+2*q+1}, v{r}, v{r}, v{T+2*q+1}")
    for d in range(8):
        r=R0+24+d
        A(f"v_dot2_f32_bf16 v{T+4}, v{r}, v24, {0 if d==0 else 'v%d'%(T+4)}")
    regs=list(range(T,T+5))
    A("s_nop 2")
    for sh in (8,4,2,1):
        A("s_nop 1")
        for r in regs: A(f"v_add_f32_dpp v{r}, v{r}, v{r} row_ror:{sh} row_mask:0xf bank_mask:0xf")
    swap_sum(A,regs,R0,"v_permlane16_swap_b32"); swap_sum(A,regs,R0,"v_permlane32_swap_b32")
    A("s_mov_b32 s16, 0x3a800000"); A(f"v_mul_f32 v25, s16, v{T+4}")
    A("v_cvt_pk_bf16_f32 v26, v25, v25"); A("v_lshlrev_b32 v27, 16, v26"); A("v_sub_f32 v27, v25, v27"); A("v_cvt_pk_bf16_f32 v27, v27, v27")
    A("v_cmp_eq_u32 vcc, 1, v1"); A("s_nop 1"); A("v_cndmask_b32 v26, v26, v27, vcc")
    A("s_lshl_b32 s16, s2, 2"); A(f"s_add_u32 s16, s16, s{S_W}")
    A("s_lshr_b32 s17, s16, 5"); A("s_lshl_b32 s17, s17, 7")
    A("s_bfe_u32 s18, s16, 0x20002"); A("s_lshl_b32 s18, s18, 5"); A("s_add_u32 s17, s17, s18")
    A("s_bfe_u32 s18, s16, 0x10004"); A("s_lshl_b32 s18, s18, 3"); A("s_add_u32 s17, s17, s18")
    A("s_and_b32 s18, s16, 3"); A("s_lshl_b32 s18, s18, 1"); A("s_add_u32 s17, s17, s18"); A(f"s_add_u32 s17, s17, {WBAR}")
    A("v_lshlrev_b32 v23, 4, v1"); A(f"v_mov_b32 v25, {BIG}"); A("v_cmp_gt_u32 vcc, 2, v1"); A("s_nop 1"); A("v_cndmask_b32 v23, v25, v23, vcc")
    A("buffer_store_short v26, v23, s[4:7], s17 offen sc1")
    A("v_cmp_eq_u32 vcc, 1, v1"); A("s_nop 1")
    A(f"v_cndmask_b32 v26, v{T}, v{T+2}, vcc"); A(f"v_cndmask_b32 v27, v{T+1}, v{T+3}, vcc")
    A("s_mov_b32 s16, 0x3a800000"); A("s_mov_b32 s17, 0x3727c5ac")
    A("v_mul_f32 v26, s16, v26"); A("v_mul_f32 v27, s16, v27"); A("v_fma_f32 v27, -v26, v26, v27"); A("v_add_f32 v27, s17, v27")
    A("v_rsq_f32 v27, v27")
    A(f"s_lshl_b32 s16, s{S_MT}, 10"); A(f"s_lshl_b32 s17, s{S_J}, 6"); A("s_add_u32 s16, s16, s17"); A(f"s_lshl_b32 s17, s{S_W}, 4"); A("s_add_u32 s16, s16, s17"); A(f"s_add_u32 s16, s16, {STATS1}")
    A("v_lshlrev_b32 v23, 3, v1"); A(f"v_mov_b32 v24, {BIG}"); A("v_cmp_gt_u32 vcc, 2, v1"); A("s_nop 1"); A("v_cndmask_b32 v23, v24, v23, vcc")
    A(f"buffer_store_dwordx2 v[26:27], v23, s[4:7], s16 offen sc1")
    return o

def prefetch(which, part=0, parts=1):
    o=[]; A=lambda s:o.append(I(s))
    ptr,nbytes={"wo":(P_WO,1024*2048),"wg":(P_WG,1024*7168),"wu":(P_WU,1024*7168),"wd":(P_WD,3584*2048)}[which]
    lines=nbytes//128//256
    per=lines//4//parts
    assert per*4*parts==lines
    A(f"s_mov_b32 s36, s{ptr}"); A(f"s_mov_b32 s37, s{ptr+1}"); A(f"s_mov_b32 s38, {nbytes}"); A("s_mov_b32 s39, 0x20000")
    A(f"s_mul_i32 s16, s2, {lines*128}"); A(f"s_mul_i32 s17, s{S_W}, {per*parts*128}"); A("s_add_u32 s16, s16, s17"); A(f"s_add_u32 s16, s16, {part*per*128}")
    A("v_lshlrev_b32 v28, 7, v1"); A(f"v_mov_b32 v29, {BIG}"); A(f"v_cmp_gt_u32 vcc, {per}, v1"); A("s_nop 1"); A("v_cndmask_b32 v28, v29, v28, vcc")
    A("buffer_load_dword v29, v28, s[36:39], s16 offen")
    return o

def stats_loads():
    st=P.load_stats()
    k=[i for i,op in enumerate(st) if op.text.startswith("v_lshrrev_b32 v23, 6, v0")][0]
    st=st[:k]
    for op in st:
        if op.kind=="vm": op.text+=" sc1"
    return st

def early_query():
    return [I("v_lshlrev_b32 v28, 7, v1"), I("v_cmp_gt_u32 vcc, 2, v1"), I(f"v_mov_b32 v31, {BIG}"), I("s_nop 0"), I("v_cndmask_b32 v28, v31, v28, vcc"),
            I(f"buffer_load_dword v31, v28, {DBG}, 0 offen sc1")]
def mid_section():
    o=[]; A=lambda s:o.append(I(s))
    L=lbl("Lm"); Pl=lbl("Lmp")
    A("v_readlane_b32 s17, v31, 0"); A("v_readlane_b32 s18, v31, 1"); A("s_cmp_ge_u32 s2, 128"); A("s_cselect_b32 s17, s18, s17"); A("s_cmp_ge_u32 s17, 128"); A(f"s_cbranch_scc1 {L}")
    A("s_mov_b32 s19, 0"); o.append(RAW(f"{Pl}:")); A("s_add_u32 s19, s19, 1"); A("s_cmp_gt_u32 s19, 300000"); A(f"s_cbranch_scc1 {L}")
    A(f"buffer_load_dword v31, v28, {DBG}, 0 offen sc1"); A("s_waitcnt vmcnt(0)")
    A("v_readlane_b32 s17, v31, 0"); A("v_readlane_b32 s18, v31, 1"); A("s_cmp_ge_u32 s2, 128"); A("s_cselect_b32 s17, s18, s17"); A("s_cmp_ge_u32 s17, 128"); A(f"s_cbranch_scc0 {Pl}")
    o.append(RAW(f"{L}:"))
    for op in stats_loads():
        o.append(I(op.text) if op.kind=="vm" else op)
    return o

V_T=21; S_TO=77
V_T2=22
def touch_setup():
    o=[]; A=lambda s:o.append(I(s))
    A(f"s_mov_b32 s80, s{P_WQKV}"); A(f"s_mov_b32 s81, s{P_WQKV+1}"); A(f"s_mov_b32 s82, {1024*6144}"); A("s_mov_b32 s83, 0x20000")
    return o
def touch_voff():
    o=[]; A=lambda s:o.append(I(s))
    A(f"v_lshlrev_b32 v{V_T}, 7, v1"); A("s_cmp_ge_u32 s2, 128"); A(f"s_cselect_b32 s76, 0, {BIG}")
    return o
def touch():
    o=[]; A=lambda s:o.append(I(s))
    A("s_and_b32 s16, s2, 127"); A("s_lshl_b32 s16, s16, 2"); A(f"s_add_u32 s16, s16, s{S_W}")
    A("s_lshl_b32 s17, s16, 13"); A("s_add_u32 s17, s17, s76")
    A(f"buffer_load_dword v29, v{V_T}, s[80:83], s17 offen")
    A(f"s_mov_b32 s36, s{P_X}"); A(f"s_mov_b32 s37, s{P_X+1}"); A("s_mov_b32 s38, 0x400000"); A("s_mov_b32 s39, 0x20000")
    A(f"buffer_load_dword v29, v{V_T}, s[36:39], s17 offen")
    A("s_lshl_b32 s17, s16, 12"); A(f"s_add_u32 s17, s17, {512*64*128}"); A("s_add_u32 s17, s17, s76")
    A(f"v_mov_b32 v25, {BIG}"); A("v_cmp_gt_u32 vcc, 32, v1"); A("s_nop 1"); A(f"v_cndmask_b32 v24, v25, v{V_T}, vcc")
    A("buffer_load_dword v29, v24, s[80:83], s17 offen")
    return o
def touch4_voff():
    o=[]; A=lambda s:o.append(I(s))
    A("s_lshl_b32 s17, s2, 2"); A(f"s_add_u32 s17, s17, s{S_W}"); A("s_mul_i32 s17, s17, 1536")
    A("v_lshlrev_b32 v24, 7, v1"); A("v_add_u32 v24, s17, v24")
    A(f"v_mov_b32 v25, {BIG}"); A("v_cmp_gt_u32 vcc, 12, v1"); A("s_nop 1"); A(f"v_cndmask_b32 v{V_T4}, v25, v24, vcc")
    return o
def touch4(e):
    return [I(f"s_mov_b32 s80, s{P_WQKV}"), I(f"s_mov_b32 s81, s{P_WQKV+1}"), I(f"s_mov_b32 s82, {1024*6144}"), I(f"s_mov_b32 s{S_TO}, {(8+4*e)*64*6144}"),
            I(f"buffer_load_dword v29, v{V_T4}, s[80:83], s{S_TO} offen")]
def cs_block(n):
    o=[]
    for nb in range(6):
        a=P.wa(n,nb); c=V_CSA+4*nb
        if nb<4: o.append(I(f"v_mfma_f32_16x16x32_bf16 v[{c}:{c+3}], a[{a}:{a+3}], v[{V_ONE}:{V_ONE+3}], v[{c}:{c+3}]"))
        else:    o.append(I(f"v_mfma_f32_16x16x32_bf16 v[{c}:{c+3}], v[{V_ONE}:{V_ONE+3}], a[{a}:{a+3}], v[{c}:{c+3}]"))
    return o
def step_ops(n, wm):
    t=n//2; s_=n%2
    mf=[]
    for nb in range(6):
        a=P.wa(n,nb)
        for mb in (range(4) if nb%2==0 else range(3,-1,-1)):
            if nb<4: mf.append(I(f"v_mfma_f32_16x16x32_bf16 {P.accr(nb,mb)}, a[{a}:{a+3}], {P.xr(n,mb)}, {P.accr(nb,mb)}"))
            else:    mf.append(I(f"v_mfma_f32_16x16x32_bf16 {P.accr(nb,mb)}, {P.xr(n,mb)}, a[{a}:{a+3}], {P.accr(nb,mb)}"))
    if wm==s_: mf+=cs_block(n)
    gaps={}
    def put(g,ops): gaps.setdefault(g,[]).extend(ops if isinstance(ops,list) else [ops])
    put(0,[WL([("X",n,m) for m in range(4)]+[("W",n,0),("W",n,1)],("w0",s_))])
    put(8,[WL([("W",n,2),("W",n,3)],("w1",s_))]); put(16,[WL([("W",n,4),("W",n,5)],("w2",s_))])
    na=n+1
    rds=[x_read(na,m) for m in range(4)]
    for nb in range(6): rds+=w_reads(na,nb)
    if s_==0:
        td=t+3
        dpos=[1,2,3,5,6,7,9,10,11,13,14,15,17,18,19,21]
        for g,r in zip(dpos,rds): put(g,r)
        for i,g in zip(range(1,6),(4,8,12,16,20)):
            d=dma_w(td,i)
            if len(d)==2: put(g-1,d[0]); put(g,d[1])
            else: put(g,d[0])
        put(1,I(f"s_add_u32 s{S_RD}, s{S_RD}, {STAGE}")); put(2,I(f"s_cmp_ge_u32 s{S_RD}, {NST*STAGE}")); put(3,I(f"s_cselect_b32 s{S_RD}, 0, s{S_RD}"))
        put(21,I(f"s_add_u32 s{S_XO}, s{S_XO}, 128")); put(22,I(f"s_add_u32 s{S_WO}, s{S_WO}, {64*6144}"))
        put(23,[I(f"s_add_u32 s3, s{S_WR}, {STAGE}"), I(f"s_cmp_eq_u32 s3, s{S_LIM}")])
        put(24,[I(f"s_cselect_b32 s{S_WR}, s78, s3"), I(f"s_add_u32 s{S_LIM+1}, s{S_WR}, s{S_LIM+2}")])
    else:
        td=t+4
        put(1,[WV(("D",t+1),("wd",)), DRAINL(), I("s_barrier"), I(f"s_cmp_eq_u32 s{S_CNT}, s{S_LIM+3}"), I(f"s_cbranch_scc1 L1_pub{wm}"), RAW(f"L1_pubr{wm}:")])
        put(2,[I(f"v_add_u32 v{V_XR}, s{S_RD}, v{V_XL}"), I(f"v_add_u32 v{V_WR}, s{S_RD}, v{V_WL}")])
        put(3,[I(f"v_add_u32 v{V_WR+1}, s{S_RD}, v{V_WL+1}"), I(f"v_add_u32 v{V_XR+1}, s{S_RD}, v{V_XL+1}")])
        dpos=[4,5,6,8,9,10,12,13,14,16,17,18,20,21,22,24]
        for g,r in zip(dpos,rds): put(g,r)
        for (k,i),g in zip([("x",0),("x",1),("x",2),("x",3),("w",0)],(7,11,15,19,23)):
            d=dma_x(td,i) if k=="x" else dma_w(td,i)
            if len(d)==2: put(g-1,d[0]); put(g,d[1])
            else: put(g,d[0])
    return weave(mf,gaps)
def body(it, wm):
    return step_ops(2*it,wm)+step_ops(2*it+1,wm)

def epilogue(pre=(), groups=()):
    o=_epilogue(pre)
    groups=list(groups); out=[]; cnt=0; started=False
    for op in o:
        out.append(op)
        t=op.text or ""
        if t.startswith("v_pk_fma_f32"): started=True
        if started and t.startswith("v_") and groups:
            cnt+=1
            if cnt%9==0: out+=groups.pop(0)
    assert not groups, len(groups)
    return out
def _epilogue(pre):
    o=[]; A=lambda s:o.append(I(s))
    A("s_waitcnt vmcnt(0) lgkmcnt(0)")
    A("s_barrier")
    o+=list(pre)
    A(f"v_mov_b32 v{V_CSA+17}, v{V_CSA+20}")
    A(f"s_mul_i32 s16, s{S_W}, 5120"); A(f"s_add_u32 s16, s16, {CS_SCR-20480}"); A(f"s_xor_b32 s17, s{S_W}, 2"); A("s_mul_i32 s17, s17, 5120"); A(f"s_add_u32 s17, s17, {CS_SCR-20480}")
    A("v_lshlrev_b32 v23, 4, v1"); A("v_add_u32 v24, s17, v23"); A("v_add_u32 v23, s16, v23")
    for q in range(5): o.append(DS(f"ds_write_b128 v23, v[{V_CSA+4*q}:{V_CSA+4*q+3}] offset:{q*1024}",("cw",)))
    o.append(WL(("cw",),"cw")); A("s_barrier")
    for q in range(5): o.append(DS(f"ds_read_b128 v[{2+4*q}:{5+4*q}], v24 offset:{q*1024}",("cr",)))
    o.append(WL(("cr",),"cr"))
    for q in range(18): A(f"v_add_f32 v{V_CSA+q}, v{V_CSA+q}, v{2+q}")
    A(f"s_and_b32 s16, s{S_W}, 1"); A(f"s_lshl_b32 s17, s{S_J}, 1"); A("s_add_u32 s16, s16, s17")
    A(f"s_lshr_b32 s17, s{S_W}, 1"); A("s_lshl_b32 s17, s17, 2"); A(f"s_lshl_b32 s18, s{S_MT}, 3"); A("s_add_u32 s17, s17, s18")
    A("s_lshl_b32 s16, s16, 7"); A("s_add_u32 s16, s16, s17"); A("s_lshl_b32 s16, s16, 10")
    A("v_lshlrev_b32 v23, 4, v1"); A("v_add_u32 v23, s16, v23")
    A(f"s_mov_b32 s17, {K_FO}"); A(f"s_mov_b32 s18, {VT_FO}"); A("s_mov_b32 s19, 0x3e8293ee")
    def qk(sec):
        for mb in range(4):
            mu=V_SQ+2*mb; rs=mu+1
            if sec==0: A(f"v_mul_f32 v25, s19, v{rs}")
            tq=(V_Q if sec==0 else V_K)+4*mb
            for h in range(2):
                nb=2*sec+h; a=acc(nb,mb); c=168+4*nb
                for e in range(2):
                    A(f"v_pk_fma_f32 v[{a+2*e}:{a+2*e+1}], v[{c+2*e}:{c+2*e+1}], v[{mu}:{mu+1}], v[{a+2*e}:{a+2*e+1}] op_sel:[0,0,0] op_sel_hi:[1,0,1] neg_lo:[0,1,0] neg_hi:[0,1,0]")
                if sec==0:
                    for e in range(2): A(f"v_pk_mul_f32 v[{a+2*e}:{a+2*e+1}], v[{a+2*e}:{a+2*e+1}], v[24:25] op_sel:[0,1] op_sel_hi:[1,1]")
                else:
                    for e in range(2): A(f"v_pk_mul_f32 v[{a+2*e}:{a+2*e+1}], v[{a+2*e}:{a+2*e+1}], v[{mu}:{mu+1}] op_sel:[0,1] op_sel_hi:[1,1]")
                A(f"v_cvt_pk_bf16_f32 v{tq+2*h}, v{a}, v{a+1}"); A(f"v_cvt_pk_bf16_f32 v{tq+2*h+1}, v{a+2}, v{a+3}")
            if sec==1: o.append(VM(f"buffer_store_dwordx4 v[{tq}:{tq+3}], v23, s[4:7], s17 offen offset:{mb*1024} sc1",("KV",)))
    qk(1)
    for gam in range(2):
        for db in range(2):
            tq=V_V+4*(2*gam+db)
            for h in range(2):
                mb=2*gam+h; a=acc(4+db,mb); sv=V_SV+8*mb
                for r in range(4):
                    A(f"v_fma_f32 v{a+r}, -v{sv+2*r}, v{184+db}, v{a+r}"); A(f"v_mul_f32 v{a+r}, v{a+r}, v{sv+2*r+1}")
                A(f"v_cvt_pk_bf16_f32 v{tq+2*h}, v{a}, v{a+1}"); A(f"v_cvt_pk_bf16_f32 v{tq+2*h+1}, v{a+2}, v{a+3}")
            o.append(VM(f"buffer_store_dwordx4 v[{tq}:{tq+3}], v23, s[4:7], s18 offen offset:{(gam*2+db)*1024} sc1",("KV",)))
    qk(0)
    return o

def gen():
    out=[]
    out.append(text(stamp("start")))
    e=entry()
    z=zero_sync()
    fill=P.fill()
    init=[I(f"s_lshr_b32 s{S_WM}, s{S_W}, 1"), I(f"s_lshl_b32 s78, s{S_W}, 12")]
    k1=[i for i,op in enumerate(fill) if op.text.startswith(f"s_add_u32 s{S_XO}, s{S_XO}, 128")][0]
    zi=[I(f"v_mov_b32 v{ACC0+i}, 0") for i in range(96)]+[I(f"v_mov_b32 v{V_CSA+i}, 0") for i in range(24)]+[I(f"v_mov_b32 v{V_ONE+i}, 0x3f803f80") for i in range(4)]
    rest=fill[k1:]
    vm=[i for i,op in enumerate(rest) if op.kind=="vm"]
    mix=[]; zq=list(LATE)+zi+list(WOSET)+touch4_voff()+z
    per=(len(zq)+len(vm)-1)//len(vm)
    for i,op in enumerate(rest):
        mix.append(op)
        if op.kind=="vm":
            mix+=zq[:per]; zq=zq[per:]
    mix+=zq
    out.append(text(e))
    out.append(text(touch_setup()+touch()+early_loads()))
    out.append(text(fill[:k1])); out.append(text(POST+slab_voff())); out.append(text(slab_touch()+slab_touch()+touch())); out.append(text(stamp("d0iss"))); out.append(text(mix)); out.append(text(stamp("fiss")))
    ts=touch4_voff()+slab_touch()+touch()
    out.append(text(init)); out.append(text(stamp("init")))
    pro=[WV(("D",0),"pd0")]+stamp("d0land")+[I("s_barrier")]+[x_read(0,m) for m in range(4)]
    for nb in range(6): pro+=w_reads(0,nb)
    pro+=[I(f"s_mov_b32 s{S_CNT}, {RUNS[0]}"), I(f"s_mov_b32 s{S_LIM+3}, 99"), I("s_mov_b32 s33, 0")]
    bs=[]
    for wm in range(2):
        bodies=[body(i,wm) for i in range(3)]
        simulate(fill+pro+bodies[0]+bodies[1]+bodies[2])
        bs.append(resolve(bodies))
    out.append(text(pro)); out.append(text(stamp("p1loop")))
    out.append(f"L1_disp:\n    s_cmp_eq_u32 s{S_WM}, 1\n    s_cbranch_scc1 L1_loop1")
    for wm in range(2):
        out.append(f".p2align 6\nL1_loop{wm}:"); out.append(text(bs[wm]))
        out.append(f"    s_sub_u32 s{S_CNT}, s{S_CNT}, 1\n    s_cmp_lg_u32 s{S_CNT}, 0\n    s_cbranch_scc1 L1_loop{wm}")
        out.append("    s_branch L1_after")
    for wm in range(2):
        out.append(f"L1_pub{wm}:\n    v_mov_b32 v24, 1\n    s_lshr_b32 s16, s2, 7\n    s_lshl_b32 s16, s16, 7\n    buffer_atomic_add v24, v{V_L0}, {DBG}, s16 offen sc1\n    s_branch L1_pubr{wm}")
    out.append("L1_after:")
    mids=[]
    m0=z+early_proc()+stamp("early")
    m0+=[I(f"s_cmp_eq_u32 s{S_W}, 0"), I(f"s_cselect_b32 s{S_LIM+3}, {RUNS[1]-1}, 99")]
    mids.append(m0)
    mids.append([I(f"s_mov_b32 s{S_LIM+3}, 99")]+slab_touch()+touch())
    mids.append(early_query())
    mids.append(mid_section())
    for k in range(len(mids)):
        out.append(f"    s_cmp_eq_u32 s33, {k}\n    s_cbranch_scc1 L1_mid{k}")
    out.append("    s_branch L1_end")
    for k,m in enumerate(mids):
        out.append(f"L1_mid{k}:"); out.append(text(stamp(f"in{k}"))); out.append(text(m)); out.append(text(stamp(f"out{k}"))); out.append(f"    s_mov_b32 s33, {k+1}\n    s_mov_b32 s{S_CNT}, {RUNS[k+1]}\n    s_branch L1_disp")
    out.append("L1_end:")
    out.append(text(stamp("p1end")))
    return "\n".join(out)
RUNS=[1,3,5,3,4]
assert sum(RUNS)==16
```
